```python
import torch

def _softmax(x, axis=-1):
    return torch.softmax(x, dim=axis)
def _gelu(x):
    return torch.nn.functional.gelu(x, approximate="tanh")
def _silu(x):
    return torch.nn.functional.silu(x)
def _sigmoid(x):
    return torch.sigmoid(x)
def _layernorm(x, axis=-1, eps=1e-5):
    m = x.mean(dim=axis, keepdim=True)
    v = x.var(dim=axis, keepdim=True, unbiased=False)
    return (x - m) / torch.sqrt(v + eps)
def _scatter_add(tgt, idx, src, axis=0):
    return tgt.clone().index_add_(axis, idx, src)
def _segment_sum(src, seg, n):
    out = torch.zeros((n,) + src.shape[1:], dtype=src.dtype)
    return out.index_add_(0, seg, src)
def _pad(x, pw):
    flat = tuple(v for pair in reversed(pw) for v in pair)
    return torch.nn.functional.pad(x, flat)

kernel_name = 'parallel_sum__softmax_full_mha__swiglu_ffn__prompt'

def setup_inputs():

    _w = (lambda a: (lambda t: t.to(torch.bfloat16) if t.is_floating_point() else t)(torch.as_tensor(a)))
    def _A_setup():
        B, S, D = 1, 2048, 576
        return {
            "x": _w((lambda *s: torch.randn(*s, dtype=torch.bfloat16) * 0.05)(B, S, D)),
            "wqkv": _w((lambda *s: torch.randn(*s, dtype=torch.bfloat16) * 0.2)(D, 3 * D)),
            "wo": _w((lambda *s: torch.randn(*s, dtype=torch.bfloat16) * 0.1)(D, D)),
        }
    _A_in = _A_setup()

    def _B_setup():
        B, S, D, F = 1, 2048, 576, 4608
        return {
            "x": _w((lambda *s: torch.randn(*s, dtype=torch.bfloat16) * 0.05)(B, S, D)),
            "w_gate": _w((lambda *s: torch.randn(*s, dtype=torch.bfloat16) * 0.1)(D, F)),
            "w_up": _w((lambda *s: torch.randn(*s, dtype=torch.bfloat16) * 0.1)(D, F)),
            "w_down": _w((lambda *s: torch.randn(*s, dtype=torch.bfloat16) * 0.1)(F, D)),
        }
    _B_in = _B_setup()

    return {
        "A_x": _A_in["x"],
        "A_wqkv": _A_in["wqkv"],
        "A_wo": _A_in["wo"],
        "B_x": _B_in["x"],
        "B_w_gate": _B_in["w_gate"],
        "B_w_up": _B_in["w_up"],
        "B_w_down": _B_in["w_down"],
    }

def reference(A_x, A_wqkv, A_wo, B_x, B_w_gate, B_w_up, B_w_down):
    def _A_ref(x, wqkv, wo):
        B, S, D = x.shape
        H = 32; Dh = D // H
        qkv = (lambda x, *d: x.permute(*d))((x @ wqkv).reshape(B, S, 3, H, Dh), 2, 0, 3, 1, 4)
        q, k, v = qkv[0], qkv[1], qkv[2]
        scale = Dh ** -0.5
        scores = torch.einsum("bhqd,bhkd->bhqk", q, k) * scale
        p = _softmax(scores, axis=-1)
        o = torch.einsum("bhqk,bhkd->bhqd", p, v)
        return (lambda x, *d: x.permute(*d))(o, 0, 2, 1, 3).reshape(B, S, D) @ wo

    def _B_ref(x, w_gate, w_up, w_down):
        g = _silu(x @ w_gate)
        u = x @ w_up
        return (g * u) @ w_down

    x = A_x
    xn = _layernorm(x, axis=-1)
    return x + _A_ref(xn, A_wqkv, A_wo) + _B_ref(xn, B_w_gate, B_w_up, B_w_down)
```

```python
import re

REG_RE = re.compile(r'^(-|\|)?([vas])(\d+)$|^(-)?([vas])\[(\d+):(\d+)\]$')

def parse_reg(tok):
    tok = tok.strip()
    t = tok
    if t.startswith('-'): t = t[1:]
    if t.startswith('abs(') and t.endswith(')'): t = t[4:-1]
    if t.startswith('|') and t.endswith('|'): t = t[1:-1]
    m = re.match(r'^([vas])(\d+)$', t)
    if m: return [(m.group(1), int(m.group(2)))]
    m = re.match(r'^([vas])\[(\d+):(\d+)\]$', t)
    if m: return [(m.group(1), i) for i in range(int(m.group(2)), int(m.group(3)) + 1)]
    if t == 'vcc': return [('s', 'vcc')]
    if t == 'exec': return [('s', 'exec')]
    if t == 'm0': return [('s', 'm0')]
    if t in ('vcc_lo', 'vcc_hi'): return [('s', 'vcc')]
    if t in ('exec_lo', 'exec_hi'): return [('s', 'exec')]
    return []

TRANS = ('v_exp_f32', 'v_log_f32', 'v_rcp_f32', 'v_rsq_f32', 'v_sqrt_f32', 'v_sin_f32', 'v_cos_f32', 'v_rcp_iflag_f32')

class Ins:
    __slots__ = ('text', 'op', 'kind', 'rd', 'wr', 'srcC', 'mods', 'tag', 'passes', 'dpp')
    def __init__(self, text, tag=None):
        self.text = text; self.tag = tag
        t = text.split(';')[0].strip()
        parts = t.split(None, 1)
        self.op = op = parts[0]
        rest = parts[1] if len(parts) > 1 else ''
        ops = [o.strip() for o in re.split(r',(?![^\[]*\])', rest)] if rest else []
        mods = ''
        if ops:
            last = ops[-1].split()
            if last:
                ops[-1] = last[0]; mods = ' '.join(last[1:])
        self.mods = mods
        self.rd = set(); self.wr = set(); self.srcC = set(); self.passes = 0
        self.dpp = ('dpp' in op) or ('row_' in mods) or ('quad_perm' in mods) or ('row_' in t and op.startswith('v_'))
        R = lambda i: parse_reg(ops[i]) if i < len(ops) else []
        if op.startswith('v_mfma'):
            self.kind = 'mfma'
            self.wr |= set(R(0)); self.rd |= set(R(1)) | set(R(2)) | set(R(3)); self.srcC = set(R(3))
            self.passes = 8 if '32x32' in op else 4
            if '32x32x4_2b' in op or '32x32x1_2b' in op: self.passes = 16
        elif op.startswith('v_'):
            self.kind = 'trans' if op.replace('_e32', '').replace('_e64', '') in TRANS else 'valu'
            if op.startswith('v_cmp'):
                self.wr |= set(R(0))
                for i in range(1, len(ops)): self.rd |= set(R(i))
                if op.startswith('v_cmpx'): self.wr.add(('s', 'exec'))
            elif op.startswith('v_permlane') and 'swap' in op:
                self.wr |= set(R(0)) | set(R(1)); self.rd |= set(R(0)) | set(R(1))
            elif op.startswith('v_add_co') or op.startswith('v_sub_co') or op.startswith('v_addc_co') or op.startswith('v_subb_co'):
                self.wr |= set(R(0)) | set(R(1))
                for i in range(2, len(ops)): self.rd |= set(R(i))
            elif op.startswith('v_readfirstlane') or op.startswith('v_readlane'):
                self.wr |= set(R(0))
                for i in range(1, len(ops)): self.rd |= set(R(i))
            else:
                self.wr |= set(R(0))
                for i in range(1, len(ops)): self.rd |= set(R(i))
                if op.startswith('v_fmac') or op.startswith('v_dot2c') or op.startswith('v_pk_fmac') or self.dpp or op.startswith('v_writelane'):
                    self.rd |= set(R(0))
                if op.startswith('v_cndmask') and len(ops) == 3: self.rd.add(('s', 'vcc'))
            self.rd.add(('s', 'exec'))
        elif op.startswith('ds_'):
            self.kind = 'ds'
            if op.startswith('ds_read') or op.startswith('ds_bpermute') or op.startswith('ds_permute') or op.startswith('ds_swizzle'):
                self.wr |= set(R(0))
                for i in range(1, len(ops)): self.rd |= set(R(i))
                if 'd16' in op: self.rd |= set(R(0))
            else:
                for i in range(len(ops)): self.rd |= set(R(i))
        elif op.startswith('buffer_') or op.startswith('global_'):
            self.kind = 'vmem'
            is_lds = bool(re.search(r'\blds\b', mods)) or 'load_lds' in op
            if op in ('buffer_wbl2', 'buffer_inv'):
                pass
            elif 'store' in op:
                for i in range(len(ops)): self.rd |= set(R(i))
            elif 'atomic' in op:
                for i in range(len(ops)): self.rd |= set(R(i))
                if 'sc0' in mods: self.wr |= set(R(0))
            elif is_lds:
                for i in range(len(ops)): self.rd |= set(R(i))
                self.rd.add(('s', 'm0'))
            else:
                self.wr |= set(R(0))
                for i in range(1, len(ops)): self.rd |= set(R(i))
                if 'd16' in op: self.rd |= set(R(0))
        elif op.startswith('s_'):
            if op in ('s_waitcnt', 's_nop', 's_barrier', 's_endpgm', 's_setprio', 's_sleep', 's_branch') or op.startswith('s_cbranch'):
                self.kind = 'ctl'
                if op == 's_cbranch_vccz' or op == 's_cbranch_vccnz': self.rd.add(('s', 'vcc'))
                if op.startswith('s_cbranch_exec'): self.rd.add(('s', 'exec'))
            elif op.startswith('s_load') or op.startswith('s_memtime') or op.startswith('s_memrealtime') or op.startswith('s_buffer_load'):
                self.kind = 'smem'
                self.wr |= set(R(0))
                for i in range(1, len(ops)): self.rd |= set(R(i))
            else:
                self.kind = 'salu'
                if op.startswith('s_cmp') or op.startswith('s_bitcmp'):
                    for i in range(len(ops)): self.rd |= set(R(i))
                else:
                    self.wr |= set(R(0))
                    for i in range(1, len(ops)): self.rd |= set(R(i))
                    if 'saveexec' in op: self.wr.add(('s', 'exec')); self.rd.add(('s', 'exec'))
                    if op in ('s_addk_i32', 's_mulk_i32'): self.rd |= set(R(0))
        else:
            self.kind = 'other'
    def nslots(self):
        if self.op == 's_nop':
            return int(self.text.split()[1], 0) + 1
        return 1

def is_v(r): return r[0] in ('v', 'a')

def required_gap(p, c):
    need = 0
    pw = p.wr; cr = c.rd; cw = c.wr
    vw = {r for r in pw if is_v(r)}
    sw = {r for r in pw if r[0] == 's'}
    if p.kind in ('valu', 'trans'):
        if c.kind == 'mfma' and (vw & cr): need = max(need, 2)
        if p.kind == 'trans' and c.kind in ('valu', 'mfma') and (vw & cr): need = max(need, 1)
        if p.kind == 'trans' and c.kind in ('trans',) and (vw & cr): need = max(need, 1)
        if c.kind in ('valu', 'trans'):
            if (c.op.startswith('v_permlane')) and (vw & cr): need = max(need, 2)
            if c.dpp and (vw & cr): need = max(need, 2)
            if (c.op.startswith('v_readlane') or c.op.startswith('v_readfirstlane')) and (vw & cr): need = max(need, 1)
            if sw & cr - {('s', 'exec')}: need = max(need, 2)
            if ('s', 'exec') in sw: need = max(need, 5 if c.dpp else 4)
            if (c.op.startswith('v_readlane') or c.op.startswith('v_writelane')) and (sw & cr): need = max(need, 4)
        if c.kind == 'vmem' and (sw & cr): need = max(need, 5)
        if c.kind == 'mfma' and ('s', 'exec') in sw: need = max(need, 4)
        if c.kind == 'ctl' and (sw & cr): need = max(need, 5)
        if c.kind in ('salu',) and (sw & cr): need = max(need, 1)
    if p.kind == 'mfma':
        n = p.passes
        full = {2: 5, 4: 8, 8: 12, 16: 20}[n]
        ovl = {2: 4, 4: 6, 8: 10, 16: 18}[n]
        war = {2: 1, 4: 3, 8: 7, 16: 15}[n]
        if c.kind == 'mfma':
            ab = c.rd - c.srcC if False else None
            if vw & (c.rd - c.srcC): need = max(need, full)
            elif vw & c.srcC:
                if c.srcC == vw and c.passes == p.passes: need = max(need, 0 if n >= 4 else 2)
                else: need = max(need, ovl)
            if vw & c.wr and not (vw & c.srcC):
                need = max(need, ovl)
        elif c.kind in ('valu', 'trans', 'vmem', 'ds'):
            if vw & (cr | cw): need = max(need, full)
            if c.kind in ('valu', 'trans') and (p.srcC & cw): need = max(need, war)
    if p.kind == 'vmem' and 'store' in p.op and ('x4' in p.op or 'x3' in p.op):
        data = {r for r in p.rd if is_v(r)}
        if c.kind in ('valu', 'trans') and (data & cw): need = max(need, 2)
        elif c.kind in ('mfma',) and (data & cw): need = max(need, 2)
    if p.kind == 'ds' and p.op in ('ds_write_b128', 'ds_write_b96'):
        data = {r for r in p.rd if is_v(r)}
        if c.kind in ('valu', 'trans') and (data & cw): need = max(need, 2)
    if p.kind == 'salu' and ('s', 'm0') in pw and c.kind in ('vmem', 'ds') and ('s', 'm0') in cr: need = max(need, 1)
    if p.kind == 'salu' and ('s','exec') in pw and c.kind == 'mfma': need = max(need, 1)
    return need

class Emitter:
    def __init__(self):
        self.out = []
        self.lds_q = []
        self.vm_q = []
        self.auto = True
        self.nops = 0
        self.waits = 0
    def label(self, name):
        self.out.append(name + ':')
    def raw(self, s):
        self.out.append(s)
    def comment(self, s):
        self.out.append('    ; ' + s)
    def _hist(self, n=24):
        h = []; tot = 0
        for x in reversed(self.out):
            if isinstance(x, str):
                continue
            h.append(x); tot += x.nslots()
            if tot >= n: break
        return h
    def _pad(self, ins):
        dist = 0; need = 0
        for p in self._hist():
            g = required_gap(p, ins)
            if g - dist > need: need = g - dist
            dist += p.nslots()
        while need > 0:
            k = min(need, 16)
            self.out.append(Ins(f's_nop {k-1}')); self.nops += k
            need -= k
    def _waits(self, ins):
        touched = ins.rd | ins.wr
        lg = None
        for i, (dst, _) in enumerate(self.lds_q):
            if dst & touched: lg = len(self.lds_q) - 1 - i
        vm = None
        for i, (dst, _) in enumerate(self.vm_q):
            if dst & touched: vm = len(self.vm_q) - 1 - i
        if lg is not None or vm is not None:
            self.wait(vm=vm, lg=lg)
    def wait(self, vm=None, lg=None):
        parts = []
        if vm is not None:
            vm = min(vm, 63)
            if vm < len(self.vm_q):
                parts.append(f'vmcnt({vm})'); self.vm_q = self.vm_q[len(self.vm_q) - vm:] if vm else []
        if lg is not None:
            lg = min(lg, 15)
            if lg < len(self.lds_q):
                parts.append(f'lgkmcnt({lg})'); self.lds_q = self.lds_q[len(self.lds_q) - lg:] if lg else []
        if parts:
            self.out.append(Ins('s_waitcnt ' + ' '.join(parts))); self.waits += 1
    def wait_tag(self, tag):
        idx = None
        for i, (_, t) in enumerate(self.vm_q):
            if t == tag: idx = i
        if idx is not None:
            self.wait(vm=len(self.vm_q) - 1 - idx)
    def wait_all(self):
        self.out.append(Ins('s_waitcnt vmcnt(0) lgkmcnt(0)')); self.vm_q = []; self.lds_q = []
    def wait_lgkm0(self):
        self.out.append(Ins('s_waitcnt lgkmcnt(0)')); self.lds_q = []
    def wait_vm0(self):
        self.out.append(Ins('s_waitcnt vmcnt(0)')); self.vm_q = []
    def e(self, text, tag=None):
        ins = Ins(text, tag)
        if ins.op == 's_waitcnt':
            m = re.search(r'vmcnt\((\d+)\)', text)
            if m:
                n = int(m.group(1)); self.vm_q = self.vm_q[max(0, len(self.vm_q) - n):] if n else []
            m = re.search(r'lgkmcnt\((\d+)\)', text)
            if m:
                n = int(m.group(1)); self.lds_q = self.lds_q[max(0, len(self.lds_q) - n):] if n else []
            self.out.append(ins); return ins
        if self.auto:
            self._waits(ins)
            self._pad(ins)
        self.out.append(ins)
        if ins.kind == 'ds':
            self.lds_q.append((set(ins.wr), tag))
        elif ins.kind == 'smem':
            self.lds_q.append((set(ins.wr), 'smem'))
        elif ins.kind == 'vmem' and ins.op not in ('buffer_inv',):
            if tag is None and (re.search(r'\blds\b', ins.mods) or 'load_lds' in ins.op): tag = 'dma'
            self.vm_q.append((set(r for r in ins.wr if is_v(r)), tag))
        return ins
    def state(self):
        return ([ (frozenset(a), b) for a, b in self.lds_q], [ (frozenset(a), b) for a, b in self.vm_q])
    def text(self):
        return '\n'.join(x if isinstance(x, str) else '    ' + x.text for x in self.out) + '\n'
    def mark(self):
        return len(self.out)
    def check_loop(self, start, end=None):
        body = [x for x in self.out[start:end] if not isinstance(x, str)]
        seq = body + body
        n = len(body)
        bad = []
        for j in range(n, min(2 * n, n + 40)):
            dist = 0
            for i in range(j - 1, max(-1, j - 30), -1):
                g = required_gap(seq[i], seq[j])
                if g > dist and i < n: bad.append((seq[i].text, seq[j].text, g, dist))
                dist += seq[i].nslots()
                if dist > 24: break
        return bad
```

```python
from kcommon import *

def gen_ln(name='ln_kernel'):
    e = Emitter()
    header(e, name)
    e.e('s_cmp_ge_u32 s2, 256')
    e.e(f's_cbranch_scc1 {name}_end')
    load_ptr(e, 4, 'x'); load_ptr(e, 6, 'ws')
    e.e('v_lshrrev_b32 v1, 3, v0')
    e.e('v_and_b32 v2, 7, v0')
    e.e('s_lshl_b32 s3, s2, 3')
    e.e('v_add_u32 v3, s3, v1')
    e.e('v_mul_u32_u24 v3, 1152, v3')
    e.e('v_lshl_add_u32 v3, v2, 4, v3')
    e.wait_lgkm0()
    make_srd(e, 8, 4, 2048 * 1152)
    make_srd(e, 12, 6, WS_USED)
    for i in range(9):
        e.e(f'buffer_load_dwordx4 v[{8+4*i}:{11+4*i}], v3, s[8:11], 0 offen offset:{128*i}')
    e.e('s_lshr_b32 s16, s2, 2')
    e.e('s_mul_i32 s16, s16, 36864')
    e.e('s_and_b32 s17, s2, 3')
    e.e('s_lshl_b32 s17, s17, 7')
    e.e('s_add_u32 s16, s16, s17')
    e.e('v_lshrrev_b32 v4, 1, v2')
    e.e('v_lshlrev_b32 v4, 10, v4')
    e.e('v_and_b32 v5, 1, v2')
    e.e('v_lshl_add_u32 v4, v5, 9, v4')
    e.e('v_lshl_add_u32 v4, v1, 4, v4')
    e.e('v_add_u32 v4, s16, v4')
    if XNF: e.e(f'v_add_u32 v4, {XNF}, v4')
    X = 64
    for i in range(36):
        e.e(f'v_lshlrev_b32 v{X+2*i}, 16, v{8+i}')
        e.e(f'v_and_b32 v{X+2*i+1}, 0xffff0000, v{8+i}')
    for k in range(4): e.e(f'v_add_f32 v{50+k}, v{X+k}, v{X+4+k}')
    for i in range(8, 72): e.e(f'v_add_f32 v{50+i%4}, v{50+i%4}, v{X+i}')
    e.e('v_add_f32 v50, v50, v51'); e.e('v_add_f32 v52, v52, v53'); e.e('v_add_f32 v50, v50, v52')
    def reduce8(r):
        e.e(f'v_add_f32_dpp v{r}, v{r}, v{r} quad_perm:[1,0,3,2] row_mask:0xf bank_mask:0xf')
        e.e(f'v_add_f32_dpp v{r}, v{r}, v{r} quad_perm:[2,3,0,1] row_mask:0xf bank_mask:0xf')
        e.e(f'v_add_f32_dpp v{r}, v{r}, v{r} row_half_mirror row_mask:0xf bank_mask:0xf')
    reduce8(50)
    e.e(f'v_mul_f32 v50, {fh(1.0/576)}, v50')
    for i in range(72): e.e(f'v_sub_f32 v{X+i}, v{X+i}, v50')
    for k in range(4): e.e(f'v_mul_f32 v{52+k}, v{X+k}, v{X+k}')
    for i in range(4, 72): e.e(f'v_fmac_f32 v{52+i%4}, v{X+i}, v{X+i}')
    e.e('v_add_f32 v52, v52, v53'); e.e('v_add_f32 v54, v54, v55'); e.e('v_add_f32 v52, v52, v54')
    reduce8(52)
    e.e(f'v_mov_b32 v53, {fh(1e-5)}')
    e.e(f'v_fmac_f32 v53, {fh(1.0/576)}, v52')
    e.e('v_rsq_f32 v53, v53')
    for i in range(72): e.e(f'v_mul_f32 v{X+i}, v{X+i}, v53')
    for i in range(36): e.e(f'v_cvt_pk_bf16_f32 v{8+i}, v{X+2*i}, v{X+2*i+1}')
    for i in range(9):
        e.e(f's_mov_b32 s18, {4096*i}')
        e.e(f'buffer_store_dwordx4 v[{8+4*i}:{11+4*i}], v4, s[12:15], s18 offen')
    e.label(f'{name}_end')
    e.e('s_endpgm')
    return e.text(), descriptor(name, 136), dict(name=name, grid=256, block=64, lds=0)
```

```python
from kcommon import *

S_WQ, S_WG, S_WU, S_WS = 12, 16, 20, 24
S_MI, S_J, S_W, S_E = 28, 29, 30, 31
S_T0 = 32
S_DM0, S_DOFF = 33, 34
S_BUF = 35
S_U = 36
S_HST0, S_HST1 = 37, 38
S_KG = 39
S_NL2E, S_QS = 40, 41
S_COL = 42
S_TMP, S_TMP2 = 43, 44
S_KGN = 45
S_COL5 = 46
S_KG5 = 47
S_DML = 48
V_L16 = 2
V_DG, V_DU = 3, 4
V_DA, V_DB = 5, 6
V_BA, V_BB, V_BG0, V_BG1 = 7, 8, 9, 10
V_RD0, V_RD1 = 11, 12
V_SC, V_BI = 13, 14
V_VST, V_QXST = 15, 16
V_WF = 40
ACC = [64, 96]
V_T = 128
XT1_V = 224
BUFSZ = 73728
MAT1 = 36864

def xfrag(t, s):
    if t == 0: return f'a[{4*s}:{4*s+3}]'
    if s < 28: return f'a[{144+4*s}:{144+4*s+3}]'
    return f'v[{XT1_V+4*(s-28)}:{XT1_V+4*(s-28)+3}]'

def wslot(s): return V_WF + 4 * (s % 3)

def reads(vrd, s):
    b = wslot(s)
    return [f'ds_read_b64_tr_b16 v[{b}:{b+1}], v{vrd} offset:{s*1024}',
            f'ds_read_b64_tr_b16 v[{b+2}:{b+3}], v{vrd} offset:{s*1024+256}']

def epi_gu(acc):
    out = []
    for t in range(2):
        G = acc + 16 * t; U = G + 8
        T = V_T + 24 * t; P = T + 8; O = T + 16
        for r in range(8): out.append(f'v_mul_f32 v{T+r}, s{S_NL2E}, v{G+r}')
        for r in range(8): out.append(f'v_exp_f32 v{T+r}, v{T+r}')
        for r in range(8): out.append(f'v_mul_f32 v{P+r}, v{G+r}, v{U+r}')
        for r in range(8): out.append(f'v_add_f32 v{T+r}, 1.0, v{T+r}')
        for r in range(8): out.append(f'v_rcp_f32 v{T+r}, v{T+r}')
        if t == 0:
            out.append(f's_lshl_b32 s{S_TMP}, s{S_KG}, 10')
            out.append(f's_add_u32 s{S_TMP}, s{S_TMP}, s{S_HST0}')
        else:
            out.append(f's_lshl_b32 s{S_TMP2}, s{S_KG}, 10')
            out.append(f's_add_u32 s{S_TMP2}, s{S_TMP2}, s{S_HST1}')
        for r in range(8): out.append(f'v_mul_f32 v{P+r}, v{P+r}, v{T+r}')
        for r in range(4): out.append(f'v_cvt_pk_bf16_f32 v{O+r}, v{P+2*r}, v{P+2*r+1}')
        out.append(f'buffer_store_dwordx4 v[{O}:{O+3}], v{V_L16}, s[{S_WS}:{S_WS+3}], s{S_TMP if t == 0 else S_TMP2} offen')
    return out

def epi_a(acc):
    out = []
    for t in range(2):
        Q = acc + 16 * t; Kk = Q + 8
        T = V_T + 24 * t; O = T + 8; O2 = T + 12
        for r in range(8): out.append(f'v_mul_f32 v{T+r}, s{S_QS}, v{Q+r}')
        for r in range(4): out.append(f'v_cvt_pk_bf16_f32 v{O2+r}, v{Kk+2*r}, v{Kk+2*r+1}')
        for r in range(4): out.append(f'v_cvt_pk_bf16_f32 v{O+r}, v{T+2*r}, v{T+2*r+1}')
        out.append(f's_lshl_b32 s{S_TMP}, s{S_J}, 6')
        out.append(f's_add_u32 s{S_TMP}, s{S_TMP}, s{S_T0}')
        if t: out.append(f's_add_u32 s{S_TMP}, s{S_TMP}, 1')
        out.append(f's_lshl_b32 s{S_TMP}, s{S_TMP}, 10')
        out.append(f's_add_u32 s{S_TMP2}, s{S_TMP}, {KF}')
        out.append(f's_add_u32 s{S_TMP}, s{S_TMP}, {QF}')
        out.append(f'buffer_store_dwordx4 v[{O2}:{O2+3}], v{V_L16}, s[{S_WS}:{S_WS+3}], s{S_TMP2} offen')
        out.append(f'buffer_store_dwordx4 v[{O}:{O+3}], v{V_L16}, s[{S_WS}:{S_WS+3}], s{S_TMP} offen')
    return out

def epi_b(acc):
    out = []
    for t in range(2):
        A = acc + 16 * t
        T = V_T + 48 * 0
        X = T; Y = T + 16; O = T + 32
        for r in range(16): out.append(f'v_fma_f32 v{X+r}, v{A+r}, v{V_SC}, v{V_BI}')
        for r in range(8): out.append(f'v_cvt_pk_bf16_f32 v{O+r}, v{X+2*r}, v{X+2*r+1}')
        out.append(f's_mul_i32 s{S_TMP}, s{S_J}, {VF_HEAD}')
        out.append(f's_add_u32 s{S_TMP2}, s{S_T0}, {t}')
        out.append(f's_mul_i32 s{S_TMP2}, s{S_TMP2}, {2*VF_G}')
        out.append(f's_add_u32 s{S_TMP}, s{S_TMP}, s{S_TMP2}')
        out.append(f's_add_u32 s{S_TMP}, s{S_TMP}, {VF}')
        out.append(f'buffer_store_dwordx4 v[{O}:{O+3}], v{V_VST}, s[{S_WS}:{S_WS+3}], s{S_TMP} offen')
        out.append(f'buffer_store_dwordx4 v[{O+4}:{O+7}], v{V_VST}, s[{S_WS}:{S_WS+3}], s{S_TMP} offen offset:{VF_G}')
        for r in range(16): out.append(f'v_mov_b32_dpp v{Y+r}, v{X+r} row_shl:1 row_mask:0xf bank_mask:0xf bound_ctrl:0')
        for r in range(16): out.append(f'v_cvt_pk_bf16_f32 v{Y+r}, v{X+r}, v{Y+r}')
        out.append(f's_lshl_b32 s{S_TMP}, s{S_J}, 13')
        out.append(f's_add_u32 s{S_TMP2}, s{S_T0}, {t}')
        out.append(f's_lshl_b32 s{S_TMP2}, s{S_TMP2}, 7')
        out.append(f's_add_u32 s{S_TMP}, s{S_TMP}, s{S_TMP2}')
        for g in range(4):
            out.append(f'buffer_store_dwordx4 v[{Y+4*g}:{Y+4*g+3}], v{V_QXST}, s[{S_WS}:{S_WS+3}], s{S_TMP} offen offset:{32*g}')
    return out

def dma_gu():
    out = []
    for i in range(9):
        for m, (srd, vo) in enumerate(((S_WG, V_DG), (S_WU, V_DU))):
            g = []
            if i == 0 and m == 0:
                g.append(f's_mul_i32 s{S_DOFF}, s{S_W}, {16*9216}')
                g.append(f's_add_u32 s{S_DOFF}, s{S_DOFF}, s{S_COL}')
                g.append(f's_mov_b32 s{S_DML}, s{S_DM0}')
            elif m == 0:
                g.append(f's_add_u32 s{S_DOFF}, s{S_DOFF}, {4*16*9216}')
                g.append(f's_add_u32 s{S_DML}, s{S_DML}, 4096')
            g.append(f's_add_u32 m0, s{S_DML}, {m*MAT1}')
            g.append('s_nop 0' if False else None)
            g.append(f'buffer_load_dwordx4 v{vo}, s[{srd}:{srd+3}], s{S_DOFF} offen lds')
            out.append([x for x in g if x])
    return out

def tile(e, kind, acc, vrd, nxt_vrd, switch, fillers, first_gap=3, nvm_wait=None, pre_switch=None, dma=(), dma_start=0, dma_stride=6):
    fl = list(fillers)
    ngaps = 72 - first_gap - 2
    per = -(-len(fl) // ngaps) if fl else 0
    gap = 0
    dma = list(dma)
    vm_after = [0]
    pend = []
    def fill_pre():
        g = gap + 1
        if dma and g > dma_start and (g - dma_start - 1) % dma_stride == 0:
            grp = dma.pop(0)
            for x in grp[:-1]: e.e(x)
            pend.append(grp[-1])
    def fill():
        nonlocal gap
        gap += 1
        if pend:
            e.e(pend.pop(0))
            return
        if gap > first_gap:
            for _ in range(per):
                if fl: e.e(fl.pop(0))
    for s in range(36):
        if s == 35 and switch:
            while dma:
                for x in dma.pop(0): e.e(x)
            while fl: e.e(fl.pop(0))
            e.wait(lg=0)
            if nvm_wait == 'dma':
                idx = max(i for i, (d, t) in enumerate(e.vm_q) if t == 'dma')
                e.wait(vm=len(e.vm_q) - 1 - idx)
            else:
                e.wait(vm=nvm_wait)
            if pre_switch:
                for x in pre_switch: e.e(x)
            e.e('s_barrier')
            for r in reads(nxt_vrd, 0) + reads(nxt_vrd, 1): e.e(r)
        rd = []
        if s + 2 < 36: rd = reads(vrd, s + 2)
        elif not switch and nxt_vrd is not None: rd = reads(nxt_vrd, s + 2 - 36)
        w = wslot(s)
        for t in range(2):
            d = acc + 16 * t
            c = '0' if s == 0 else f'v[{d}:{d+15}]'
            if kind == 'B':
                e.e(f'v_mfma_f32_32x32x16_bf16 v[{d}:{d+15}], {xfrag(t, s)}, v[{w}:{w+3}], {c}')
            else:
                e.e(f'v_mfma_f32_32x32x16_bf16 v[{d}:{d+15}], v[{w}:{w+3}], {xfrag(t, s)}, {c}')
            fill_pre()
            if rd: e.e(rd[t])
            fill()
    while dma:
        for x in dma.pop(0): e.e(x)
    while fl: e.e(fl.pop(0))

def gen_p1(name='p1_kernel', prof=False):
    e = Emitter()
    header(e, name)
    P = Prof(e, prof)
    P.stamp('start'); P.stamp('rstart', real=True)
    e.e('s_cmp_ge_u32 s2, 256')
    e.e(f's_cbranch_scc1 {name}_end')
    load_ptr(e, 4, 'wqkv'); load_ptr(e, 6, 'wg'); load_ptr(e, 8, 'wu'); load_ptr(e, 10, 'ws')
    e.e('v_lshrrev_b32 v1, 6, v0')
    e.e('v_and_b32 v0, 63, v0')
    e.e(f'v_readfirstlane_b32 s{S_W}, v1')
    e.e(f's_lshr_b32 s{S_MI}, s2, 5')
    e.e(f's_and_b32 s{S_TMP}, s2, 7')
    e.e(f's_lshl_b32 s{S_TMP}, s{S_TMP}, 2')
    e.e(f's_bfe_u32 s{S_TMP2}, s2, 0x20003')
    e.e(f's_add_u32 s{S_J}, s{S_TMP}, s{S_TMP2}')
    e.e(f's_and_b32 s{S_E}, s{S_J}, 1')
    e.e(f's_lshl_b32 s{S_T0}, s{S_MI}, 3')
    e.e(f's_lshl_b32 s{S_TMP}, s{S_W}, 1')
    e.e(f's_add_u32 s{S_T0}, s{S_T0}, s{S_TMP}')
    e.e(f's_mov_b32 s{S_NL2E}, {fh(-LOG2E)}')
    e.e(f's_mov_b32 s{S_QS}, {fh(QSCALE)}')
    e.e(f'v_lshlrev_b32 v{V_L16}, 4, v0')
    e.e('v_lshrrev_b32 v20, 2, v0')
    e.e('v_and_b32 v21, 3, v0')
    e.e(f'v_mul_u32_u24 v22, 9216, v20')
    e.e(f'v_lshl_add_u32 v{V_DG}, v21, 4, v22')
    e.e('v_xor_b32 v23, 2, v21')
    e.e(f'v_lshl_add_u32 v{V_DU}, v23, 4, v22')
    e.e(f's_mul_i32 s{S_TMP}, s{S_J}, 36')
    e.e(f'v_mul_u32_u24 v22, 3456, v20')
    e.e(f'v_lshl_add_u32 v22, v21, 4, v22')
    e.e(f'v_lshrrev_b32 v23, 1, v21')
    e.e(f'v_mul_u32_u24 v23, {1152-32}, v23')
    e.e(f'v_add3_u32 v{V_DA}, v22, v23, s{S_TMP}')
    e.e('v_lshrrev_b32 v20, 4, v0')
    e.e('v_and_b32 v21, 15, v0')
    e.e(f'v_mul_u32_u24 v22, 3456, v20')
    e.e(f'v_add_u32 v22, s{S_TMP}, v22')
    e.e(f'v_lshlrev_b32 v23, 2, v21')
    e.e(f'v_add_u32 v23, 2304, v23')
    e.e(f'v_mov_b32 v24, 0x7ff00000')
    e.e(f'v_cmp_gt_u32 vcc, 9, v21')
    e.e(f'v_cndmask_b32 v24, v24, v23, vcc')
    e.e(f'v_mov_b32 v23, 32')
    e.e(f'v_cmp_eq_u32 vcc, 10, v21')
    e.e(f'v_cndmask_b32 v24, v24, v23, vcc')
    e.e(f'v_mov_b32 v23, {1152+32}')
    e.e(f'v_cmp_eq_u32 vcc, 11, v21')
    e.e(f'v_cndmask_b32 v24, v24, v23, vcc')
    e.e(f'v_add_u32 v{V_DB}, v22, v24')
    e.e('v_lshrrev_b32 v20, 4, v0')
    e.e('v_bfe_u32 v21, v0, 2, 2')
    e.e('v_and_b32 v22, 3, v0')
    e.e('v_lshrrev_b32 v23, 1, v20')
    e.e('v_lshl_add_u32 v23, v23, 3, v21')
    e.e('v_lshlrev_b32 v23, 6, v23')
    e.e('v_lshl_add_u32 v23, v22, 3, v23')
    e.e('v_and_b32 v24, 1, v20')
    e.e(f'v_lshl_add_u32 v{V_BA}, v24, 5, v23')
    e.e(f'v_add_u32 v{V_BB}, {MAT1}, v{V_BA}')
    e.e(f'v_mul_u32_u24 v25, {MAT1}, v24')
    e.e(f'v_add_u32 v25, v25, v23')
    e.e(f'v_lshl_add_u32 v{V_BG0}, v24, 5, v25')
    e.e(f'v_xor_b32 v{V_BG1}, 32, v{V_BG0}')
    e.e('v_and_b32 v20, 31, v0')
    e.e('v_lshrrev_b32 v21, 5, v0')
    e.e(f'v_mov_b32 v{V_SC}, 1.0')
    e.e(f'v_mov_b32 v22, s{S_QS}')
    e.e(f'v_and_b32 v23, 30, v20')
    e.e(f'v_cmp_eq_u32 vcc, 20, v23')
    e.e(f'v_cndmask_b32 v{V_SC}, v{V_SC}, v22, vcc')
    e.e(f'v_mov_b32 v{V_BI}, 0')
    e.e(f'v_mov_b32 v22, 1.0')
    e.e(f'v_cmp_eq_u32 vcc, 18, v20')
    e.e(f'v_cndmask_b32 v{V_BI}, v{V_BI}, v22, vcc')
    e.e(f'v_mul_u32_u24 v22, 320, v21')
    e.e(f'v_lshl_add_u32 v22, v20, 4, v22')
    e.e(f'v_mov_b32 v{V_VST}, 0x7ff00000')
    e.e(f'v_cmp_ge_u32 vcc, 19, v20')
    e.e(f'v_cndmask_b32 v{V_VST}, v{V_VST}, v22, vcc')
    e.e(f'v_lshlrev_b32 v22, 4, v21')
    e.e(f'v_add_u32 v23, {QX}, v22')
    e.e(f'v_add_u32 v22, {KX}, v22')
    e.e(f'v_mov_b32 v{V_QXST}, 0x7ff00000')
    e.e(f'v_cmp_eq_u32 vcc, 20, v20')
    e.e(f'v_cndmask_b32 v{V_QXST}, v{V_QXST}, v23, vcc')
    e.e(f'v_cmp_eq_u32 vcc, 22, v20')
    e.e(f'v_cndmask_b32 v{V_QXST}, v{V_QXST}, v22, vcc')
    e.wait_lgkm0()
    make_srd(e, S_WQ, 4, 576 * 3456)
    make_srd(e, S_WG, 6, 576 * 9216)
    make_srd(e, S_WU, 8, 576 * 9216)
    make_srd(e, S_WS, 10, WS_USED)
    e.e(f's_lshl_b32 s{S_TMP}, s{S_W}, 10')
    e.e(f's_mov_b32 m0, s{S_TMP}')
    e.e(f's_mul_i32 s{S_DOFF}, s{S_W}, {16*3456}')
    for i in range(9):
        if i:
            e.e('s_add_u32 m0, m0, 4096')
            e.e(f's_add_u32 s{S_DOFF}, s{S_DOFF}, {4*16*3456}')
        e.e(f'buffer_load_dwordx4 v{V_DA}, s[{S_WQ}:{S_WQ+3}], s{S_DOFF} offen lds', tag='A')
    e.e(f's_mul_i32 s{S_TMP}, s{S_T0}, 36864')
    if XNF: e.e(f's_add_u32 s{S_TMP}, s{S_TMP}, {XNF}')
    e.e(f's_add_u32 s{S_TMP2}, s{S_TMP}, 36864')
    for s in range(36):
        if s and s % 4 == 0:
            e.e(f's_add_u32 s{S_TMP}, s{S_TMP}, 4096')
            e.e(f's_add_u32 s{S_TMP2}, s{S_TMP2}, 4096')
        e.e(f'buffer_load_dwordx4 {xfrag(0, s)}, v{V_L16}, s[{S_WS}:{S_WS+3}], s{S_TMP} offen offset:{(s%4)*1024}')
        e.e(f'buffer_load_dwordx4 {xfrag(1, s)}, v{V_L16}, s[{S_WS}:{S_WS+3}], s{S_TMP2} offen offset:{(s%4)*1024}')
    e.e(f's_mul_i32 s{S_COL}, s{S_J}, 288')
    e.e(f's_lshl_b32 s{S_TMP}, s{S_E}, 5')
    e.e(f's_add_u32 s{S_COL5}, s{S_COL}, 256')
    e.e(f's_sub_u32 s{S_TMP2}, s{S_COL}, 32')
    e.e(f's_cmp_eq_u32 s{S_E}, 0')
    e.e(f's_cselect_b32 s{S_COL5}, s{S_COL5}, s{S_TMP2}')
    e.e(f's_add_u32 s{S_COL}, s{S_COL}, s{S_TMP}')
    e.e(f's_mul_i32 s{S_KGN}, s{S_J}, 9')
    e.e(f's_add_u32 s{S_KG5}, s{S_KGN}, 8')
    e.e(f's_cmp_eq_u32 s{S_E}, 0')
    e.e(f's_cselect_b32 s{S_KG5}, s{S_KG5}, s{S_KGN}')
    e.e(f's_add_u32 s{S_KGN}, s{S_KGN}, s{S_E}')
    e.e(f's_mul_i32 s{S_HST0}, s{S_T0}, {288*1024}')
    e.e(f's_add_u32 s{S_HST0}, s{S_HST0}, {HF}')
    e.e(f's_add_u32 s{S_HST1}, s{S_HST0}, {288*1024}')
    e.e(f'v_mov_b32 v{V_RD0}, v{V_BA}')
    e.e(f'v_mov_b32 v{V_RD1}, v{V_BB}')
    dmaB = []
    for i in range(36):
        if i == 0:
            dmaB.append(f's_lshl_b32 s{S_TMP}, s{S_W}, 8')
            dmaB.append(f's_add_u32 m0, s{S_TMP}, {MAT1}')
            dmaB.append(f's_mul_i32 s{S_DOFF}, s{S_W}, {4*3456}')
        else:
            dmaB.append('s_add_u32 m0, m0, 1024')
            dmaB.append(f's_add_u32 s{S_DOFF}, s{S_DOFF}, {16*3456}')
        dmaB.append(f'buffer_load_dword v{V_DB}, s[{S_WQ}:{S_WQ+3}], s{S_DOFF} offen lds')
    e.wait_tag('A')
    e.e('s_barrier')
    P.stamp('A ready')
    for r in reads(V_RD0, 0) + reads(V_RD0, 1): e.e(r)
    e.e(f's_lshl_b32 s{S_DM0}, s{S_W}, 10')
    e.e(f's_add_u32 s{S_DM0}, s{S_DM0}, {BUFSZ}')
    gB = []
    cur = []
    for x in dmaB:
        cur.append(x)
        if x.startswith('buffer_load'): gB.append(cur); cur = []
    d1 = dma_gu()
    tile(e, 'A', ACC[0], V_RD0, V_RD1, True, [], first_gap=1, nvm_wait=0, dma=gB, dma_start=0, dma_stride=1)
    P.stamp('tileA done')
    f = [f'v_add_u32 v{V_RD0}, {BUFSZ}, v{V_BG0}'] + epi_a(ACC[0])
    tile(e, 'B', ACC[1], V_RD1, V_RD0, True, f, nvm_wait='dma', dma=d1, dma_start=0, dma_stride=3)
    P.stamp('tileB done')
    for x in [f'v_add_u32 v{V_RD1}, {BUFSZ}, v{V_BG1}',
         f's_sub_u32 s{S_DM0}, s{S_DM0}, {BUFSZ}',
         f's_add_u32 s{S_COL}, s{S_COL}, 64']: e.e(x)
    d = dma_gu()
    tile(e, 'G', ACC[0], V_RD0, V_RD1, False, epi_b(ACC[1]), dma=d[:12], dma_start=0, dma_stride=6)
    P.stamp('U1c0 done')
    e.e(f's_mov_b32 s{S_KG}, s{S_KGN}')
    e.e(f's_mov_b32 s{S_U}, 1')
    e.e(f's_mov_b32 s{S_BUF}, {BUFSZ}')
    e.label(f'{name}_loop')
    st0 = e.state()
    m0 = e.mark()
    pre = [f's_xor_b32 s{S_BUF}, s{S_BUF}, {BUFSZ}',
           f's_cmp_eq_u32 s{S_U}, 4',
           f's_cselect_b32 s{S_TMP2}, s{S_E}, 0',
           f's_lshl_b32 s{S_TMP2}, s{S_TMP2}, 5',
           f'v_xor_b32 v{V_RD0}, s{S_TMP2}, v{V_BG0}',
           f'v_add_u32 v{V_RD0}, s{S_BUF}, v{V_RD0}']
    f = pre + epi_gu(ACC[0])
    P.stamp('loop top')
    tile(e, 'G', ACC[1], V_RD1, V_RD0, True, f, nvm_wait='dma', dma=d[12:], dma_start=0, dma_stride=6)
    P.stamp('loop mid')
    for x in [f's_add_u32 s{S_KG}, s{S_KG}, 1',
         f'v_add_u32 v{V_RD1}, s{S_BUF}, v{V_BG1}',
         f's_xor_b32 s{S_TMP}, s{S_BUF}, {BUFSZ}',
         f's_lshl_b32 s{S_DM0}, s{S_W}, 10',
         f's_add_u32 s{S_DM0}, s{S_DM0}, s{S_TMP}',
         f's_add_u32 s{S_COL}, s{S_COL}, 64',
         f's_cmp_eq_u32 s{S_U}, 3',
         f's_cselect_b32 s{S_COL}, s{S_COL5}, s{S_COL}',
         f's_cmp_eq_u32 s{S_U}, 4',
         f's_cselect_b32 s{S_COL}, 0x40000000, s{S_COL}']: e.e(x)
    f = epi_gu(ACC[1]) + \
        [f's_add_u32 s{S_KG}, s{S_KG}, 1',
         f's_cmp_eq_u32 s{S_U}, 4',
         f's_cselect_b32 s{S_KG}, s{S_KG5}, s{S_KG}']
    tile(e, 'G', ACC[0], V_RD0, V_RD1, False, f, dma=d[:12], dma_start=0, dma_stride=6)
    P.stamp('loop bot')
    e.e(f's_add_u32 s{S_U}, s{S_U}, 1')
    e.e(f's_cmp_le_u32 s{S_U}, 4')
    e.e(f's_cbranch_scc1 {name}_loop')
    bad = e.check_loop(m0)
    assert not bad, bad
    st1 = e.state()
    assert [a for a, b in st0[0]] == [a for a, b in st1[0]], (st0[0], st1[0])
    P.stamp('loop done')
    for x in epi_gu(ACC[0]): e.e(x)
    P.stamp('tail issued')
    if prof: e.e('s_waitcnt vmcnt(0)')
    P.stamp('stores done'); P.stamp('rend', real=True)
    P.dump(S_WS, S_W)
    e.label(f'{name}_end')
    e.e('s_endpgm')
    print(f'p1: {len(e.out)} lines, nops {e.nops}, waits {e.waits}')
    return e.text(), descriptor(name, 256, 256), dict(name=name, grid=256, block=256, lds=2 * BUFSZ, prof=P.names)

if __name__ == '__main__':
    t, d, i = gen_p1()
    open('p1.s', 'w').write(t)
```

```python
from kcommon import *

S_WS = 12
S_QB, S_J, S_W, S_T0 = 16, 17, 18, 19
S_A, S_B, S_C = 20, 21, 22
S_TRIP = 23
S_M60 = 24
S_WQ, S_KH, S_KB, S_VB, S_XB = 25, 26, 27, 28, 29
L_KM, L_KX, L_V = 0, 65536, 73728
LDS_SZ = 163840
MARGIN = 60.0
V_L16, V_KA, V_KXA, V_VA = 2, 3, 4, 5
V_M = 6
V_T0 = 8
QM = [32, 36]; QE = [40, 44]
KM = [48, 52]; KE = [56, 60]
VFR = [[64, 68], [72, 76]]
PP = [80, 88]
OO = [96, 112]
SS = [[128, 144], [160, 176]]

def mf(d, a, b, c):
    cs = '0' if c is None else f'v[{c}:{c+15}]'
    return f'v_mfma_f32_32x32x16_bf16 v[{d}:{d+15}], v[{a}:{a+3}], v[{b}:{b+3}], {cs}'

def qk(buf_s, kb, t):
    d = SS[buf_s][t]
    return [mf(d, KM[kb], QM[t], None), mf(d, KE[kb], QE[t], d)]

def kreads(kb, off_i):
    return [f'ds_read_b128 v[{KM[kb]}:{KM[kb]+3}], v{V_KA} offset:{off_i*1024}',
            f'ds_read_b32 v{KE[kb]}, v{V_KXA} offset:{off_i*128}']
def vreads(vb, off_i):
    return [f'ds_read_b128 v[{VFR[vb][0]}:{VFR[vb][0]+3}], v{V_VA} offset:{off_i*1280}',
            f'ds_read_b128 v[{VFR[vb][1]}:{VFR[vb][1]+3}], v{V_VA} offset:{off_i*1280+640}']

EXP = set()
UNROLL = 13
def iteration(e, b, off, first=False, extra=()):
    valu = []
    for t in range(2):
        for g in range(2):
            S = SS[b][t] + 8 * g
            valu += [f'v_exp_f32 v{S+r}, v{S+r}' for r in range(8)]
            valu += [f'v_cvt_pk_bf16_f32 v{PP[t]+4*g+r}, v{S+2*r}, v{S+2*r+1}' for r in range(4)]
    q0 = qk(b ^ 1, b ^ 1, 0); q1 = qk(b ^ 1, b ^ 1, 1)
    pv = lambda t, g, vb: mf(OO[t], VFR[vb][g], PP[t] + 4 * g, OO[t])
    ins = {2: [] if first else [pv(1, 1, b ^ 1)], 8: [q0[0]], 14: [q0[1]], 20: [pv(0, 0, b)], 26: [q1[0]], 32: [pv(0, 1, b)], 38: [q1[1]], 44: [pv(1, 0, b)]}
    kr = kreads(b, off + 2); vr = vreads(b ^ 1, off + 1)
    lds = {4: [vr[0]], 10: [vr[1]], 40: [kr[0]], 42: [kr[1]]}
    if 'nolds' in EXP: lds = {}
    if 'nomfma' in EXP: ins = {}
    if 'noqkext' in EXP: ins.pop(14); ins.pop(38)
    if 'noexp' in EXP: valu = [v.replace('v_exp_f32', 'v_mov_b32') for v in valu]
    if 'nopv' in EXP:
        for k in (2, 20, 32, 44): ins[k] = []
    if 'nocvt' in EXP: valu = [v for v in valu if 'cvt' not in v]
    extra = list(extra)
    xpos = [6, 16, 24, 30, 36, 46]
    for i, v in enumerate(valu):
        for x in ins.get(i, []): e.e(x)
        for x in lds.get(i, []): e.e(x)
        if extra and i in xpos:
            for x in extra.pop(0): e.e(x)
        e.e(v)
    assert not extra

def gen_attn(name='attn_kernel', prof=False):
    e = Emitter()
    header(e, name)
    P = Prof(e, prof)
    P.stamp('start'); P.stamp('rstart', real=True)
    e.e('s_cmp_ge_u32 s2, 256')
    e.e(f's_cbranch_scc1 {name}_end')
    load_ptr(e, 4, 'ws')
    e.e('v_lshrrev_b32 v1, 6, v0')
    e.e('v_and_b32 v0, 63, v0')
    e.e(f'v_readfirstlane_b32 s{S_W}, v1')
    e.e(f's_lshr_b32 s{S_QB}, s2, 5')
    e.e(f's_and_b32 s{S_A}, s2, 7')
    e.e(f's_lshl_b32 s{S_A}, s{S_A}, 2')
    e.e(f's_bfe_u32 s{S_B}, s2, 0x20003')
    e.e(f's_add_u32 s{S_J}, s{S_A}, s{S_B}')
    e.e(f's_and_b32 s{S_WQ}, s{S_W}, 3')
    e.e(f's_lshr_b32 s{S_KH}, s{S_W}, 2')
    e.e(f's_lshl_b32 s{S_T0}, s{S_QB}, 3')
    e.e(f's_lshl_b32 s{S_A}, s{S_WQ}, 1')
    e.e(f's_add_u32 s{S_T0}, s{S_T0}, s{S_A}')
    e.e(f'v_lshlrev_b32 v{V_L16}, 4, v0')
    e.wait_lgkm0()
    make_srd(e, S_WS, 4, WS_USED)
    srd = f's[{S_WS}:{S_WS+3}]'
    e.e(f's_lshl_b32 s{S_A}, s{S_J}, 16')
    e.e(f's_add_u32 s{S_A}, s{S_A}, {KF}')
    e.e(f's_lshl_b32 s{S_B}, s{S_J}, 13')
    e.e(f's_add_u32 s{S_B}, s{S_B}, {KX}')
    e.e(f's_mul_i32 s{S_C}, s{S_J}, {VF_HEAD}')
    e.e(f's_add_u32 s{S_C}, s{S_C}, {VF}')
    def dma_grp(base_s, ldsbase, idx_expr):
        return idx_expr + [f's_lshl_b32 s30, s31, 10', f's_add_u32 m0, s30, {ldsbase}', f's_add_u32 s30, s30, s{base_s}',
                           f'buffer_load_dwordx4 v{V_L16}, {srd}, s30 offen lds']
    e.e(f's_lshl_b32 s{S_KB}, s{S_KH}, 5'); e.e(f's_add_u32 s{S_KB}, s{S_KB}, s{S_WQ}')
    e.e(f's_mul_i32 s{S_VB}, s{S_KH}, 40'); e.e(f's_add_u32 s{S_VB}, s{S_VB}, s{S_WQ}')
    e.e(f's_lshl_b32 s{S_XB}, s{S_KH}, 2')
    first = [dma_grp(S_A, L_KM, [f's_mov_b32 s31, s{S_KB}']),
             dma_grp(S_C, L_V, [f's_mov_b32 s31, s{S_VB}']),
             dma_grp(S_A, L_KM, [f's_add_u32 s31, s{S_KB}, 4']),
             dma_grp(S_C, L_V, [f's_add_u32 s31, s{S_VB}, 4'])]
    for g in first:
        for x in g: e.e(x)
    e.e(f's_add_u32 s31, s{S_VB}, 8')
    e.e(f's_cmp_lt_u32 s{S_WQ}, 2')
    e.e(f's_cselect_b32 s32, s{S_C}, s{S_B}')
    e.e(f's_cselect_b32 s33, {L_V - L_KX}, 0')
    e.e(f's_cselect_b32 s31, s31, s{S_XB}')
    e.e(f's_lshl_b32 s30, s31, 10')
    e.e(f's_add_u32 s33, s33, {L_KX}')
    e.e(f's_add_u32 m0, s30, s33')
    e.e(f's_add_u32 s30, s30, s32')
    e.e(f'buffer_load_dwordx4 v{V_L16}, {srd}, s30 offen lds')
    e.e(f's_lshl_b32 s31, s{S_J}, 6')
    e.e(f's_add_u32 s31, s31, s{S_T0}')
    e.e(f's_lshl_b32 s31, s31, 10')
    e.e(f's_add_u32 s31, s31, {QF}')
    e.e(f'buffer_load_dwordx4 v[{QM[0]}:{QM[0]+3}], v{V_L16}, {srd}, s31 offen')
    e.e(f'buffer_load_dwordx4 v[{QM[1]}:{QM[1]+3}], v{V_L16}, {srd}, s31 offen offset:1024')
    e.e('v_lshlrev_b32 v8, 2, v0')
    e.e('v_mov_b32 v9, 0x7ff00000')
    e.e('v_cmp_gt_u32 vcc, 32, v0')
    e.e('v_cndmask_b32 v8, v9, v8, vcc')
    e.e(f's_lshl_b32 s31, s{S_J}, 13')
    e.e(f's_lshl_b32 s32, s{S_T0}, 7')
    e.e(f's_add_u32 s31, s31, s32')
    e.e(f's_add_u32 s31, s31, {QX}')
    e.e(f'buffer_load_dword v{QE[0]}, v8, {srd}, s31 offen')
    e.e(f'buffer_load_dword v{QE[1]}, v8, {srd}, s31 offen offset:128')
    rest = []
    rest.append(dma_grp(S_B, L_KX, [f's_add_u32 s31, s{S_WQ}, 1', 's_min_u32 s31, s31, 3', f's_add_u32 s31, s31, s{S_XB}']))
    for i in range(8):
        if i < 6: rest.append(dma_grp(S_A, L_KM, [f's_add_u32 s31, s{S_KB}, {8+4*i}']))
        if i < 7: rest.append(dma_grp(S_C, L_V, [f's_add_u32 s31, s{S_VB}, {10+4*i}']))
        else:
            rest.append(dma_grp(S_C, L_V, [f's_and_b32 s31, s{S_WQ}, 1', f's_mul_i32 s33, s{S_KH}, 40', 's_add_u32 s31, s31, s33', 's_add_u32 s31, s31, 38']))
    assert len(rest) == 15
    for t in range(2):
        for r in (1, 2, 3): e.e(f'v_mov_b32 v{QE[t]+r}, 0')
        e.e(f'v_mov_b32 v{KE[t]+1}, 0x3f80')
        e.e(f'v_mov_b32 v{KE[t]+2}, 0'); e.e(f'v_mov_b32 v{KE[t]+3}, 0')
    e.e(f'v_mov_b32 v{V_KA}, v{V_L16}')
    e.e('v_and_b32 v8, 31, v0')
    e.e(f'v_lshlrev_b32 v{V_KXA}, 2, v8')
    e.e(f'v_add_u32 v{V_KXA}, {L_KX}, v{V_KXA}')
    e.e('v_min_u32 v9, 19, v8')
    e.e('v_lshrrev_b32 v10, 5, v0')
    e.e('v_mul_u32_u24 v10, 320, v10')
    e.e(f'v_lshl_add_u32 v{V_VA}, v9, 4, v10')
    e.e(f'v_add_u32 v{V_VA}, {L_V}, v{V_VA}')
    for t in range(2):
        for r in range(16): e.e(f'v_mov_b32 v{OO[t]+r}, 0')
    e.wait_vm0()
    e.e('s_barrier')
    P.stamp('c0 ready')
    for x in kreads(0, 0) + kreads(1, 1): e.e(x)
    for kt in range(2):
        for t in range(2):
            for x in qk(kt, kt, t): e.e(x)
    e.e(f's_lshl_b32 s30, s{S_KH}, 15'); e.e(f'v_add_u32 v{V_KA}, s30, v{V_KA}')
    e.e(f's_lshl_b32 s30, s{S_KH}, 12'); e.e(f'v_add_u32 v{V_KXA}, s30, v{V_KXA}')
    e.e(f's_mul_i32 s30, s{S_KH}, {32*1280}'); e.e(f'v_add_u32 v{V_VA}, s30, v{V_VA}')
    for x in kreads(0, 0) + kreads(1, 1) + vreads(0, 0): e.e(x)
    for t in range(2):
        m = V_T0 + t
        e.e(f'v_max3_f32 v{m}, v{SS[0][t]}, v{SS[0][t]+1}, v{SS[0][t]+2}')
        regs = [SS[0][t] + r for r in range(3, 16)] + [SS[1][t] + r for r in range(16)]
        while len(regs) >= 2:
            e.e(f'v_max3_f32 v{m}, v{m}, v{regs[0]}, v{regs[1]}'); regs = regs[2:]
        if regs: e.e(f'v_max_f32 v{m}, v{m}, v{regs[0]}')
    e.e(f's_mov_b32 s{S_M60}, {fh(MARGIN)}')
    for t in range(2):
        m = V_T0 + t; x = V_T0 + 2 + t
        e.e(f'v_mov_b32 v{x}, v{m}')
        e.e(f'v_permlane32_swap_b32 v{m}, v{x}')
        e.e(f'v_max_f32 v{m}, v{m}, v{x}')
        e.e(f'v_add_f32 v{m}, s{S_M60}, v{m}')
        e.e(f'v_cvt_pk_bf16_f32 v{m}, -v{m}, 0')
        e.e(f'v_lshlrev_b32 v{V_M+t}, 16, v{m}')
        e.e(f'v_xor_b32 v{V_M+t}, 0x80000000, v{V_M+t}')
        e.e('v_cmp_gt_u32 vcc, 32, v0')
        e.e(f'v_cndmask_b32 v{QE[t]+1}, 0, v{m}, vcc')
    for t in range(2):
        for x in qk(0, 0, t): e.e(x)
    P.stamp('max done')
    def body(first, extra=()):
        extra = list(extra)
        iteration(e, 0, 0, first=first, extra=extra[:len(extra)//2])
        iteration(e, 1, 1, extra=extra[len(extra)//2:])
        e.e(f'v_add_u32 v{V_KA}, 2048, v{V_KA}')
        e.e(f'v_add_u32 v{V_KXA}, 256, v{V_KXA}')
        e.e(f'v_add_u32 v{V_VA}, 2560, v{V_VA}')
    body(True, rest[:8])
    body(False, rest[8:] + [['s_nop 0']])
    body(False)
    P.stamp('pre sync')
    e.wait_vm0()
    e.e('s_barrier')
    P.stamp('post sync')
    NB = 13
    per = UNROLL
    assert NB % per == 0 or per >= NB
    if per >= NB:
        for _ in range(NB): body(False)
    else:
        e.e(f's_mov_b32 s{S_TRIP}, 0')
        e.label(f'{name}_loop')
        st0 = e.state(); m0 = e.mark()
        for _ in range(per): body(False)
        e.e(f's_add_u32 s{S_TRIP}, s{S_TRIP}, 1')
        e.e(f's_cmp_lt_u32 s{S_TRIP}, {NB // per}')
        e.e(f's_cbranch_scc1 {name}_loop')
        bad = e.check_loop(m0); assert not bad, bad
        st1 = e.state()
        assert [a for a, b in st0[0]] == [a for a, b in st1[0]], (st0[0], st1[0])
    e.vm_q = []
    P.stamp('loop done')
    e.e(mf(OO[1], VFR[1][1], PP[1] + 4, OO[1]))
    e.e(f's_mov_b32 s30, {fh(2.0**119)}')
    for t in range(2):
        O = OO[t]; mx = V_T0 + 4 + t
        e.e(f'v_max3_f32 v{mx}, |v{O}|, |v{O+1}|, |v{O+2}|')
        for r in range(3, 9, 2): e.e(f'v_max3_f32 v{mx}, v{mx}, |v{O+r}|, |v{O+r+1}|')
        e.e(f'v_max3_f32 v{mx}, v{mx}, |v{O+9}|, |v{O+10}|')
    e.e(f'v_cmp_nge_f32 vcc, s30, v{V_T0+4}')
    e.e(f's_mov_b64 s[32:33], vcc')
    e.e(f'v_cmp_nge_f32 vcc, s30, v{V_T0+5}')
    e.e(f's_or_b64 vcc, vcc, s[32:33]')
    if not EXP: e.e(f's_cbranch_vccnz {name}_slow')
    e.label(f'{name}_comb')
    P.stamp('checked')
    e.wait_lgkm0()
    e.e('s_barrier')
    e.e(f'v_lshlrev_b32 v{V_T0}, 2, v0')
    e.e(f's_mul_i32 s30, s{S_WQ}, {2*12*256}')
    e.e(f'v_add_u32 v{V_T0}, s30, v{V_T0}')
    e.e(f's_cmp_eq_u32 s{S_KH}, 0')
    e.e(f's_cbranch_scc1 {name}_lo')
    for t in range(2):
        for r in range(11): e.e(f'ds_write_b32 v{V_T0}, v{OO[t]+r} offset:{(t*12+r)*256}')
        e.e(f'ds_write_b32 v{V_T0}, v{V_M+t} offset:{(t*12+11)*256}')
    e.wait_lgkm0()
    e.e('s_barrier')
    if prof:
        n0 = P.n
        P.stamp('x1'); P.stamp('x2'); P.stamp('rx', real=True)
        P.dump(S_WS, S_W, slot=1)
        P.n = n0; P.names = P.names[:n0]
    e.e('s_endpgm')
    e.label(f'{name}_lo')
    e.lds_q = []
    e.e('s_barrier')
    X = 128
    for t in range(2):
        for r in range(12): e.e(f'ds_read_b32 v{X+16*t+r}, v{V_T0} offset:{(t*12+r)*256}')
    for t in range(2):
        O = OO[t]; Y = X + 16 * t; M = V_T0 + 2; F1 = V_T0 + 3; F2 = V_T0 + 4
        e.e(f'v_max_f32 v{M}, v{V_M+t}, v{Y+11}')
        e.e(f'v_sub_f32 v{F1}, v{V_M+t}, v{M}')
        e.e(f'v_sub_f32 v{F2}, v{Y+11}, v{M}')
        e.e(f'v_exp_f32 v{F1}, v{F1}')
        e.e(f'v_exp_f32 v{F2}, v{F2}')
        for r in range(11): e.e(f'v_mul_f32 v{O+r}, v{O+r}, v{F1}')
        for r in range(11): e.e(f'v_fmac_f32 v{O+r}, v{Y+r}, v{F2}')
        l = V_T0 + 5; x = V_T0 + 6
        e.e(f'v_mov_b32 v{l}, v{O+10}')
        e.e(f'v_mov_b32 v{x}, v{O+10}')
        e.e(f'v_permlane32_swap_b32 v{l}, v{x}')
        e.e(f'v_rcp_f32 v{l}, v{l}')
        for r in range(10): e.e(f'v_mul_f32 v{O+r}, v{O+r}, v{l}')
        pk = V_T0 + 8 + 8 * t
        for r in range(5): e.e(f'v_cvt_pk_bf16_f32 v{pk+r}, v{O+2*r}, v{O+2*r+1}')
        e.e(f's_add_u32 s31, s{S_T0}, {t}')
        e.e('s_mul_i32 s31, s31, 36864')
        e.e(f's_add_u32 s31, s31, {OF}')
        e.e(f's_lshl_b32 s32, s{S_J}, 10')
        e.e('s_add_u32 s32, s32, s31')
        e.e(f'buffer_store_dwordx4 v[{pk}:{pk+3}], v{V_L16}, {srd}, s32 offen')
        e.e(f's_lshr_b32 s32, s{S_J}, 3')
        e.e('s_add_u32 s32, s32, 32')
        e.e('s_lshl_b32 s32, s32, 10')
        e.e('s_add_u32 s31, s31, s32')
        e.e(f's_bfe_u32 s32, s{S_J}, 0x10002')
        e.e('s_lshl_b32 s32, s32, 9')
        e.e('s_add_u32 s31, s31, s32')
        e.e(f's_and_b32 s32, s{S_J}, 3')
        e.e('s_lshl_b32 s32, s32, 2')
        e.e('s_add_u32 s31, s31, s32')
        if t == 0:
            e.e(f'v_mov_b32 v{V_T0+7}, 0x7ff00000')
            e.e('v_cmp_gt_u32 vcc, 32, v0')
            e.e(f'v_cndmask_b32 v{V_T0+7}, v{V_T0+7}, v{V_L16}, vcc')
        e.e(f'buffer_store_dword v{pk+4}, v{V_T0+7}, {srd}, s31 offen')
    P.stamp('stores issued')
    if prof: e.e('s_waitcnt vmcnt(0)')
    P.stamp('done'); P.stamp('rend', real=True)
    P.dump(S_WS, S_W, slot=1)
    e.e('s_endpgm')
    e.label(f'{name}_slow')
    e.lds_q = []; e.vm_q = []
    e.e('s_waitcnt vmcnt(0) lgkmcnt(0)')
    e.e('s_nop 15')
    MX = [V_T0 + 8, V_T0 + 9]; AL = V_T0 + 10; TM = V_T0 + 11; TX = V_T0 + 12
    for t in range(2):
        e.e(f'v_mov_b32 v{QE[t]+1}, 0')
        e.e(f'v_mov_b32 v{MX[t]}, 0xff7fffff')
        for r in range(16): e.e(f'v_mov_b32 v{OO[t]+r}, 0')
    e.e(f'v_subrev_u32 v{V_KA}, {16*2048}, v{V_KA}')
    e.e(f'v_subrev_u32 v{V_KXA}, {16*256}, v{V_KXA}')
    e.e(f'v_subrev_u32 v{V_VA}, {16*2560}, v{V_VA}')
    e.e(f's_mov_b32 s{S_TRIP}, 0')
    e.label(f'{name}_slowloop')
    ms = e.mark()
    for x in kreads(0, 0) + vreads(0, 0): e.e(x)
    for t in range(2):
        for x in qk(0, 0, t): e.e(x)
    for t in range(2):
        S = SS[0][t]
        e.e(f'v_max3_f32 v{TM}, v{S}, v{S+1}, v{S+2}')
        for r in range(3, 15, 2): e.e(f'v_max3_f32 v{TM}, v{TM}, v{S+r}, v{S+r+1}')
        e.e(f'v_max_f32 v{TM}, v{TM}, v{S+15}')
        e.e(f'v_mov_b32 v{TX}, v{TM}')
        e.e(f'v_permlane32_swap_b32 v{TM}, v{TX}')
        e.e(f'v_max3_f32 v{TM}, v{TM}, v{TX}, v{MX[t]}')
        e.e(f'v_sub_f32 v{AL}, v{MX[t]}, v{TM}')
        e.e(f'v_exp_f32 v{AL}, v{AL}')
        e.e(f'v_mov_b32 v{MX[t]}, v{TM}')
        for r in range(16): e.e(f'v_sub_f32 v{S+r}, v{S+r}, v{TM}')
        for r in range(16): e.e(f'v_exp_f32 v{S+r}, v{S+r}')
        for r in range(16): e.e(f'v_mul_f32 v{OO[t]+r}, v{OO[t]+r}, v{AL}')
        for r in range(8): e.e(f'v_cvt_pk_bf16_f32 v{PP[t]+r}, v{S+2*r}, v{S+2*r+1}')
        for g in range(2): e.e(mf(OO[t], VFR[0][g], PP[t] + 4 * g, OO[t]))
    e.e(f'v_add_u32 v{V_KA}, 1024, v{V_KA}')
    e.e(f'v_add_u32 v{V_KXA}, 128, v{V_KXA}')
    e.e(f'v_add_u32 v{V_VA}, 1280, v{V_VA}')
    e.e('s_nop 15')
    e.e(f's_add_u32 s{S_TRIP}, s{S_TRIP}, 1')
    e.e(f's_cmp_lt_u32 s{S_TRIP}, 32')
    e.e(f's_cbranch_scc1 {name}_slowloop')
    bad = e.check_loop(ms); assert not bad, bad
    e.e('s_nop 15')
    for t in range(2): e.e(f'v_mov_b32 v{V_M+t}, v{MX[t]}')
    e.e(f's_branch {name}_comb')
    e.label(f'{name}_end')
    e.e('s_endpgm')
    print(f'attn: {len(e.out)} lines, nops {e.nops}, waits {e.waits}')
    return e.text(), descriptor(name, 192), dict(name=name, grid=256, block=512, lds=LDS_SZ, prof=P.names)

if __name__ == '__main__':
    t, d, i = gen_attn()
    open('attn.s', 'w').write(t)
```

```python
from kcommon import *

S_WD, S_WO, S_WS = 12, 16, 20
S_C, S_MT, S_CT, S_W, S_T = 24, 25, 26, 27, 28
S_HB = 29
S_WOFF = 30
S_DM = 31
S_U = 32
S_A, S_B = 33, 34
S_RB = 35
S_NU = 36
V_L16 = 2
V_DO = 4
V_DX = 14
V_RD = 24
V_RB = 26
AF = 28
NSLOT, DIST = 6, 4
BF = [52, 68]
ACC = 96
UNIT = 36864
NRING = 4

def areads(vrd, ks, tile, slot):
    b = AF + 4 * slot
    o = ks * 9216 + tile * 64
    return [f'ds_read_b64_tr_b16 v[{b}:{b+1}], v{vrd} offset:{o}',
            f'ds_read_b64_tr_b16 v[{b+2}:{b+3}], v{vrd} offset:{o + 8*576}']

def gen_down(name='down_kernel', prof=False):
    e = Emitter()
    header(e, name)
    P = Prof(e, prof)
    P.stamp('start'); P.stamp('rstart', real=True)
    e.e('s_cmp_ge_u32 s2, 256')
    e.e(f's_cbranch_scc1 {name}_end')
    load_ptr(e, 4, 'wd'); load_ptr(e, 6, 'wo'); load_ptr(e, 8, 'ws')
    e.e('v_lshrrev_b32 v1, 6, v0')
    e.e('v_and_b32 v0, 63, v0')
    e.e(f'v_readfirstlane_b32 s{S_W}, v1')
    e.e(f's_and_b32 s{S_C}, s2, 7')
    e.e(f's_lshr_b32 s{S_MT}, s2, 4')
    e.e(f's_bfe_u32 s{S_CT}, s2, 0x10003')
    e.e(f's_lshl_b32 s{S_T}, s{S_MT}, 2')
    e.e(f's_add_u32 s{S_T}, s{S_T}, s{S_W}')
    e.e(f'v_lshlrev_b32 v{V_L16}, 4, v0')
    e.e(f's_mul_i32 s{S_A}, s{S_CT}, 576')
    e.e(f's_mov_b32 s{S_B}, {(2**32 + 575) // 576}')
    for j in range(9):
        e.e(f'v_add_u32 v3, {j*1024}, v{V_L16}')
        e.e(f'v_mul_hi_u32 v13, v3, s{S_B}')
        e.e(f'v_mul_u32_u24 v23, 576, v13')
        e.e(f'v_sub_u32 v3, v3, v23')
        e.e(f'v_add_u32 v3, s{S_A}, v3')
        e.e(f'v_mul_u32_u24 v23, 1152, v13')
        e.e(f'v_add_u32 v{V_DO+j}, v3, v23')
        e.e(f'v_bfe_u32 v23, v13, 2, 1')
        e.e(f'v_lshlrev_b32 v23, 2, v23')
        e.e(f'v_bfe_u32 v27, v13, 1, 1')
        e.e(f'v_add_u32 v23, v23, v27')
        e.e(f'v_lshrrev_b32 v27, 3, v13')
        e.e(f'v_lshl_add_u32 v23, v27, 1, v23')
        e.e(f'v_mul_u32_u24 v23, 18, v23')
        e.e(f'v_and_b32 v27, 1, v13')
        e.e(f'v_add3_u32 v23, v23, v27, 16')
        e.e(f'v_mul_u32_u24 v23, 1152, v23')
        e.e(f'v_add_u32 v{V_DX+j}, v3, v23')
    e.e('v_lshrrev_b32 v3, 5, v0')
    e.e('v_bfe_u32 v13, v0, 2, 2')
    e.e('v_lshl_add_u32 v3, v3, 2, v13')
    e.e('v_mul_u32_u24 v3, 576, v3')
    e.e('v_bfe_u32 v13, v0, 4, 1')
    e.e('v_lshl_add_u32 v3, v13, 5, v3')
    e.e('v_and_b32 v13, 3, v0')
    e.e(f'v_lshl_add_u32 v{V_RB}, v13, 3, v3')
    e.wait_lgkm0()
    make_srd(e, S_WD, 4, 4608 * 1152)
    make_srd(e, S_WO, 6, 576 * 1152)
    make_srd(e, S_WS, 8, WS_USED)
    ws = f's[{S_WS}:{S_WS+3}]'
    e.e(f's_mul_i32 s{S_WOFF}, s{S_C}, 36')
    e.e(f's_add_u32 s{S_WOFF}, s{S_WOFF}, s{S_W}')
    e.e(f's_mul_i32 s{S_WOFF}, s{S_WOFF}, {16*1152}')
    e.e(f's_mul_i32 s{S_DM}, s{S_W}, 9216')
    def dma_unit(srd, vo):
        out = []
        for j in range(9):
            out.append([f's_add_u32 m0, s{S_DM}, {j*1024}', f'buffer_load_dwordx4 v{vo+j}, s[{srd}:{srd+3}], s{S_WOFF} offen lds'])
        return out
    def adv_dma():
        return [f's_add_u32 s{S_WOFF}, s{S_WOFF}, {4*16*1152}',
                f's_add_u32 s{S_DM}, s{S_DM}, {UNIT}',
                f's_cmp_ge_u32 s{S_DM}, {NRING*UNIT}',
                f's_cselect_b32 s{S_A}, {NRING*UNIT}, 0',
                f's_sub_u32 s{S_DM}, s{S_DM}, s{S_A}']
    e.e(f's_mul_i32 s{S_HB}, s{S_T}, {288*1024}')
    e.e(f's_mul_i32 s{S_A}, s{S_C}, {36*1024}')
    e.e(f's_add_u32 s{S_HB}, s{S_HB}, s{S_A}')
    e.e(f's_add_u32 s{S_HB}, s{S_HB}, {HF}')
    def bloads(buf):
        return [f'buffer_load_dwordx4 v[{BF[buf]+4*k}:{BF[buf]+4*k+3}], v{V_L16}, {ws}, s{S_HB} offen offset:{k*1024}' for k in range(4)]
    for g in dma_unit(S_WD, V_DO):
        for x in g: e.e(x)
    for x in bloads(0): e.e(x)
    e.e(f's_add_u32 s{S_HB}, s{S_HB}, 4096')
    for x in adv_dma(): e.e(x)
    for g in dma_unit(S_WD, V_DO):
        for x in g: e.e(x)
    for x in adv_dma(): e.e(x)
    e.e(f'v_mov_b32 v{V_RD}, v{V_RB}')
    e.e(f's_mov_b32 s{S_RB}, 0')
    e.wait(vm=13)
    e.e('s_barrier')
    P.stamp('u0 ready')
    seq = [(ks, t) for ks in range(4) for t in range(9)]
    for i in range(DIST):
        for x in areads(V_RD, seq[i][0], seq[i][1], i % NSLOT): e.e(x)

    def unit(buf, first, dma, bl, last=False, nks=4, nxt=True):
        n = nks * 9
        fl = [list(g) for g in dma]
        bl = list(bl)
        e.e(f's_add_u32 s{S_RB}, s{S_RB}, {UNIT}')
        e.e(f's_cmp_ge_u32 s{S_RB}, {NRING*UNIT}')
        e.e(f's_cselect_b32 s{S_A}, {NRING*UNIT}, 0')
        e.e(f's_sub_u32 s{S_RB}, s{S_RB}, s{S_A}')
        e.e(f'v_add_u32 v{V_RD+1}, s{S_RB}, v{V_RB}')
        for i in range(n):
            ks, t = seq[i]
            if i == n - DIST and nxt:
                k = sum(1 for d, tg in e.vm_q if tg == 'cur')
                idx = [q for q, (d, tg) in enumerate(e.vm_q) if tg == 'dma_prev']
                if idx: e.wait(vm=len(e.vm_q) - 1 - max(idx))
                e.e('s_barrier')
            j = i + DIST
            rd = []
            if j < n: rd = areads(V_RD, seq[j][0], seq[j][1], j % NSLOT)
            elif nxt: rd = areads(V_RD + 1, seq[j - n][0], seq[j - n][1], j % NSLOT)
            a = AF + 4 * (i % NSLOT); d = ACC + 16 * t; b = BF[buf] + 4 * ks
            c = '0' if (first and ks == 0) else f'v[{d}:{d+15}]'
            e.e(f'v_mfma_f32_32x32x16_bf16 v[{d}:{d+15}], v[{a}:{a+3}], v[{b}:{b+3}], {c}')
            g = None
            if fl and i % 3 == 1 and i >= 1:
                g = fl.pop(0); e.e(g[0])
            for x in rd: e.e(x)
            if g: e.e(g[1], tag='dma')
            if bl and i % 8 == 4: e.e(bl.pop(0))
        assert not fl and not bl
        e.e(f'v_mov_b32 v{V_RD}, v{V_RD+1}')
    def retag():
        e.vm_q = [(d, 'dma_prev' if t == 'dma' else t) for d, t in e.vm_q]

    retag()
    unit(0, True, dma_unit(S_WD, V_DO), bloads(1))
    e.e(f's_add_u32 s{S_HB}, s{S_HB}, 4096')
    for x in adv_dma(): e.e(x)
    P.stamp('unit0')
    e.e(f's_mov_b32 s{S_U}, 0')
    e.label(f'{name}_loop')
    st0 = e.state(); m0 = e.mark()
    for buf in (1, 0):
        retag()
        unit(buf, False, dma_unit(S_WD, V_DO), bloads(buf ^ 1))
        e.e(f's_add_u32 s{S_HB}, s{S_HB}, 4096')
        for x in adv_dma(): e.e(x)
    e.e(f's_add_u32 s{S_U}, s{S_U}, 1')
    e.e(f's_cmp_lt_u32 s{S_U}, 3')
    e.e(f's_cbranch_scc1 {name}_loop')
    bad = e.check_loop(m0); assert not bad, bad
    st1 = e.state(); assert [a for a, b in st0[0]] == [a for a, b in st1[0]]
    P.stamp('loop')
    e.e(f's_lshl_b32 s{S_WOFF}, s{S_C}, 2')
    e.e(f's_add_u32 s{S_WOFF}, s{S_WOFF}, s{S_W}')
    e.e(f's_mul_i32 s{S_WOFF}, s{S_WOFF}, {18*1152}')
    retag()
    unit(1, False, dma_unit(S_WO, V_DO), bloads(0))
    for x in adv_dma(): e.e(x)
    e.e(f's_lshr_b32 s{S_WOFF}, s{S_C}, 1')
    e.e(f's_mul_i32 s{S_WOFF}, s{S_WOFF}, {144*1152}')
    e.e(f's_mul_i32 s{S_HB}, s{S_T}, 36864')
    e.e(f's_lshl_b32 s{S_A}, s{S_C}, 12')
    e.e(f's_add_u32 s{S_HB}, s{S_HB}, s{S_A}')
    e.e(f's_add_u32 s{S_HB}, s{S_HB}, {OF}')
    retag()
    unit(0, False, dma_unit(S_WO, V_DX), bloads(1))
    e.e(f's_mul_i32 s{S_HB}, s{S_T}, 36864')
    e.e(f's_lshr_b32 s{S_A}, s{S_C}, 1')
    e.e(f's_add_u32 s{S_A}, s{S_A}, 32')
    e.e(f's_lshl_b32 s{S_A}, s{S_A}, 10')
    e.e(f's_add_u32 s{S_HB}, s{S_HB}, s{S_A}')
    e.e(f's_add_u32 s{S_HB}, s{S_HB}, {OF}')
    e.e(f's_bitcmp1_b32 s{S_C}, 0')
    e.e(f's_cselect_b32 s{S_HB}, 0x70000000, s{S_HB}')
    retag()
    unit(1, False, [], bloads(0)[:1])
    unit(0, False, [], [], nks=1, nxt=False)
    P.stamp('k done')
    e.e(f's_mul_i32 s{S_A}, s{S_C}, {PART_SPLIT}')
    e.e(f's_mul_i32 s{S_B}, s{S_T}, {18*2048}')
    e.e(f's_add_u32 s{S_A}, s{S_A}, s{S_B}')
    e.e(f's_mul_i32 s{S_B}, s{S_CT}, {9*2048}')
    e.e(f's_add_u32 s{S_A}, s{S_A}, s{S_B}')
    e.e(f's_add_u32 s{S_A}, s{S_A}, {PART}')
    for t in range(9):
        d = ACC + 16 * t; pk = 28 + 8 * (t % 4)
        for r in range(8): e.e(f'v_cvt_pk_bf16_f32 v{pk+r}, v{d+2*r}, v{d+2*r+1}')
        e.e(f'buffer_store_dwordx4 v[{pk}:{pk+3}], v{V_L16}, {ws}, s{S_A} offen')
        e.e(f'buffer_store_dwordx4 v[{pk+4}:{pk+7}], v{V_L16}, {ws}, s{S_A} offen offset:1024')
        e.e(f's_add_u32 s{S_A}, s{S_A}, 2048')
    P.stamp('stores issued')
    if prof: e.e('s_waitcnt vmcnt(0)')
    P.stamp('done'); P.stamp('rend', real=True)
    P.dump(S_WS, S_W, slot=2)
    e.label(f'{name}_end')
    e.e('s_endpgm')
    print(f'down: {len(e.out)} lines, nops {e.nops}, waits {e.waits}')
    return e.text(), descriptor(name, 256), dict(name=name, grid=256, block=256, lds=NRING * UNIT, prof=P.names)

def gen_fin(name='fin_kernel', prof=False):
    e = Emitter()
    header(e, name)
    e.e('s_cmp_ge_u32 s2, 288')
    e.e(f's_cbranch_scc1 {name}_end')
    load_ptr(e, 4, 'x'); load_ptr(e, 6, 'out'); load_ptr(e, 8, 'ws')
    e.e('v_lshrrev_b32 v1, 6, v0')
    e.e('v_and_b32 v0, 63, v0')
    e.e('v_readfirstlane_b32 s27, v1')
    e.e('s_lshl_b32 s24, s2, 2')
    e.e('s_add_u32 s24, s24, s27')
    e.e(f's_mul_hi_u32 s25, s24, {(2**32 + 17) // 18}')
    e.e('s_mul_i32 s26, s25, 18')
    e.e('s_sub_u32 s26, s24, s26')
    e.e('v_lshlrev_b32 v2, 4, v0')
    e.e('v_and_b32 v3, 31, v0')
    e.e('v_mul_u32_u24 v3, 1152, v3')
    e.e(f's_mul_i32 s28, s25, {32*1152}')
    e.e('s_lshl_b32 s29, s26, 6')
    e.e('s_add_u32 s28, s28, s29')
    e.e('v_add_u32 v3, s28, v3')
    e.e('v_lshrrev_b32 v4, 5, v0')
    e.e('v_lshl_add_u32 v5, v4, 3, v3')
    e.e('v_lshl_add_u32 v6, v4, 4, v3')
    e.wait_lgkm0()
    make_srd(e, 12, 4, 2048 * 1152)
    make_srd(e, 16, 6, 2048 * 1152)
    make_srd(e, 20, 8, WS_USED)
    e.e('s_lshl_b32 s30, s24, 11')
    e.e(f's_add_u32 s30, s30, {PART}')
    Pp = 32
    for c in range(8):
        e.e(f'buffer_load_dwordx4 v[{Pp+8*c}:{Pp+8*c+3}], v2, s[20:23], s30 offen')
        e.e(f'buffer_load_dwordx4 v[{Pp+8*c+4}:{Pp+8*c+7}], v2, s[20:23], s30 offen offset:1024')
        if c == 0:
            for g in range(4): e.e(f'buffer_load_dwordx2 v[{8+2*g}:{9+2*g}], v5, s[12:15], 0 offen offset:{16*g}')
        e.e(f's_add_u32 s30, s30, {PART_SPLIT}')
    A = 100
    e.e('s_mov_b32 s31, 0x3f80')
    e.e('s_mov_b32 s33, 0x3f800000')
    for k in range(8):
        e.e(f'v_lshlrev_b32 v{A+2*k}, 16, v{8+k}')
        e.e(f'v_and_b32 v{A+2*k+1}, 0xffff0000, v{8+k}')
    for c in range(8):
        for k in range(8):
            e.e(f'v_lshlrev_b32 v{A+16+2*k}, 16, v{Pp+8*c+k}')
            e.e(f'v_and_b32 v{A+16+2*k+1}, 0xffff0000, v{Pp+8*c+k}')
        for k in range(16): e.e(f'v_add_f32 v{A+k}, v{A+k}, v{A+16+k}')
    for k in range(8): e.e(f'v_cvt_pk_bf16_f32 v{8+k}, v{A+2*k}, v{A+2*k+1}')
    e.e('v_permlane32_swap_b32 v8, v10'); e.e('v_permlane32_swap_b32 v9, v11')
    e.e('v_permlane32_swap_b32 v12, v14'); e.e('v_permlane32_swap_b32 v13, v15')
    e.e('buffer_store_dwordx4 v[8:11], v6, s[16:19], 0 offen')
    e.e('buffer_store_dwordx4 v[12:15], v6, s[16:19], 0 offen offset:32')
    e.label(f'{name}_end')
    e.e('s_endpgm')
    return e.text(), descriptor(name, 136), dict(name=name, grid=288, block=256, lds=0)

if __name__ == '__main__':
    t, d, i = gen_down()
    open('down.s', 'w').write(t)
    gen_fin()
```

```python
import struct
from gen import *
from layout import *

def f2u(x): return struct.unpack('<I', struct.pack('<f', x))[0]
def fh(x): return hex(f2u(x))

ARG = dict(x=0, wqkv=8, wo=16, bx=24, wg=32, wu=40, wd=48, out=56, dbg=64, ws=72)

def header(e, name):
    e.raw(f'.globl {name}')
    e.raw('.p2align 8')
    e.raw(f'.type {name},@function')
    e.label(name)

def descriptor(name, nv, nag=0, ns=96):
    acc = ((nv + 3) // 4) * 4
    tot = acc + nag if nag else nv
    return f"""
.p2align 6
.amdhsa_kernel {name}
  .amdhsa_next_free_vgpr {tot}
  .amdhsa_next_free_sgpr {ns}
  .amdhsa_accum_offset {acc}
  .amdhsa_group_segment_fixed_size 0
  .amdhsa_kernarg_size 80
  .amdhsa_user_sgpr_count 2
  .amdhsa_user_sgpr_kernarg_segment_ptr 1
  .amdhsa_system_sgpr_workgroup_id_x 1
  .amdhsa_float_denorm_mode_32 3
  .amdhsa_float_denorm_mode_16_64 3
  .amdhsa_ieee_mode 0
  .amdhsa_dx10_clamp 0
.end_amdhsa_kernel
"""

def load_ptr(e, sdst, arg):
    e.e(f's_load_dwordx2 s[{sdst}:{sdst+1}], s[0:1], {ARG[arg]}')

def make_srd(e, srd, sptr, nbytes):
    e.e(f's_mov_b32 s{srd}, s{sptr}')
    e.e(f's_and_b32 s{srd+1}, s{sptr+1}, 0xffff')
    e.e(f's_mov_b32 s{srd+2}, {nbytes}')
    e.e(f's_mov_b32 s{srd+3}, 0x00020000')

PROF_OFF = 0x6000000
class Prof:
    def __init__(self, e, on, first=50):
        self.e = e; self.on = on; self.n = 0; self.first = first; self.names = []
    def stamp(self, name, real=False):
        if not self.on: return
        r = self.first + 2 * self.n
        assert r + 1 < 96
        self.e.out.append(Ins(f's_memrealtime s[{r}:{r+1}]' if real else f's_memtime s[{r}:{r+1}]'))
        self.names.append(name); self.n += 1
    def dump(self, srd_ptr_lo, wave_sgpr, slot=0):
        if not self.on: return
        e = self.e
        e.e('s_waitcnt vmcnt(0) lgkmcnt(0)')
        e.e(f's_mov_b32 s4, s{srd_ptr_lo}')
        e.e(f's_and_b32 s5, s{srd_ptr_lo+1}, 0xffff')
        e.e('s_mov_b32 s6, 0x10000000')
        e.e('s_mov_b32 s7, 0x00020000')
        e.e('s_lshl_b32 s8, s2, 3')
        e.e(f's_add_u32 s8, s8, s{wave_sgpr}')
        e.e('s_lshl_b32 s8, s8, 7')
        e.e(f's_add_u32 s8, s8, {PROF_OFF + slot * 0x100000}')
        e.e('s_mov_b64 exec, 1')
        e.e('v_mov_b32 v1, 0')
        for k in range(self.n):
            e.e(f'v_mov_b32 v2, s{self.first + 2*k}')
            e.e(f'buffer_store_dword v2, v1, s[4:7], s8 offen offset:{4*k}')
        e.e('s_waitcnt vmcnt(0)')
```

```python
S, D, H, DH, F = 2048, 576, 32, 18, 4608
XNF = 0
XNF_SZ = 64 * 36 * 1024
QF = XNF + XNF_SZ
QF_SZ = 32 * 64 * 1024
KF = QF + QF_SZ
KF_SZ = QF_SZ
QX = KF + KF_SZ
QX_SZ = 32 * 2048 * 4
KX = QX + QX_SZ
KX_SZ = QX_SZ
VF = KX + KX_SZ
VF_G = 640
VF_HEAD = 128 * VF_G
VF_SZ = 32 * VF_HEAD
HF = (VF + VF_SZ + 4095) // 4096 * 4096
HF_SZ = 64 * 288 * 1024
OF = HF + HF_SZ
OF_SZ = 64 * 36 * 1024
PART = OF + OF_SZ
PART_SPLIT = 64 * 18 * 2048
PART_SZ = 8 * PART_SPLIT
WS_USED = PART + PART_SZ
LOG2E = 1.4426950408889634
QSCALE = (DH ** -0.5) * LOG2E
if __name__ == '__main__':
    for k in 'XNF QF KF QX KX VF HF OF PART WS_USED'.split(): print(k, hex(globals()[k]), globals()[k])
```

```python
import sys, importlib
sys.path.insert(0, 'work')
from asmlib import build
from layout import *

HEAD = open('parallel_sum__softmax_full_mha__swiglu_ffn__prompt.s.ref').read().split('; Override launch')[0]

def assemble(kernels, out_s, out_co=None):
    s = HEAD
    for t, d, i in kernels:
        s += f"; @launch kernel={i['name']} grid=({i['grid']},1,1) block=({i['block']},1,1) lds={i['lds']}\n"
    s += '.amdgcn_target "amdgcn-amd-amdhsa--gfx950"\n.text\n'
    seen = set()
    for t, d, i in kernels:
        if i['name'] in seen: continue
        seen.add(i['name']); s += t
    s += '.section .rodata,"a"\n'
    seen = set()
    for t, d, i in kernels:
        if i['name'] in seen: continue
        seen.add(i['name']); s += d
    open(out_s, 'w').write(s)
    if out_co: build(s, 'x', out_co)
    return s

if __name__ == '__main__':
    from k0_ln import gen_ln
    from k1_p1 import gen_p1
    from k2_attn import gen_attn
    from k3_down import gen_down, gen_fin
    import json
    prof = 'prof' in sys.argv
    import k2_attn
    for a in sys.argv:
        if a.startswith('u='): k2_attn.UNROLL = int(a[2:])
        if a.startswith('x='): k2_attn.EXP.update(a[2:].split(','))
    ks = [gen_ln(prof=prof), gen_p1(prof=prof), gen_attn(prof=prof), gen_down(prof=prof), gen_fin(prof=prof)]
    json.dump({i['name']: i.get('prof', []) for t, d, i in ks}, open('cur.json', 'w'))
    assemble(ks, 'cur.s', 'cur.co')
    print('built')
```

```python
import re

REG_RE = re.compile(r'^(-|\|)?([vas])(\d+)$|^(-)?([vas])\[(\d+):(\d+)\]$')

def parse_reg(tok):
    tok = tok.strip()
    t = tok
    if t.startswith('-'): t = t[1:]
    if t.startswith('abs(') and t.endswith(')'): t = t[4:-1]
    if t.startswith('|') and t.endswith('|'): t = t[1:-1]
    m = re.match(r'^([vas])(\d+)$', t)
    if m: return [(m.group(1), int(m.group(2)))]
    m = re.match(r'^([vas])\[(\d+):(\d+)\]$', t)
    if m: return [(m.group(1), i) for i in range(int(m.group(2)), int(m.group(3)) + 1)]
    if t == 'vcc': return [('s', 'vcc')]
    if t == 'exec': return [('s', 'exec')]
    if t == 'm0': return [('s', 'm0')]
    if t in ('vcc_lo', 'vcc_hi'): return [('s', 'vcc')]
    if t in ('exec_lo', 'exec_hi'): return [('s', 'exec')]
    return []

TRANS = ('v_exp_f32', 'v_log_f32', 'v_rcp_f32', 'v_rsq_f32', 'v_sqrt_f32', 'v_sin_f32', 'v_cos_f32', 'v_rcp_iflag_f32')

class Ins:
    __slots__ = ('text', 'op', 'kind', 'rd', 'wr', 'srcC', 'mods', 'tag', 'passes', 'dpp')
    def __init__(self, text, tag=None):
        self.text = text; self.tag = tag
        t = text.split(';')[0].strip()
        parts = t.split(None, 1)
        self.op = op = parts[0]
        rest = parts[1] if len(parts) > 1 else ''
        ops = [o.strip() for o in re.split(r',(?![^\[]*\])', rest)] if rest else []
        mods = ''
        if ops:
            last = ops[-1].split()
            if last:
                ops[-1] = last[0]; mods = ' '.join(last[1:])
        self.mods = mods
        self.rd = set(); self.wr = set(); self.srcC = set(); self.passes = 0
        self.dpp = ('dpp' in op) or ('row_' in mods) or ('quad_perm' in mods) or ('row_' in t and op.startswith('v_'))
        R = lambda i: parse_reg(ops[i]) if i < len(ops) else []
        if op.startswith('v_mfma'):
            self.kind = 'mfma'
            self.wr |= set(R(0)); self.rd |= set(R(1)) | set(R(2)) | set(R(3)); self.srcC = set(R(3))
            self.passes = 8 if '32x32' in op else 4
            if '32x32x4_2b' in op or '32x32x1_2b' in op: self.passes = 16
        elif op.startswith('v_'):
            self.kind = 'trans' if op.replace('_e32', '').replace('_e64', '') in TRANS else 'valu'
            if op.startswith('v_cmp'):
                self.wr |= set(R(0))
                for i in range(1, len(ops)): self.rd |= set(R(i))
                if op.startswith('v_cmpx'): self.wr.add(('s', 'exec'))
            elif op.startswith('v_permlane') and 'swap' in op:
                self.wr |= set(R(0)) | set(R(1)); self.rd |= set(R(0)) | set(R(1))
            elif op.startswith('v_add_co') or op.startswith('v_sub_co') or op.startswith('v_addc_co') or op.startswith('v_subb_co'):
                self.wr |= set(R(0)) | set(R(1))
                for i in range(2, len(ops)): self.rd |= set(R(i))
            elif op.startswith('v_readfirstlane') or op.startswith('v_readlane'):
                self.wr |= set(R(0))
                for i in range(1, len(ops)): self.rd |= set(R(i))
            else:
                self.wr |= set(R(0))
                for i in range(1, len(ops)): self.rd |= set(R(i))
                if op.startswith('v_fmac') or op.startswith('v_dot2c') or op.startswith('v_pk_fmac') or self.dpp or op.startswith('v_writelane'):
                    self.rd |= set(R(0))
                if op.startswith('v_cndmask') and len(ops) == 3: self.rd.add(('s', 'vcc'))
            self.rd.add(('s', 'exec'))
        elif op.startswith('ds_'):
            self.kind = 'ds'
            if op.startswith('ds_read') or op.startswith('ds_bpermute') or op.startswith('ds_permute') or op.startswith('ds_swizzle'):
                self.wr |= set(R(0))
                for i in range(1, len(ops)): self.rd |= set(R(i))
                if 'd16' in op: self.rd |= set(R(0))
            else:
                for i in range(len(ops)): self.rd |= set(R(i))
        elif op.startswith('buffer_') or op.startswith('global_'):
            self.kind = 'vmem'
            is_lds = bool(re.search(r'\blds\b', mods)) or 'load_lds' in op
            if op in ('buffer_wbl2', 'buffer_inv'):
                pass
            elif 'store' in op:
                for i in range(len(ops)): self.rd |= set(R(i))
            elif 'atomic' in op:
                for i in range(len(ops)): self.rd |= set(R(i))
                if 'sc0' in mods: self.wr |= set(R(0))
            elif is_lds:
                for i in range(len(ops)): self.rd |= set(R(i))
                self.rd.add(('s', 'm0'))
            else:
                self.wr |= set(R(0))
                for i in range(1, len(ops)): self.rd |= set(R(i))
                if 'd16' in op: self.rd |= set(R(0))
        elif op.startswith('s_'):
            if op in ('s_waitcnt', 's_nop', 's_barrier', 's_endpgm', 's_setprio', 's_sleep', 's_branch') or op.startswith('s_cbranch'):
                self.kind = 'ctl'
                if op == 's_cbranch_vccz' or op == 's_cbranch_vccnz': self.rd.add(('s', 'vcc'))
                if op.startswith('s_cbranch_exec'): self.rd.add(('s', 'exec'))
            elif op.startswith('s_load') or op.startswith('s_memtime') or op.startswith('s_memrealtime') or op.startswith('s_buffer_load'):
                self.kind = 'smem'
                self.wr |= set(R(0))
                for i in range(1, len(ops)): self.rd |= set(R(i))
            else:
                self.kind = 'salu'
                if op.startswith('s_cmp') or op.startswith('s_bitcmp'):
                    for i in range(len(ops)): self.rd |= set(R(i))
                else:
                    self.wr |= set(R(0))
                    for i in range(1, len(ops)): self.rd |= set(R(i))
                    if 'saveexec' in op: self.wr.add(('s', 'exec')); self.rd.add(('s', 'exec'))
                    if op in ('s_addk_i32', 's_mulk_i32'): self.rd |= set(R(0))
        else:
            self.kind = 'other'
    def nslots(self):
        if self.op == 's_nop':
            return int(self.text.split()[1], 0) + 1
        return 1

def is_v(r): return r[0] in ('v', 'a')

def required_gap(p, c):
    need = 0
    pw = p.wr; cr = c.rd; cw = c.wr
    vw = {r for r in pw if is_v(r)}
    sw = {r for r in pw if r[0] == 's'}
    if p.kind in ('valu', 'trans'):
        if p.op.startswith('v_dot'):
            if c.op == p.op:
                pass
            elif vw & (cr | cw): need = max(need, 3)
        if c.kind == 'mfma' and (vw & cr): need = max(need, 2)
        if p.kind == 'trans' and c.kind in ('valu', 'mfma') and (vw & cr): need = max(need, 1)
        if p.kind == 'trans' and c.kind in ('trans',) and (vw & cr): need = max(need, 1)
        if c.kind in ('valu', 'trans'):
            if (c.op.startswith('v_permlane')) and (vw & cr): need = max(need, 2)
            if c.dpp and (vw & cr): need = max(need, 2)
            if (c.op.startswith('v_readlane') or c.op.startswith('v_readfirstlane')) and (vw & cr): need = max(need, 1)
            if sw & cr - {('s', 'exec')}: need = max(need, 2)
            if ('s', 'exec') in sw: need = max(need, 5 if c.dpp else 4)
            if (c.op.startswith('v_readlane') or c.op.startswith('v_writelane')) and (sw & cr): need = max(need, 4)
        if c.kind == 'vmem' and (sw & cr): need = max(need, 5)
        if c.kind == 'mfma' and ('s', 'exec') in sw: need = max(need, 4)
        if c.kind == 'ctl' and (sw & cr): need = max(need, 5)
        if c.kind in ('salu',) and (sw & cr): need = max(need, 1)
    if p.kind == 'mfma':
        n = p.passes
        full = {2: 5, 4: 8, 8: 12, 16: 20}[n]
        ovl = {2: 4, 4: 6, 8: 10, 16: 18}[n]
        war = {2: 1, 4: 3, 8: 7, 16: 15}[n]
        if c.kind == 'mfma':
            ab = c.rd - c.srcC if False else None
            if vw & (c.rd - c.srcC): need = max(need, full)
            elif vw & c.srcC:
                if c.srcC == vw and c.passes == p.passes: need = max(need, 0 if n >= 4 else 2)
                else: need = max(need, ovl)
            if vw & c.wr and not (vw & c.srcC):
                need = max(need, ovl)
        elif c.kind in ('valu', 'trans', 'vmem', 'ds'):
            if vw & (cr | cw): need = max(need, full)
            if c.kind in ('valu', 'trans') and (p.srcC & cw): need = max(need, war)
    if p.kind == 'vmem' and 'store' in p.op and ('x4' in p.op or 'x3' in p.op):
        data = {r for r in p.rd if is_v(r)}
        if c.kind in ('valu', 'trans') and (data & cw): need = max(need, 2)
        elif c.kind in ('mfma',) and (data & cw): need = max(need, 2)
    if p.kind == 'ds' and p.op in ('ds_write_b128', 'ds_write_b96'):
        data = {r for r in p.rd if is_v(r)}
        if c.kind in ('valu', 'trans') and (data & cw): need = max(need, 2)
    if p.kind == 'salu' and ('s', 'm0') in pw and c.kind in ('vmem', 'ds') and ('s', 'm0') in cr: need = max(need, 1)
    if p.kind == 'salu' and ('s','exec') in pw and c.kind == 'mfma': need = max(need, 1)
    return need

class Emitter:
    def __init__(self):
        self.out = []
        self.lds_q = []
        self.vm_q = []
        self.auto = True
        self.nops = 0
        self.waits = 0
    def newlabel(self, base):
        self._nl = getattr(self, '_nl', 0) + 1
        return f'L_{base}_{self._nl}'
    def label(self, name):
        self.out.append(name + ':')
    def raw(self, s):
        self.out.append(s)
    def comment(self, s):
        self.out.append('    ; ' + s)
    def _hist(self, n=24):
        h = []; tot = 0
        for x in reversed(self.out):
            if isinstance(x, str):
                continue
            h.append(x); tot += x.nslots()
            if tot >= n: break
        return h
    def _pad(self, ins):
        dist = 0; need = 0
        for p in self._hist():
            g = required_gap(p, ins)
            if g - dist > need: need = g - dist
            dist += p.nslots()
        while need > 0:
            k = min(need, 16)
            self.out.append(Ins(f's_nop {k-1}')); self.nops += k
            need -= k
    def _waits(self, ins):
        touched = ins.rd | ins.wr
        lg = None
        for i, (dst, _) in enumerate(self.lds_q):
            if dst & touched: lg = len(self.lds_q) - 1 - i
        vm = None
        for i, (dst, _) in enumerate(self.vm_q):
            if dst & touched: vm = len(self.vm_q) - 1 - i
        if lg is not None or vm is not None:
            self.wait(vm=vm, lg=lg)
    def wait(self, vm=None, lg=None):
        parts = []
        if vm is not None:
            vm = min(vm, 63)
            if vm < len(self.vm_q):
                parts.append(f'vmcnt({vm})'); self.vm_q = self.vm_q[len(self.vm_q) - vm:] if vm else []
        if lg is not None:
            lg = min(lg, 15)
            if lg < len(self.lds_q):
                parts.append(f'lgkmcnt({lg})'); self.lds_q = self.lds_q[len(self.lds_q) - lg:] if lg else []
        if parts:
            self.out.append(Ins('s_waitcnt ' + ' '.join(parts))); self.waits += 1
    def wait_tag(self, tag):
        idx = None
        for i, (_, t) in enumerate(self.vm_q):
            if t == tag: idx = i
        if idx is not None:
            self.wait(vm=len(self.vm_q) - 1 - idx)
    def wait_all(self):
        self.out.append(Ins('s_waitcnt vmcnt(0) lgkmcnt(0)')); self.vm_q = []; self.lds_q = []
    def wait_lgkm0(self):
        self.out.append(Ins('s_waitcnt lgkmcnt(0)')); self.lds_q = []
    def wait_vm0(self):
        self.out.append(Ins('s_waitcnt vmcnt(0)')); self.vm_q = []
    def e(self, text, tag=None):
        ins = Ins(text, tag)
        if ins.op == 's_waitcnt':
            m = re.search(r'vmcnt\((\d+)\)', text)
            if m:
                n = int(m.group(1)); self.vm_q = self.vm_q[max(0, len(self.vm_q) - n):] if n else []
            m = re.search(r'lgkmcnt\((\d+)\)', text)
            if m:
                n = int(m.group(1)); self.lds_q = self.lds_q[max(0, len(self.lds_q) - n):] if n else []
            self.out.append(ins); return ins
        if self.auto:
            self._waits(ins)
            self._pad(ins)
        self.out.append(ins)
        if ins.kind == 'ds':
            self.lds_q.append((set(ins.wr), tag))
        elif ins.kind == 'smem':
            self.lds_q.append((set(ins.wr), 'smem'))
        elif ins.kind == 'vmem' and ins.op not in ('buffer_inv',):
            if tag is None and (re.search(r'\blds\b', ins.mods) or 'load_lds' in ins.op): tag = 'dma'
            self.vm_q.append((set(r for r in ins.wr if is_v(r)), tag))
        return ins
    def state(self):
        return ([ (frozenset(a), b) for a, b in self.lds_q], [ (frozenset(a), b) for a, b in self.vm_q])
    def text(self):
        return '\n'.join(x if isinstance(x, str) else '    ' + x.text for x in self.out) + '\n'
    def mark(self):
        return len(self.out)
    def check_loop(self, start, end=None):
        body = [x for x in self.out[start:end] if not isinstance(x, str)]
        seq = body + body
        n = len(body)
        bad = []
        for j in range(n, min(2 * n, n + 40)):
            dist = 0
            for i in range(j - 1, max(-1, j - 30), -1):
                g = required_gap(seq[i], seq[j])
                if g > dist and i < n: bad.append((seq[i].text, seq[j].text, g, dist))
                dist += seq[i].nslots()
                if dist > 24: break
        return bad
```

```python
from kcommon import *

def gen_ln(name='ln_kernel', prof=False):
    e = Emitter()
    header(e, name)
    P = Prof(e, prof)
    P.stamp('start'); P.stamp('rstart', real=True)
    e.e('s_cmp_ge_u32 s2, 256')
    e.e(f's_cbranch_scc1 {name}_end')
    load_ptr(e, 4, 'x'); load_ptr(e, 6, 'ws')
    e.e('v_lshrrev_b32 v1, 3, v0')
    e.e('v_and_b32 v2, 7, v0')
    e.e('s_lshl_b32 s3, s2, 3')
    e.e('v_add_u32 v3, s3, v1')
    e.e('v_mul_u32_u24 v3, 1152, v3')
    e.e('v_lshl_add_u32 v3, v2, 4, v3')
    e.wait_lgkm0()
    make_srd(e, 8, 4, 2048 * 1152)
    make_srd(e, 12, 6, WS_USED)
    for i in range(9):
        e.e(f'buffer_load_dwordx4 v[{8+4*i}:{11+4*i}], v3, s[8:11], 0 offen offset:{128*i}')
    e.e('s_lshr_b32 s16, s2, 2')
    e.e('s_mul_i32 s16, s16, 36864')
    e.e('s_and_b32 s17, s2, 3')
    e.e('s_lshl_b32 s17, s17, 7')
    e.e('s_add_u32 s16, s16, s17')
    e.e('v_lshrrev_b32 v4, 1, v2')
    e.e('v_lshlrev_b32 v4, 10, v4')
    e.e('v_and_b32 v5, 1, v2')
    e.e('v_lshl_add_u32 v4, v5, 9, v4')
    e.e('v_lshl_add_u32 v4, v1, 4, v4')
    e.e('v_add_u32 v4, s16, v4')
    if XNF: e.e(f'v_add_u32 v4, {XNF}, v4')
    X = 64
    for i in range(36):
        e.e(f'v_lshlrev_b32 v{X+2*i}, 16, v{8+i}')
        e.e(f'v_and_b32 v{X+2*i+1}, 0xffff0000, v{8+i}')
    for k in range(4): e.e(f'v_add_f32 v{50+k}, v{X+k}, v{X+4+k}')
    for i in range(8, 72): e.e(f'v_add_f32 v{50+i%4}, v{50+i%4}, v{X+i}')
    e.e('v_add_f32 v50, v50, v51'); e.e('v_add_f32 v52, v52, v53'); e.e('v_add_f32 v50, v50, v52')
    def reduce8(r):
        e.e(f'v_add_f32_dpp v{r}, v{r}, v{r} quad_perm:[1,0,3,2] row_mask:0xf bank_mask:0xf')
        e.e(f'v_add_f32_dpp v{r}, v{r}, v{r} quad_perm:[2,3,0,1] row_mask:0xf bank_mask:0xf')
        e.e(f'v_add_f32_dpp v{r}, v{r}, v{r} row_half_mirror row_mask:0xf bank_mask:0xf')
    reduce8(50)
    e.e(f'v_mul_f32 v50, {fh(1.0/576)}, v50')
    for i in range(72): e.e(f'v_sub_f32 v{X+i}, v{X+i}, v50')
    for k in range(4): e.e(f'v_mul_f32 v{52+k}, v{X+k}, v{X+k}')
    for i in range(4, 72): e.e(f'v_fmac_f32 v{52+i%4}, v{X+i}, v{X+i}')
    e.e('v_add_f32 v52, v52, v53'); e.e('v_add_f32 v54, v54, v55'); e.e('v_add_f32 v52, v52, v54')
    reduce8(52)
    e.e(f'v_mov_b32 v53, {fh(1e-5)}')
    e.e(f'v_fmac_f32 v53, {fh(1.0/576)}, v52')
    e.e('v_rsq_f32 v53, v53')
    for i in range(72): e.e(f'v_mul_f32 v{X+i}, v{X+i}, v53')
    for i in range(36): e.e(f'v_cvt_pk_bf16_f32 v{8+i}, v{X+2*i}, v{X+2*i+1}')
    for i in range(9):
        e.e(f's_mov_b32 s18, {4096*i}')
        e.e(f'buffer_store_dwordx4 v[{8+4*i}:{11+4*i}], v4, s[12:15], s18 offen')
    if prof:
        e.e('s_waitcnt vmcnt(0)')
        e.e('s_mov_b32 s20, 0'); e.e('s_mov_b32 s22, s6'); e.e('s_mov_b32 s23, s7')
    P.stamp('done'); P.stamp('rend', real=True)
    P.dump(22, 20, slot=4)
    e.label(f'{name}_end')
    e.e('s_endpgm')
    return e.text(), descriptor(name, 136), dict(name=name, grid=256, block=64, lds=0, prof=P.names)
```

```python
from kcommon import *

S_WD, S_WO, S_WS = 12, 16, 20
S_C, S_MT, S_CT, S_W, S_T = 24, 25, 26, 27, 28
S_HB = 29
S_WOFF = 30
S_DM = 31
S_U = 32
S_A, S_B = 33, 34
S_RB = 35
S_NU = 36
V_L16 = 2
V_DO = 4
V_DX = 14
V_RD = 24
V_RB = 26
AF = 28
NSLOT, DIST = 6, 4
BF = [52, 68]
ACC = 96
UNIT = 36864
NRING = 4

def areads(vrd, ks, tile, slot):
    b = AF + 4 * slot
    o = ks * 9216 + tile * 64
    return [f'ds_read_b64_tr_b16 v[{b}:{b+1}], v{vrd} offset:{o}',
            f'ds_read_b64_tr_b16 v[{b+2}:{b+3}], v{vrd} offset:{o + 8*576}']

def gen_down(name='down_kernel', prof=False):
    e = Emitter()
    header(e, name)
    P = Prof(e, prof)
    P.stamp('start'); P.stamp('rstart', real=True)
    e.e('s_cmp_ge_u32 s2, 256')
    e.e(f's_cbranch_scc1 {name}_end')
    load_ptr(e, 4, 'wd'); load_ptr(e, 6, 'wo'); load_ptr(e, 8, 'ws')
    e.e('v_lshrrev_b32 v1, 6, v0')
    e.e('v_and_b32 v0, 63, v0')
    e.e(f'v_readfirstlane_b32 s{S_W}, v1')
    e.e(f's_and_b32 s{S_C}, s2, 7')
    e.e(f's_lshr_b32 s{S_MT}, s2, 4')
    e.e(f's_bfe_u32 s{S_CT}, s2, 0x10003')
    e.e(f's_lshl_b32 s{S_T}, s{S_MT}, 2')
    e.e(f's_add_u32 s{S_T}, s{S_T}, s{S_W}')
    e.e(f'v_lshlrev_b32 v{V_L16}, 4, v0')
    e.e(f's_mul_i32 s{S_A}, s{S_CT}, 576')
    e.e(f's_mov_b32 s{S_B}, {(2**32 + 575) // 576}')
    for j in range(9):
        e.e(f'v_add_u32 v3, {j*1024}, v{V_L16}')
        e.e(f'v_mul_hi_u32 v13, v3, s{S_B}')
        e.e(f'v_mul_u32_u24 v23, 576, v13')
        e.e(f'v_sub_u32 v3, v3, v23')
        e.e(f'v_add_u32 v3, s{S_A}, v3')
        e.e(f'v_mul_u32_u24 v23, 1152, v13')
        e.e(f'v_add_u32 v{V_DO+j}, v3, v23')
        e.e(f'v_bfe_u32 v23, v13, 2, 1')
        e.e(f'v_lshlrev_b32 v23, 2, v23')
        e.e(f'v_bfe_u32 v27, v13, 1, 1')
        e.e(f'v_add_u32 v23, v23, v27')
        e.e(f'v_lshrrev_b32 v27, 3, v13')
        e.e(f'v_lshl_add_u32 v23, v27, 1, v23')
        e.e(f'v_mul_u32_u24 v23, 18, v23')
        e.e(f'v_and_b32 v27, 1, v13')
        e.e(f'v_add3_u32 v23, v23, v27, 16')
        e.e(f'v_mul_u32_u24 v23, 1152, v23')
        e.e(f'v_add_u32 v{V_DX+j}, v3, v23')
    e.e('v_lshrrev_b32 v3, 5, v0')
    e.e('v_bfe_u32 v13, v0, 2, 2')
    e.e('v_lshl_add_u32 v3, v3, 2, v13')
    e.e('v_mul_u32_u24 v3, 576, v3')
    e.e('v_bfe_u32 v13, v0, 4, 1')
    e.e('v_lshl_add_u32 v3, v13, 5, v3')
    e.e('v_and_b32 v13, 3, v0')
    e.e(f'v_lshl_add_u32 v{V_RB}, v13, 3, v3')
    e.wait_lgkm0()
    make_srd(e, S_WD, 4, 4608 * 1152)
    make_srd(e, S_WO, 6, 576 * 1152)
    make_srd(e, S_WS, 8, WS_USED)
    ws = f's[{S_WS}:{S_WS+3}]'
    e.e(f's_mul_i32 s{S_WOFF}, s{S_C}, 36')
    e.e(f's_add_u32 s{S_WOFF}, s{S_WOFF}, s{S_W}')
    e.e(f's_mul_i32 s{S_WOFF}, s{S_WOFF}, {16*1152}')
    e.e(f's_mul_i32 s{S_DM}, s{S_W}, 9216')
    def dma_unit(srd, vo):
        out = []
        for j in range(9):
            out.append([f's_add_u32 m0, s{S_DM}, {j*1024}', f'buffer_load_dwordx4 v{vo+j}, s[{srd}:{srd+3}], s{S_WOFF} offen lds'])
        return out
    def adv_dma():
        return [f's_add_u32 s{S_WOFF}, s{S_WOFF}, {4*16*1152}',
                f's_add_u32 s{S_DM}, s{S_DM}, {UNIT}',
                f's_cmp_ge_u32 s{S_DM}, {NRING*UNIT}',
                f's_cselect_b32 s{S_A}, {NRING*UNIT}, 0',
                f's_sub_u32 s{S_DM}, s{S_DM}, s{S_A}']
    e.e(f's_mul_i32 s{S_HB}, s{S_T}, {288*1024}')
    e.e(f's_mul_i32 s{S_A}, s{S_C}, {36*1024}')
    e.e(f's_add_u32 s{S_HB}, s{S_HB}, s{S_A}')
    e.e(f's_add_u32 s{S_HB}, s{S_HB}, {HF}')
    def bloads(buf):
        return [f'buffer_load_dwordx4 v[{BF[buf]+4*k}:{BF[buf]+4*k+3}], v{V_L16}, {ws}, s{S_HB} offen offset:{k*1024}' for k in range(4)]
    for g in dma_unit(S_WD, V_DO):
        for x in g: e.e(x)
    for x in bloads(0): e.e(x)
    e.e(f's_add_u32 s{S_HB}, s{S_HB}, 4096')
    for x in adv_dma(): e.e(x)
    for g in dma_unit(S_WD, V_DO):
        for x in g: e.e(x)
    for x in adv_dma(): e.e(x)
    e.e(f'v_mov_b32 v{V_RD}, v{V_RB}')
    e.e(f's_mov_b32 s{S_RB}, 0')
    e.wait(vm=13)
    e.e('s_barrier')
    P.stamp('u0 ready')
    seq = [(ks, t) for ks in range(4) for t in range(9)]
    for i in range(DIST):
        for x in areads(V_RD, seq[i][0], seq[i][1], i % NSLOT): e.e(x)

    def unit(buf, first, dma, bl, last=False, nks=4, nxt=True):
        n = nks * 9
        fl = [list(g) for g in dma]
        bl = list(bl)
        e.e(f's_add_u32 s{S_RB}, s{S_RB}, {UNIT}')
        e.e(f's_cmp_ge_u32 s{S_RB}, {NRING*UNIT}')
        e.e(f's_cselect_b32 s{S_A}, {NRING*UNIT}, 0')
        e.e(f's_sub_u32 s{S_RB}, s{S_RB}, s{S_A}')
        e.e(f'v_add_u32 v{V_RD+1}, s{S_RB}, v{V_RB}')
        for i in range(n):
            ks, t = seq[i]
            if i == n - DIST and nxt:
                k = sum(1 for d, tg in e.vm_q if tg == 'cur')
                idx = [q for q, (d, tg) in enumerate(e.vm_q) if tg == 'dma_prev']
                if idx: e.wait(vm=len(e.vm_q) - 1 - max(idx))
                e.e('s_barrier')
            j = i + DIST
            rd = []
            if j < n: rd = areads(V_RD, seq[j][0], seq[j][1], j % NSLOT)
            elif nxt: rd = areads(V_RD + 1, seq[j - n][0], seq[j - n][1], j % NSLOT)
            a = AF + 4 * (i % NSLOT); d = ACC + 16 * t; b = BF[buf] + 4 * ks
            c = '0' if (first and ks == 0) else f'v[{d}:{d+15}]'
            e.e(f'v_mfma_f32_32x32x16_bf16 v[{d}:{d+15}], v[{a}:{a+3}], v[{b}:{b+3}], {c}')
            g = None
            if fl and i % 3 == 1 and i >= 1:
                g = fl.pop(0); e.e(g[0])
            for x in rd: e.e(x)
            if g: e.e(g[1], tag='dma')
            if bl and i % 8 == 4: e.e(bl.pop(0))
        assert not fl and not bl
        e.e(f'v_mov_b32 v{V_RD}, v{V_RD+1}')
    def retag():
        e.vm_q = [(d, 'dma_prev' if t == 'dma' else t) for d, t in e.vm_q]

    retag()
    unit(0, True, dma_unit(S_WD, V_DO), bloads(1))
    e.e(f's_add_u32 s{S_HB}, s{S_HB}, 4096')
    for x in adv_dma(): e.e(x)
    P.stamp('unit0')
    e.e(f's_mov_b32 s{S_U}, 0')
    e.label(f'{name}_loop')
    st0 = e.state(); m0 = e.mark()
    for buf in (1, 0):
        retag()
        unit(buf, False, dma_unit(S_WD, V_DO), bloads(buf ^ 1))
        e.e(f's_add_u32 s{S_HB}, s{S_HB}, 4096')
        for x in adv_dma(): e.e(x)
    e.e(f's_add_u32 s{S_U}, s{S_U}, 1')
    e.e(f's_cmp_lt_u32 s{S_U}, 3')
    e.e(f's_cbranch_scc1 {name}_loop')
    bad = e.check_loop(m0); assert not bad, bad
    st1 = e.state(); assert [a for a, b in st0[0]] == [a for a, b in st1[0]]
    P.stamp('loop')
    e.e(f's_lshl_b32 s{S_WOFF}, s{S_C}, 2')
    e.e(f's_add_u32 s{S_WOFF}, s{S_WOFF}, s{S_W}')
    e.e(f's_mul_i32 s{S_WOFF}, s{S_WOFF}, {18*1152}')
    retag()
    unit(1, False, dma_unit(S_WO, V_DO), bloads(0))
    for x in adv_dma(): e.e(x)
    e.e(f's_lshr_b32 s{S_WOFF}, s{S_C}, 1')
    e.e(f's_mul_i32 s{S_WOFF}, s{S_WOFF}, {144*1152}')
    e.e(f's_mul_i32 s{S_HB}, s{S_T}, 36864')
    e.e(f's_lshl_b32 s{S_A}, s{S_C}, 12')
    e.e(f's_add_u32 s{S_HB}, s{S_HB}, s{S_A}')
    e.e(f's_add_u32 s{S_HB}, s{S_HB}, {OF}')
    retag()
    unit(0, False, dma_unit(S_WO, V_DX), bloads(1))
    e.e(f's_mul_i32 s{S_HB}, s{S_T}, 36864')
    e.e(f's_lshr_b32 s{S_A}, s{S_C}, 1')
    e.e(f's_add_u32 s{S_A}, s{S_A}, 32')
    e.e(f's_lshl_b32 s{S_A}, s{S_A}, 10')
    e.e(f's_add_u32 s{S_HB}, s{S_HB}, s{S_A}')
    e.e(f's_add_u32 s{S_HB}, s{S_HB}, {OF}')
    e.e(f's_bitcmp1_b32 s{S_C}, 0')
    e.e(f's_cselect_b32 s{S_HB}, 0x70000000, s{S_HB}')
    retag()
    unit(1, False, [], bloads(0)[:1])
    unit(0, False, [], [], nks=1, nxt=False)
    P.stamp('k done')
    e.e(f's_mul_i32 s{S_A}, s{S_C}, {PART_SPLIT}')
    e.e(f's_mul_i32 s{S_B}, s{S_T}, {18*2048}')
    e.e(f's_add_u32 s{S_A}, s{S_A}, s{S_B}')
    e.e(f's_mul_i32 s{S_B}, s{S_CT}, {9*2048}')
    e.e(f's_add_u32 s{S_A}, s{S_A}, s{S_B}')
    e.e(f's_add_u32 s{S_A}, s{S_A}, {PART}')
    for t in range(9):
        d = ACC + 16 * t; pk = 28 + 8 * (t % 4)
        for r in range(8): e.e(f'v_cvt_pk_bf16_f32 v{pk+r}, v{d+2*r}, v{d+2*r+1}')
        e.e(f'buffer_store_dwordx4 v[{pk}:{pk+3}], v{V_L16}, {ws}, s{S_A} offen')
        e.e(f'buffer_store_dwordx4 v[{pk+4}:{pk+7}], v{V_L16}, {ws}, s{S_A} offen offset:1024')
        e.e(f's_add_u32 s{S_A}, s{S_A}, 2048')
    P.stamp('stores issued')
    if prof: e.e('s_waitcnt vmcnt(0)')
    P.stamp('done'); P.stamp('rend', real=True)
    P.dump(S_WS, S_W, slot=2)
    e.label(f'{name}_end')
    e.e('s_endpgm')
    print(f'down: {len(e.out)} lines, nops {e.nops}, waits {e.waits}')
    return e.text(), descriptor(name, 256), dict(name=name, grid=256, block=256, lds=NRING * UNIT, prof=P.names)

def gen_fin(name='fin_kernel', prof=False):
    e = Emitter()
    header(e, name)
    P = Prof(e, prof)
    P.stamp('start'); P.stamp('rstart', real=True)
    e.e('s_cmp_ge_u32 s2, 288')
    e.e(f's_cbranch_scc1 {name}_end')
    load_ptr(e, 4, 'x'); load_ptr(e, 6, 'out'); load_ptr(e, 8, 'ws')
    e.e('v_lshrrev_b32 v1, 6, v0')
    e.e('v_and_b32 v0, 63, v0')
    e.e('v_readfirstlane_b32 s27, v1')
    e.e('s_lshl_b32 s24, s2, 2')
    e.e('s_add_u32 s24, s24, s27')
    e.e(f's_mul_hi_u32 s25, s24, {(2**32 + 17) // 18}')
    e.e('s_mul_i32 s26, s25, 18')
    e.e('s_sub_u32 s26, s24, s26')
    e.e('v_lshlrev_b32 v2, 4, v0')
    e.e('v_and_b32 v3, 31, v0')
    e.e('v_mul_u32_u24 v3, 1152, v3')
    e.e(f's_mul_i32 s28, s25, {32*1152}')
    e.e('s_lshl_b32 s29, s26, 6')
    e.e('s_add_u32 s28, s28, s29')
    e.e('v_add_u32 v3, s28, v3')
    e.e('v_lshrrev_b32 v4, 5, v0')
    e.e('v_lshl_add_u32 v5, v4, 3, v3')
    e.e('v_lshl_add_u32 v6, v4, 4, v3')
    e.wait_lgkm0()
    make_srd(e, 12, 4, 2048 * 1152)
    make_srd(e, 16, 6, 2048 * 1152)
    make_srd(e, 20, 8, WS_USED)
    e.e('s_lshl_b32 s30, s24, 11')
    e.e(f's_add_u32 s30, s30, {PART}')
    Pp = 32
    for c in range(8):
        e.e(f'buffer_load_dwordx4 v[{Pp+8*c}:{Pp+8*c+3}], v2, s[20:23], s30 offen')
        e.e(f'buffer_load_dwordx4 v[{Pp+8*c+4}:{Pp+8*c+7}], v2, s[20:23], s30 offen offset:1024')
        if c == 0:
            for g in range(4): e.e(f'buffer_load_dwordx2 v[{8+2*g}:{9+2*g}], v5, s[12:15], 0 offen offset:{16*g}')
        e.e(f's_add_u32 s30, s30, {PART_SPLIT}')
    A = 100
    e.e('s_mov_b32 s31, 0x3f80')
    e.e('s_mov_b32 s33, 0x3f800000')
    for k in range(8):
        e.e(f'v_lshlrev_b32 v{A+2*k}, 16, v{8+k}')
        e.e(f'v_and_b32 v{A+2*k+1}, 0xffff0000, v{8+k}')
    for c in range(8):
        for k in range(8):
            e.e(f'v_lshlrev_b32 v{A+16+2*k}, 16, v{Pp+8*c+k}')
            e.e(f'v_and_b32 v{A+16+2*k+1}, 0xffff0000, v{Pp+8*c+k}')
        for k in range(16): e.e(f'v_add_f32 v{A+k}, v{A+k}, v{A+16+k}')
    for k in range(8): e.e(f'v_cvt_pk_bf16_f32 v{8+k}, v{A+2*k}, v{A+2*k+1}')
    e.e('v_permlane32_swap_b32 v8, v10'); e.e('v_permlane32_swap_b32 v9, v11')
    e.e('v_permlane32_swap_b32 v12, v14'); e.e('v_permlane32_swap_b32 v13, v15')
    e.e('buffer_store_dwordx4 v[8:11], v6, s[16:19], 0 offen')
    e.e('buffer_store_dwordx4 v[12:15], v6, s[16:19], 0 offen offset:32')
    if prof: e.e('s_waitcnt vmcnt(0)')
    P.stamp('done'); P.stamp('rend', real=True)
    P.dump(20, 27, slot=3)
    e.label(f'{name}_end')
    e.e('s_endpgm')
    return e.text(), descriptor(name, 136), dict(name=name, grid=288, block=256, lds=0, prof=P.names)

if __name__ == '__main__':
    t, d, i = gen_down()
    open('down.s', 'w').write(t)
    gen_fin()
```

```python
import struct
from gen import *
from layout import *

def f2u(x): return struct.unpack('<I', struct.pack('<f', x))[0]
def fh(x): return hex(f2u(x))

ARG = dict(x=0, wqkv=8, wo=16, bx=24, wg=32, wu=40, wd=48, out=56, dbg=64, ws=72)

def header(e, name):
    e.raw(f'.globl {name}')
    e.raw('.p2align 8')
    e.raw(f'.type {name},@function')
    e.label(name)

def descriptor(name, nv, nag=0, ns=96):
    acc = ((nv + 3) // 4) * 4
    tot = acc + nag if nag else nv
    return f"""
.p2align 6
.amdhsa_kernel {name}
  .amdhsa_next_free_vgpr {tot}
  .amdhsa_next_free_sgpr {ns}
  .amdhsa_accum_offset {acc}
  .amdhsa_group_segment_fixed_size 0
  .amdhsa_kernarg_size 80
  .amdhsa_user_sgpr_count 2
  .amdhsa_user_sgpr_kernarg_segment_ptr 1
  .amdhsa_system_sgpr_workgroup_id_x 1
  .amdhsa_float_denorm_mode_32 3
  .amdhsa_float_denorm_mode_16_64 3
  .amdhsa_ieee_mode 0
  .amdhsa_dx10_clamp 0
.end_amdhsa_kernel
"""

def load_ptr(e, sdst, arg):
    e.e(f's_load_dwordx2 s[{sdst}:{sdst+1}], s[0:1], {ARG[arg]}')

def make_srd(e, srd, sptr, nbytes):
    e.e(f's_mov_b32 s{srd}, s{sptr}')
    e.e(f's_and_b32 s{srd+1}, s{sptr+1}, 0xffff')
    e.e(f's_mov_b32 s{srd+2}, {nbytes}')
    e.e(f's_mov_b32 s{srd+3}, 0x00020000')

PROF_OFF = 0x6000000
class Prof:
    def __init__(self, e, on, first=50):
        self.e = e; self.on = on; self.n = 0; self.first = first; self.names = []
    def stamp(self, name, real=False):
        if not self.on: return
        r = self.first + 2 * self.n
        assert r + 1 < 96
        self.e.out.append(Ins(f's_memrealtime s[{r}:{r+1}]' if real else f's_memtime s[{r}:{r+1}]'))
        self.names.append(name); self.n += 1
    def dump(self, srd_ptr_lo, wave_sgpr, slot=0):
        if not self.on: return
        e = self.e
        e.e('s_waitcnt vmcnt(0) lgkmcnt(0)')
        e.e(f's_mov_b32 s4, s{srd_ptr_lo}')
        e.e(f's_and_b32 s5, s{srd_ptr_lo+1}, 0xffff')
        e.e('s_mov_b32 s6, 0x10000000')
        e.e('s_mov_b32 s7, 0x00020000')
        e.e('s_lshl_b32 s8, s2, 3')
        e.e(f's_add_u32 s8, s8, s{wave_sgpr}')
        e.e('s_lshl_b32 s8, s8, 7')
        e.e(f's_add_u32 s8, s8, {PROF_OFF + slot * 0x100000}')
        e.e('s_mov_b64 exec, 1')
        e.e('v_mov_b32 v1, 0')
        for k in range(self.n):
            e.e(f'v_mov_b32 v2, s{self.first + 2*k}')
            e.e(f'buffer_store_dword v2, v1, s[4:7], s8 offen offset:{4*k}')
        e.e('s_waitcnt vmcnt(0)')


class Prof2:
    def __init__(self, e, on):
        self.e = e; self.on = on; self.n = 0; self.names = []; self.pending = []
    def stamp(self, name, real=False, hold=False):
        if not self.on: return
        e = self.e
        k = self.n; self.n += 1; self.names.append(name)
        if hold:
            r = 70 + 2 * k
        else:
            keep = []
            for (kk, rr) in self.pending:
                if kk == k - 1 and rr >= 90: keep.append((kk, rr))
                else: e.out.append(Ins(f'v_writelane_b32 v1, s{rr}, {kk}'))
            self.pending = keep
            r = 90 + 2 * (k % 4)
        e.out.append(Ins(f's_memrealtime s[{r}:{r+1}]' if real else f's_memtime s[{r}:{r+1}]'))
        self.pending.append((k, r))
    def dump(self, ws_ptr, wave_sgpr, slot=0):
        if not self.on: return
        e = self.e
        e.e('s_waitcnt vmcnt(0) lgkmcnt(0)')
        for (kk, rr) in self.pending: e.e(f'v_writelane_b32 v1, s{rr}, {kk}')
        e.e(f's_mov_b32 s4, s{ws_ptr}')
        e.e(f's_and_b32 s5, s{ws_ptr+1}, 0xffff')
        e.e('s_mov_b32 s6, 0x10000000')
        e.e('s_mov_b32 s7, 0x00020000')
        e.e('s_lshl_b32 s8, s2, 3')
        e.e(f's_add_u32 s8, s8, s{wave_sgpr}')
        e.e('s_lshl_b32 s8, s8, 7')
        e.e(f's_add_u32 s8, s8, {PROF_OFF + slot * 0x100000}')
        e.e('v_lshlrev_b32 v2, 2, v0')
        e.e('s_mov_b64 exec, 0xffffffff')
        e.e('buffer_store_dword v1, v2, s[4:7], s8 offen')
        e.e('s_waitcnt vmcnt(0)')
```

```python
S, D, H, DH, F = 2048, 576, 32, 18, 4608
XNF = 0
XNF_SZ = 64 * 36 * 1024
QF = XNF + XNF_SZ
QF_SZ = 32 * 64 * 1024
KF = QF + QF_SZ
KF_SZ = QF_SZ
QX = KF + KF_SZ
QX_SZ = 32 * 2048 * 4
KX = QX + QX_SZ
KX_SZ = QX_SZ
VF = KX + KX_SZ
VF_G = 640
VF_HEAD = 128 * VF_G
VF_SZ = 32 * VF_HEAD
HF = (VF + VF_SZ + 4095) // 4096 * 4096
HF_SZ = 64 * 288 * 1024
OF = HF + HF_SZ
OF_SZ = 64 * 36 * 1024
PART = OF + OF_SZ
PART_SPLIT = 64 * 18 * 2048
PART_SZ = 8 * PART_SPLIT
FLAGS = PART + PART_SZ
FLAGS_SZ = 256 * 128
WS_USED = FLAGS + FLAGS_SZ
LOG2E = 1.4426950408889634
QSCALE = (DH ** -0.5) * LOG2E
if __name__ == '__main__':
    for k in 'XNF QF KF QX KX VF HF OF PART FLAGS WS_USED'.split(): print(k, hex(globals()[k]), globals()[k])
```

```python
from kcommon import *

NAME = 'parallel_sum__softmax_full_mha__swiglu_ffn__prompt_kernel'
P_X, P_WQKV, P_WO, P_BX, P_WG, P_WU, P_WD, P_OUT, P_DBG, P_WS = 4, 6, 8, 10, 12, 14, 16, 18, 20, 22
S_WS, S_R0, S_R1, S_R2 = 24, 28, 32, 36
S_MI, S_J, S_W, S_C = 40, 41, 42, 43
S_NONCE = 44
T = list(range(46, 70))
WS = f's[{S_WS}:{S_WS+3}]'
F_LN, F_KV, F_H, F_O, F_PART = 0, 1, 2, 3, 4
LDS_TOTAL = 163840
L_MISC = 163840 - 256
V_L16 = 2
S_SPIN = 69
SPIN_MAX = 400000
SCL = ' sc1'
SC = ' sc1'

def publish(e, phase):
    lab = e.newlabel('pub')
    e.e(f's_cmp_lg_u32 s{S_W}, 0')
    e.e(f's_cbranch_scc1 {lab}')
    e.e(f's_lshl_b32 s{T[0]}, s2, 7')
    e.e(f's_add_u32 s{T[0]}, s{T[0]}, {FLAGS + 8*phase}')
    e.e(f'v_mov_b32 v4, s{S_NONCE}')
    e.e(f'v_mov_b32 v5, s{S_NONCE+1}')
    e.e('v_mov_b32 v6, 0')
    e.e('s_mov_b64 exec, 1')
    e.e(f'buffer_store_dwordx2 v[4:5], v6, {WS}, s{T[0]} offen sc1')
    e.e('s_mov_b64 exec, -1')
    e.label(lab)

def poll(e, phase, vid, nlanes, vt=4):
    lab = e.newlabel('poll'); ok = e.newlabel('pollok')
    e.e(f'v_lshlrev_b32 v{vt+2}, 7, v{vid}')
    e.e(f'v_add_u32 v{vt+2}, {FLAGS + 8*phase}, v{vt+2}')
    e.e(f's_mov_b64 exec, {hex((1 << nlanes) - 1)}' if nlanes > 32 or nlanes == 32 else f's_mov_b64 exec, {(1 << nlanes) - 1}')
    e.e(f's_mov_b32 s{S_SPIN}, {SPIN_MAX}')
    e.label(lab)
    e.raw(f'    s_sub_u32 s{S_SPIN}, s{S_SPIN}, 1')
    e.raw(f'    s_cbranch_scc1 {ok}')
    e.raw(f'    buffer_load_dwordx2 v[{vt}:{vt+1}], v{vt+2}, {WS}, 0 offen sc1')
    e.raw('    s_waitcnt vmcnt(0)')
    e.raw(f'    v_cmp_ne_u32 vcc, s{S_NONCE}, v{vt}')
    e.raw(f'    v_cmp_ne_u32 s[{T[1]+ (T[1] & 1)}:{T[1]+(T[1]&1)+1}], s{S_NONCE+1}, v{vt+1}')
    e.raw('    s_nop 4')
    e.raw(f'    s_or_b64 vcc, vcc, s[{T[1]+(T[1]&1)}:{T[1]+(T[1]&1)+1}]')
    e.raw('    s_nop 4')
    e.raw(f'    s_cbranch_vccz {ok}')
    e.raw('    s_sleep 1')
    e.raw(f'    s_branch {lab}')
    e.label(ok)
    e.e('s_mov_b64 exec, -1')
    e.vm_q = []

SLOW_POLLS = []
def poll_issue(e, phase, idexpr, n, vt):
    out = list(idexpr)
    out += [f'v_lshlrev_b32 v{vt+2}, 7, v3', f'v_add_u32 v{vt+2}, {FLAGS + 8*phase}, v{vt+2}',
            f's_mov_b64 exec, {(1 << n) - 1}', (f'buffer_load_dwordx2 v[{vt}:{vt+1}], v{vt+2}, {WS}, 0 offen sc1', 'poll'), 's_mov_b64 exec, -1']
    return out
def poll_check(e, n, vt):
    slow = e.newlabel('pslow'); back = e.newlabel('pback')
    pr = 48
    wait_tags(e, ('poll',))
    e.e(f's_mov_b64 exec, {(1 << n) - 1}')
    e.e(f'v_cmp_ne_u32 vcc, s{S_NONCE}, v{vt}')
    e.e(f'v_cmp_ne_u32 s[{pr}:{pr+1}], s{S_NONCE+1}, v{vt+1}')
    e.e(f's_or_b64 vcc, vcc, s[{pr}:{pr+1}]')
    e.e(f's_cbranch_vccnz {slow}')
    e.label(back)
    e.e('s_mov_b64 exec, -1')
    SLOW_POLLS.append((slow, back, vt))
def emit_slow_polls(e):
    for slow, back, vt in SLOW_POLLS:
        lp = e.newlabel('psl')
        e.label(slow)
        e.raw(f'    s_mov_b32 s{S_SPIN}, {SPIN_MAX}')
        e.label(lp)
        e.raw(f'    s_sub_u32 s{S_SPIN}, s{S_SPIN}, 1')
        e.raw(f'    s_cbranch_scc1 {back}')
        e.raw('    s_sleep 1')
        e.raw(f'    buffer_load_dwordx2 v[{vt}:{vt+1}], v{vt+2}, {WS}, 0 offen sc1')
        e.raw('    s_waitcnt vmcnt(0)')
        e.raw(f'    v_cmp_ne_u32 vcc, s{S_NONCE}, v{vt}')
        e.raw(f'    v_cmp_ne_u32 s[48:49], s{S_NONCE+1}, v{vt+1}')
        e.raw('    s_nop 4')
        e.raw('    s_or_b64 vcc, vcc, s[48:49]')
        e.raw('    s_nop 4')
        e.raw(f'    s_cbranch_vccnz {lp}')
        e.raw(f'    s_branch {back}')

def emit_start(e, P):
    e.e('s_cmp_ge_u32 s2, 256')
    e.e(f's_cbranch_scc1 {NAME}_end')
    e.e('s_load_dwordx16 s[4:19], s[0:1], 0')
    e.e('s_load_dwordx4 s[20:23], s[0:1], 64')
    e.e('v_lshrrev_b32 v1, 6, v0')
    e.e('v_and_b32 v0, 63, v0')
    e.e(f'v_readfirstlane_b32 s{S_W}, v1')
    e.e(f's_and_b32 s{S_C}, s2, 7')
    e.e(f's_and_b32 s{T[0]}, s2, 1')
    e.e(f's_lshl_b32 s{T[0]}, s{T[0]}, 2')
    e.e(f's_bfe_u32 s{T[1]}, s2, 0x20003')
    e.e(f's_add_u32 s{S_MI}, s{T[0]}, s{T[1]}')
    e.e(f's_bfe_u32 s{T[0]}, s2, 0x20001')
    e.e(f's_lshl_b32 s{T[0]}, s{T[0]}, 3')
    e.e(f's_lshr_b32 s{T[1]}, s2, 5')
    e.e(f's_add_u32 s{S_J}, s{T[0]}, s{T[1]}')
    e.e(f'v_lshlrev_b32 v{V_L16}, 4, v0')
    e.wait_lgkm0()
    make_srd(e, S_WS, P_WS, WS_USED)

L_XN = 100352
def emit_ln(e, P):
    make_srd(e, S_R2, P_X, 2048 * 1152)
    e.e('v_lshrrev_b32 v3, 4, v0')
    e.e('v_and_b32 v6, 15, v0')
    e.e(f's_lshl_b32 s{T[0]}, s2, 3')
    e.e(f's_lshl_b32 s{T[1]}, s{S_W}, 2')
    e.e(f's_add_u32 s{T[0]}, s{T[0]}, s{T[1]}')
    e.e(f'v_add_u32 v4, s{T[0]}, v3')
    e.e('v_mul_u32_u24 v4, 1152, v4')
    e.e('v_lshl_add_u32 v4, v6, 3, v4')
    for i in range(9):
        e.e(f'buffer_load_dwordx2 v[{8+2*i}:{9+2*i}], v4, s[{S_R2}:{S_R2+3}], 0 offen offset:{128*i}')
    e.e(f'v_add_u32 v3, s{T[1]}, v3')
    e.e('v_lshrrev_b32 v5, 1, v6')
    e.e('v_lshl_add_u32 v5, v5, 3, v3')
    e.e('v_lshlrev_b32 v5, 4, v5')
    e.e('v_and_b32 v6, 1, v6')
    e.e('v_lshl_add_u32 v5, v6, 3, v5')
    e.e(f'v_add_u32 v5, {L_XN}, v5')
    e.e(f's_mov_b32 s{T[0]}, 0x3f803f80')
    e.e('v_mov_b32 v30, 0'); e.e('v_mov_b32 v31, 0'); e.e('v_mov_b32 v32, 0'); e.e('v_mov_b32 v33, 0')
    for i in range(18):
        e.e(f'v_dot2_f32_bf16 v{30+(i&1)}, v{8+i}, s{T[0]}, v{30+(i&1)}')
        e.e(f'v_dot2_f32_bf16 v{32+(i&1)}, v{8+i}, v{8+i}, v{32+(i&1)}')
    pass
    e.e('v_add_f32 v30, v30, v31'); e.e('v_add_f32 v32, v32, v33')
    for m in ('quad_perm:[1,0,3,2]', 'quad_perm:[2,3,0,1]', 'row_half_mirror', 'row_mirror'):
        e.e(f'v_add_f32_dpp v30, v30, v30 {m} row_mask:0xf bank_mask:0xf')
        e.e(f'v_add_f32_dpp v32, v32, v32 {m} row_mask:0xf bank_mask:0xf')
    e.e(f'v_mul_f32 v30, {fh(1.0/576)}, v30')
    e.e(f'v_mul_f32 v32, {fh(1.0/576)}, v32')
    e.e('v_fma_f32 v32, -v30, v30, v32')
    e.e('v_max_f32 v32, 0, v32')
    e.e(f'v_add_f32 v32, {fh(1e-5)}, v32')
    e.e('v_rsq_f32 v32, v32')
    e.e('v_mul_f32 v30, v30, v32')
    for i in range(18):
        e.e(f'v_lshlrev_b32 v34, 16, v{8+i}')
        e.e(f'v_and_b32 v35, 0xffff0000, v{8+i}')
        e.e('v_fma_f32 v34, v34, v32, -v30')
        e.e('v_fma_f32 v35, v35, v32, -v30')
        e.e(f'v_cvt_pk_bf16_f32 v{8+i}, v34, v35')
    for i in range(9):
        e.e(f'ds_write_b64 v5, v[{8+2*i}:{9+2*i}] offset:{1024*i}')
    e.wait_lgkm0()

def emit_ln_store(e):
    e.e(f'v_add_u32 v5, {L_XN}, v{V_L16}')
    for i in range(9): e.e(f'ds_read_b128 v[{8+4*i}:{11+4*i}], v5 offset:{1024*i}')
    e.e(f's_lshr_b32 s{T[0]}, s2, 2')
    e.e(f's_mul_i32 s{T[0]}, s{T[0]}, 36864')
    e.e(f's_and_b32 s{T[1]}, s2, 3')
    e.e(f's_lshl_b32 s{T[1]}, s{T[1]}, 7')
    e.e(f's_add_u32 s{T[0]}, s{T[0]}, s{T[1]}')
    e.e('v_lshrrev_b32 v3, 4, v0')
    e.e('v_lshlrev_b32 v3, 10, v3')
    e.e('v_bfe_u32 v4, v0, 3, 1')
    e.e('v_lshl_add_u32 v3, v4, 9, v3')
    e.e('v_and_b32 v4, 7, v0')
    e.e('v_lshl_add_u32 v3, v4, 4, v3')
    e.e(f'v_add_u32 v3, s{T[0]}, v3')
    for i in range(9):
        e.e(f's_mov_b32 s{T[0]}, {XNF + 4096*i}')
        e.e(f'buffer_store_dwordx4 v[{8+4*i}:{11+4*i}], v3, {WS}, s{T[0]} offen{SC}')
    e.wait_vm0()

def emit_nonce(e):
    make_srd(e, S_R2, P_DBG, 256)
    DB = f's[{S_R2}:{S_R2+3}]'
    lab = e.newlabel('nn'); pl = e.newlabel('npoll'); ok = e.newlabel('nok')
    e.e('v_mov_b32 v6, 0')
    e.e('s_cmp_lg_u32 s2, 0')
    e.e(f's_cbranch_scc1 {lab}')
    e.e(f's_memrealtime s[{S_NONCE}:{S_NONCE+1}]')
    e.e('s_waitcnt lgkmcnt(0)'); e.lds_q = []
    e.e(f's_or_b32 s{S_NONCE}, s{S_NONCE}, 1')
    e.e(f'v_mov_b32 v4, s{S_NONCE}')
    e.e(f'v_mov_b32 v5, s{S_NONCE+1}')
    e.e('s_mov_b64 exec, 1')
    e.e(f'buffer_store_dwordx2 v[4:5], v6, {DB}, 0 offen sc1')
    e.e('s_mov_b64 exec, -1')
    e.label(lab)
    e.e(f's_mov_b32 s{S_SPIN}, {SPIN_MAX}')
    e.label(pl)
    e.raw(f'    s_sub_u32 s{S_SPIN}, s{S_SPIN}, 1')
    e.raw(f'    s_cbranch_scc1 {ok}')
    e.raw(f'    buffer_load_dwordx2 v[4:5], v6, {DB}, 0 offen sc1')
    e.raw('    s_waitcnt vmcnt(0)')
    e.raw('    v_cmp_eq_u32 vcc, 0, v4')
    e.raw('    s_nop 4')
    e.raw(f'    s_cbranch_vccz {ok}')
    e.raw('    s_sleep 2')
    e.raw(f'    s_branch {pl}')
    e.label(ok)
    e.vm_q = []
    e.e(f'v_mov_b32 v6, {L_MISC}')
    e.e('ds_write_b64 v6, v[4:5]')
    e.wait_lgkm0()

def read_nonce(e):
    e.e(f'v_mov_b32 v6, {L_MISC}')
    e.e('ds_read_b64 v[4:5], v6')
    e.e(f'v_readfirstlane_b32 s{S_NONCE}, v4')
    e.e(f'v_readfirstlane_b32 s{S_NONCE+1}, v5')

class P1:
    TMP, TMP2 = 46, 47
    T0, DM0, DOFF, DML, BUF, U, HST0, HST1, KG, NL2E, QS, COL, COL5, KG5, E = range(50, 65)
    WQ, WG, WU = S_R0, S_R1, S_R2
    V_DG, V_DU, V_DA, V_DB, V_BA, V_BB, V_BG0, V_BG1, V_RD0, V_RD1, V_SC, V_BI, V_VST, V_QXST, V_BAH, V_BBH = range(208, 224)
    WF = 40; WFB = 52
    ACC = [64, 96, 176]
    VT = 128
    XT1 = 224
    MAT1 = 36864
    BUF1 = 83968
    PQ = 144

def xfrag(t, s):
    if t == 0: return f'a[{4*s}:{4*s+3}]'
    if s < 28: return f'a[{144+4*s}:{144+4*s+3}]'
    return f'v[{P1.XT1+4*(s-28)}:{P1.XT1+4*(s-28)+3}]'

def p1_reads(vrd, s, base=P1.WF, ks=1024, off2=256):
    b = base + 4 * (s % 3)
    if ks != 1024 and s >= 18:
        vrd = P1.V_BAH if vrd == P1.V_RD0 else P1.V_BBH
        return [f'ds_read_b64_tr_b16 v[{b}:{b+1}], v{vrd} offset:{(s-18)*ks}',
                f'ds_read_b64_tr_b16 v[{b+2}:{b+3}], v{vrd} offset:{(s-18)*ks+off2}']
    return [f'ds_read_b64_tr_b16 v[{b}:{b+1}], v{vrd} offset:{s*ks}',
            f'ds_read_b64_tr_b16 v[{b+2}:{b+3}], v{vrd} offset:{s*ks+off2}']

def epi_gu(acc):
    c = P1; out = []
    for t in range(2):
        G = acc + 16 * t; U = G + 8
        Tt = c.VT + 24 * t; Pp = Tt + 8; O = Tt + 16
        for r in range(8): out.append(f'v_mul_f32 v{Tt+r}, s{c.NL2E}, v{G+r}')
        for r in range(8): out.append(f'v_exp_f32 v{Tt+r}, v{Tt+r}')
        for r in range(8): out.append(f'v_mul_f32 v{Pp+r}, v{G+r}, v{U+r}')
        for r in range(8): out.append(f'v_add_f32 v{Tt+r}, 1.0, v{Tt+r}')
        for r in range(8): out.append(f'v_rcp_f32 v{Tt+r}, v{Tt+r}')
        tm = c.TMP if t == 0 else c.TMP2
        out.append(f's_lshl_b32 s{tm}, s{c.KG}, 10')
        out.append(f's_add_u32 s{tm}, s{tm}, s{c.HST0 if t == 0 else c.HST1}')
        for r in range(8): out.append(f'v_mul_f32 v{Pp+r}, v{Pp+r}, v{Tt+r}')
        for r in range(4): out.append(f'v_cvt_pk_bf16_f32 v{O+r}, v{Pp+2*r}, v{Pp+2*r+1}')
        out.append(f'buffer_store_dwordx4 v[{O}:{O+3}], v{V_L16}, {WS}, s{tm} offen{SC}')
    return out

def epi_a(acc):
    c = P1; out = []
    for t in range(2):
        Q = acc + 16 * t; Kk = Q + 8
        Tt = c.VT + 24 * t; O = Tt + 8; O2 = Tt + 12
        for r in range(8): out.append(f'v_mul_f32 v{Tt+r}, s{c.QS}, v{Q+r}')
        for r in range(4): out.append(f'v_cvt_pk_bf16_f32 v{O2+r}, v{Kk+2*r}, v{Kk+2*r+1}')
        for r in range(4): out.append(f'v_cvt_pk_bf16_f32 v{O+r}, v{Tt+2*r}, v{Tt+2*r+1}')
        out.append(f's_lshl_b32 s{c.TMP}, s{S_J}, 6')
        out.append(f's_add_u32 s{c.TMP}, s{c.TMP}, s{c.T0}')
        if t: out.append(f's_add_u32 s{c.TMP}, s{c.TMP}, 1')
        out.append(f's_lshl_b32 s{c.TMP}, s{c.TMP}, 10')
        out.append(f's_add_u32 s{c.TMP2}, s{c.TMP}, {KF}')
        out.append(f's_add_u32 s{c.TMP}, s{c.TMP}, {QF}')
        out.append((f'buffer_store_dwordx4 v[{O2}:{O2+3}], v{V_L16}, {WS}, s{c.TMP2} offen{SC}', 'kv'))
        out.append((f'buffer_store_dwordx4 v[{O}:{O+3}], v{V_L16}, {WS}, s{c.TMP} offen{SC}', 'kv'))
    return out

def epi_b(acc, t):
    c = P1; out = []
    A = acc + 16 * t
    X = c.VT; Y = c.VT + 16; O = c.VT + 32
    for r in range(16): out.append(f'v_fma_f32 v{X+r}, v{A+r}, v{c.V_SC}, v{c.V_BI}')
    for r in range(8): out.append(f'v_cvt_pk_bf16_f32 v{O+r}, v{X+2*r}, v{X+2*r+1}')
    out.append(f's_mul_i32 s{c.TMP}, s{S_J}, {VF_HEAD}')
    out.append(f's_add_u32 s{c.TMP2}, s{c.T0}, {t}')
    out.append(f's_mul_i32 s{c.TMP2}, s{c.TMP2}, {2*VF_G}')
    out.append(f's_add_u32 s{c.TMP}, s{c.TMP}, s{c.TMP2}')
    out.append(f's_add_u32 s{c.TMP}, s{c.TMP}, {VF}')
    out.append((f'buffer_store_dwordx4 v[{O}:{O+3}], v{c.V_VST}, {WS}, s{c.TMP} offen{SC}', 'kv'))
    out.append((f'buffer_store_dwordx4 v[{O+4}:{O+7}], v{c.V_VST}, {WS}, s{c.TMP} offen offset:{VF_G}{SC}', 'kv'))
    for r in range(16): out.append(f'v_mov_b32_dpp v{Y+r}, v{X+r} row_shl:1 row_mask:0xf bank_mask:0xf bound_ctrl:0')
    for r in range(16): out.append(f'v_cvt_pk_bf16_f32 v{Y+r}, v{X+r}, v{Y+r}')
    out.append(f's_lshl_b32 s{c.TMP}, s{S_J}, 13')
    out.append(f's_add_u32 s{c.TMP2}, s{c.T0}, {t}')
    out.append(f's_lshl_b32 s{c.TMP2}, s{c.TMP2}, 7')
    out.append(f's_add_u32 s{c.TMP}, s{c.TMP}, s{c.TMP2}')
    for g in range(4):
        out.append((f'buffer_store_dwordx4 v[{Y+4*g}:{Y+4*g+3}], v{c.V_QXST}, {WS}, s{c.TMP} offen offset:{32*g}{SC}', 'kv'))
    return out

def dma_gu():
    c = P1; out = []
    for i in range(9):
        for m, (srd, vo) in enumerate(((c.WG, c.V_DG), (c.WU, c.V_DU))):
            g = []
            if i == 0 and m == 0:
                g.append(f's_mul_i32 s{c.DOFF}, s{S_W}, {16*9216}')
                g.append(f's_add_u32 s{c.DOFF}, s{c.DOFF}, s{c.COL}')
                g.append(f's_mov_b32 s{c.DML}, s{c.DM0}')
            elif m == 0:
                g.append(f's_add_u32 s{c.DOFF}, s{c.DOFF}, {4*16*9216}')
                g.append(f's_add_u32 s{c.DML}, s{c.DML}, 4096')
            g.append(f's_add_u32 m0, s{c.DML}, {m*c.MAT1}')
            g.append(f'buffer_load_dwordx4 v{vo}, s[{srd}:{srd+3}], s{c.DOFF} offen lds')
            out.append(g)
    return out

def emit_item(e, x):
    if isinstance(x, tuple) and x[0] == 'RAW':
        e.out.append(Ins(x[1])); e.vm_q.append((set(), 'warm'))
    elif isinstance(x, tuple): e.e(x[0], tag=x[1])
    else: e.e(x)

def emit_dma(e, x):
    if isinstance(x, tuple) and x[0] == 'X63':
        e.e('s_mov_b32 exec_hi, 0x7fffffff'); e.e(x[1]); e.e('s_mov_b32 exec_hi, -1')
    else: e.e(x)

class Filler:
    def __init__(self, e, fillers, ngaps, first_gap=3, dma=(), dma_start=0, dma_stride=6):
        self.e = e; self.fl = list(fillers); self.dma = list(dma); self.gap = 0
        self.first = first_gap; self.ds = dma_start; self.st = dma_stride
        n = max(1, ngaps - first_gap - 2 - len(self.dma))
        self.per = -(-len(self.fl) // n) if self.fl else 0
        self.pend = []
    def pre(self):
        g = self.gap + 1
        if self.dma and g > self.ds and (g - self.ds - 1) % self.st == 0:
            grp = self.dma.pop(0)
            for x in grp[:-1]: self.e.e(x)
            self.pend.append(grp[-1])
    def post(self):
        self.gap += 1
        if getattr(self, 'hook', None) and self.gap == self.hook[0]: self.hook[1]()
        if self.pend:
            emit_dma(self.e, self.pend.pop(0)); return
        if self.gap > self.first:
            for _ in range(self.per):
                if self.fl: emit_item(self.e, self.fl.pop(0))
    def flush(self):
        while self.dma:
            grp = self.dma.pop(0)
            for x in grp[:-1]: self.e.e(x)
            emit_dma(self.e, grp[-1])
        while self.fl: emit_item(self.e, self.fl.pop(0))

def wait_tags(e, tags):
    idx = [i for i, (d, t) in enumerate(e.vm_q) if t in tags]
    if idx: e.wait(vm=len(e.vm_q) - 1 - max(idx))

def p1_tile(e, acc, vrd, nxt_vrd, switch, F, wait=('dma',), is_b=False, own_q=False, nxt_q=False):
    QG = (P1.WF, 16 * P1.PQ, 4 * P1.PQ); GG = (P1.WF, 1024, 256)
    own = QG if own_q else GG
    nx = QG if nxt_q else GG
    for s in range(36):
        if s == 35 and switch:
            F.flush()
            e.wait(lg=0)
            wait_tags(e, wait)
            e.e('s_barrier')
            for r in p1_reads(nxt_vrd, 0, *nx) + p1_reads(nxt_vrd, 1, *nx): e.e(r)
        rd = []
        if s + 2 < 36: rd = p1_reads(vrd, s + 2, *own)
        elif not switch and nxt_vrd is not None: rd = p1_reads(nxt_vrd, s + 2 - 36, *nx)
        w = P1.WF + 4 * (s % 3)
        for t in range(2):
            d = acc + 16 * t
            cc = '0' if s == 0 else f'v[{d}:{d+15}]'
            if is_b: e.e(f'v_mfma_f32_32x32x16_bf16 v[{d}:{d+15}], {xfrag(t, s)}, v[{w}:{w+3}], {cc}')
            else: e.e(f'v_mfma_f32_32x32x16_bf16 v[{d}:{d+15}], v[{w}:{w+3}], {xfrag(t, s)}, {cc}')
            F.pre()
            if rd: e.e(rd[t])
            F.post()
    F.flush()

def p1_setup(e, first=False):
    c = P1
    make_srd(e, c.WQ, P_WQKV, 576 * 3456)
    e.e(f's_and_b32 s{c.E}, s{S_J}, 1')
    e.e(f's_lshl_b32 s{c.T0}, s{S_MI}, 3')
    e.e(f's_lshl_b32 s{c.TMP}, s{S_W}, 1')
    e.e(f's_add_u32 s{c.T0}, s{c.T0}, s{c.TMP}')
    e.e(f's_mul_i32 s{c.TMP}, s{S_J}, 36')
    e.e(f's_mov_b32 s{c.TMP2}, {(2**32 + 8) // 9}')
    e.e(f'v_mul_hi_u32 v24, v0, s{c.TMP2}')
    e.e('v_mul_u32_u24 v25, 9, v24')
    e.e('v_sub_u32 v25, v0, v25')
    e.e('v_mul_u32_u24 v26, 86, v25')
    e.e('v_lshrrev_b32 v26, 8, v26')
    e.e('v_mul_u32_u24 v27, 3, v26')
    e.e('v_sub_u32 v27, v25, v27')
    e.e('v_mul_u32_u24 v24, 3456, v24')
    e.e('v_mul_u32_u24 v26, 1152, v26')
    e.e('v_lshl_add_u32 v24, v27, 4, v24')
    e.e(f'v_add3_u32 v{c.V_DA}, v24, v26, s{c.TMP}')
    make_srd(e, c.WG, P_WG, 576 * 9216)
    e.e(f's_mov_b32 s{c.NL2E}, {fh(-LOG2E)}')
    e.e(f's_mov_b32 s{c.QS}, {fh(QSCALE)}')
    e.e('v_lshrrev_b32 v24, 2, v0')
    e.e('v_and_b32 v25, 3, v0')
    e.e('v_mul_u32_u24 v26, 9216, v24')
    e.e(f'v_lshl_add_u32 v{c.V_DG}, v25, 4, v26')
    e.e('v_xor_b32 v27, 2, v25')
    e.e(f'v_lshl_add_u32 v{c.V_DU}, v27, 4, v26')
    e.e('v_lshrrev_b32 v24, 4, v0')
    e.e('v_bfe_u32 v25, v0, 2, 2')
    e.e('v_and_b32 v26, 3, v0')
    e.e('v_lshrrev_b32 v27, 1, v24')
    e.e('v_lshl_add_u32 v27, v27, 3, v25')
    e.e('v_and_b32 v28, 1, v24')
    e.e(f'v_mul_u32_u24 v29, {c.PQ}, v27')
    e.e('v_mul_u32_u24 v30, 48, v28')
    e.e('v_lshl_add_u32 v30, v26, 3, v30')
    e.e(f'v_add_u32 v{c.V_BA}, v29, v30')
    e.e('v_mov_b32 v30, 80')
    e.e('v_mov_b32 v31, 128')
    e.e('v_cmp_eq_u32 vcc, 0, v26')
    e.e('v_cndmask_b32 v30, v30, v31, vcc')
    e.e('v_mov_b32 v31, 32')
    e.e('v_cmp_eq_u32 vcc, 1, v26')
    e.e('v_cndmask_b32 v30, v30, v31, vcc')
    e.e('v_lshlrev_b32 v31, 3, v26')
    e.e('v_add_u32 v31, 96, v31')
    e.e('v_cmp_eq_u32 vcc, 1, v28')
    e.e('v_cndmask_b32 v30, v31, v30, vcc')
    e.e(f'v_add_u32 v{c.V_BB}, v29, v30')
    e.e(f'v_add_u32 v{c.V_BAH}, {18*16*c.PQ}, v{c.V_BA}')
    e.e(f'v_add_u32 v{c.V_BBH}, {18*16*c.PQ}, v{c.V_BB}')
    e.e('v_lshlrev_b32 v27, 6, v27')
    e.e('v_lshl_add_u32 v27, v26, 3, v27')
    e.e(f'v_mul_u32_u24 v29, {c.MAT1}, v28')
    e.e('v_add_u32 v29, v29, v27')
    e.e(f'v_lshl_add_u32 v{c.V_BG0}, v28, 5, v29')
    e.e(f'v_xor_b32 v{c.V_BG1}, 32, v{c.V_BG0}')
    e.e('v_and_b32 v24, 31, v0')
    e.e('v_lshrrev_b32 v25, 5, v0')
    e.e(f'v_mov_b32 v{c.V_SC}, 1.0')
    e.e(f'v_mov_b32 v26, s{c.QS}')
    e.e('v_and_b32 v27, 30, v24')
    e.e('v_cmp_eq_u32 vcc, 20, v27')
    e.e(f'v_cndmask_b32 v{c.V_SC}, v{c.V_SC}, v26, vcc')
    e.e('v_mov_b32 v26, 0')
    e.e('v_cmp_eq_u32 vcc, 18, v27')
    e.e(f'v_cndmask_b32 v{c.V_SC}, v{c.V_SC}, v26, vcc')
    e.e(f'v_mov_b32 v{c.V_BI}, 0')
    e.e('v_mov_b32 v26, 1.0')
    e.e('v_cmp_eq_u32 vcc, 18, v24')
    e.e(f'v_cndmask_b32 v{c.V_BI}, v{c.V_BI}, v26, vcc')
    e.e('v_mul_u32_u24 v26, 320, v25')
    e.e('v_lshl_add_u32 v26, v24, 4, v26')
    e.e(f'v_mov_b32 v{c.V_VST}, 0x7ff00000')
    e.e('v_cmp_ge_u32 vcc, 19, v24')
    e.e(f'v_cndmask_b32 v{c.V_VST}, v{c.V_VST}, v26, vcc')
    e.e('v_lshlrev_b32 v26, 4, v25')
    e.e(f'v_add_u32 v27, {QX}, v26')
    e.e(f'v_add_u32 v26, {KX}, v26')
    e.e(f'v_mov_b32 v{c.V_QXST}, 0x7ff00000')
    e.e('v_cmp_eq_u32 vcc, 20, v24')
    e.e(f'v_cndmask_b32 v{c.V_QXST}, v{c.V_QXST}, v27, vcc')
    e.e('v_cmp_eq_u32 vcc, 24, v24')
    e.e(f'v_cndmask_b32 v{c.V_QXST}, v{c.V_QXST}, v26, vcc')
    e.e(f's_mul_i32 s{c.COL}, s{S_J}, 288')
    e.e(f's_lshl_b32 s{c.TMP}, s{c.E}, 5')
    e.e(f's_add_u32 s{c.COL5}, s{c.COL}, 256')
    e.e(f's_sub_u32 s{c.TMP2}, s{c.COL}, 32')
    e.e(f's_cmp_eq_u32 s{c.E}, 0')
    e.e(f's_cselect_b32 s{c.COL5}, s{c.COL5}, s{c.TMP2}')
    e.e(f's_add_u32 s{c.COL}, s{c.COL}, s{c.TMP}')
    e.e(f's_mul_i32 s{c.KG}, s{S_J}, 9')
    e.e(f's_add_u32 s{c.KG5}, s{c.KG}, 8')
    e.e(f's_cmp_eq_u32 s{c.E}, 0')
    e.e(f's_cselect_b32 s{c.KG5}, s{c.KG5}, s{c.KG}')
    e.e(f's_add_u32 s{c.KG}, s{c.KG}, s{c.E}')
    e.e(f's_mul_i32 s{c.HST0}, s{c.T0}, {288*1024}')
    e.e(f's_add_u32 s{c.HST0}, s{c.HST0}, {HF}')
    e.e(f's_add_u32 s{c.HST1}, s{c.HST0}, {288*1024}')
    if first:
        make_srd(e, c.WU, P_WU, 576 * 9216)
        p1_dma_first(e)

def p1_dma_first(e):
    c = P1
    for i in range(36):
        for m, (srd, vo) in enumerate(((c.WG, c.V_DG), (c.WU, c.V_DU))):
            e.e(f's_mov_b32 m0, {m*c.MAT1 + i*1024}')
            if m == 0: e.e(f's_add_u32 s{c.DOFF}, s{c.COL}, {i*16*9216}')
            else: e.e('s_nop 0')
            e.e(f'buffer_load_dwordx4 v{vo}, s[{srd}:{srd+3}], s{c.DOFF} offen lds')

def dma_qkv():
    c = P1; out = []
    for i in range(21):
        g = [f's_add_u32 s{c.DML}, s{S_W}, {4*i}']
        if i == 20: g.append(f's_min_u32 s{c.DML}, s{c.DML}, 82')
        g += [f's_mul_i32 s{c.DOFF}, s{c.DML}, {7*3456}', f's_mul_i32 s{c.DML}, s{c.DML}, {7*c.PQ}', f's_mov_b32 m0, s{c.DML}',
              ('X63', f'buffer_load_dwordx4 v{c.V_DA}, s[{c.WQ}:{c.WQ+3}], s{c.DOFF} offen lds')]
        out.append(g)
    return out

def emit_p1(e, P):
    c = P1
    make_srd(e, c.WU, P_WU, 576 * 9216)
    e.e(f's_mul_i32 s{c.TMP}, s{c.T0}, 36864')
    if XNF: e.e(f's_add_u32 s{c.TMP}, s{c.TMP}, {XNF}')
    e.e(f's_add_u32 s{c.TMP2}, s{c.TMP}, 36864')
    xl = []
    for s in range(36):
        if s and s % 4 == 0:
            xl.append(f's_add_u32 s{c.TMP}, s{c.TMP}, 4096')
            xl.append(f's_add_u32 s{c.TMP2}, s{c.TMP2}, 4096')
        xl.append(f'buffer_load_dwordx4 {xfrag(0, s)}, v{V_L16}, {WS}, s{c.TMP} offen offset:{(s%4)*1024}{SCL}')
        xl.append(f'buffer_load_dwordx4 {xfrag(1, s)}, v{V_L16}, {WS}, s{c.TMP2} offen offset:{(s%4)*1024}{SCL}')
    nx = 0; i = 0
    while nx < 48:
        e.e(xl[i]); nx += xl[i].startswith('buffer'); i += 1
    xrest = xl[i:]
    e.e(f'v_mov_b32 v{c.V_RD0}, v{c.V_BG0}')
    e.e(f'v_mov_b32 v{c.V_RD1}, v{c.V_BG1}')
    e.e(f's_lshl_b32 s{c.DM0}, s{S_W}, 10')
    e.e(f's_add_u32 s{c.DM0}, s{c.DM0}, {c.BUF1}')
    e.e(f's_add_u32 s{c.COL}, s{c.COL}, 64')
    rA = lambda s: p1_reads(c.V_RD0, s, c.WF)
    rB = lambda s: p1_reads(c.V_RD1, s, c.WFB)
    for s in range(2):
        for r in rA(s) + rB(s): e.e(r)
    xg = []; cur = []
    for x in xrest:
        cur.append(x)
        if x.startswith('buffer'): xg.append(cur); cur = []
    d = dma_gu()
    F = Filler(e, [], 144, dma=xg + d, dma_start=0, dma_stride=3)
    for s in range(36):
        if s == 35:
            F.flush()
            e.wait(lg=0)
            wait_tags(e, ('dma',))
            e.e(f'v_add_u32 v{c.V_RD0}, {c.BUF1}, v{c.V_BG0}')
            e.e('s_barrier')
            for r in p1_reads(c.V_RD0, 0) + p1_reads(c.V_RD0, 1): e.e(r)
        rd = (rA(s + 2) + rB(s + 2)) if s + 2 < 36 else []
        wa = c.WF + 4 * (s % 3); wb = c.WFB + 4 * (s % 3)
        k = 0
        for tl in range(2):
            w = wa if tl == 0 else wb
            for t in range(2):
                dd = c.ACC[tl] + 16 * t
                cc = '0' if s == 0 else f'v[{dd}:{dd+15}]'
                e.e(f'v_mfma_f32_32x32x16_bf16 v[{dd}:{dd+15}], v[{w}:{w+3}], {xfrag(t, s)}, {cc}')
                F.pre()
                if rd: e.e(rd[k])
                k += 1
                F.post()
    P.stamp('U1 done')
    inc = [f's_add_u32 s{c.KG}, s{c.KG}, 1']
    q = dma_qkv()
    e.e(f'v_add_u32 v{c.V_RD1}, {c.BUF1}, v{c.V_BG1}')
    F = Filler(e, epi_gu(c.ACC[0]) + inc, 72, dma=q[:11], dma_stride=6)
    p1_tile(e, c.ACC[2], c.V_RD0, c.V_RD1, False, F)
    e.e(f'v_mov_b32 v{c.V_RD0}, v{c.V_BA}')
    F = Filler(e, epi_gu(c.ACC[1]) + inc, 72, dma=q[11:], dma_stride=5)
    p1_tile(e, c.ACC[0], c.V_RD1, c.V_RD0, True, F, nxt_q=True)
    P.stamp('U2 done')
    for x in [f'v_mov_b32 v{c.V_RD1}, v{c.V_BB}', f's_add_u32 s{c.COL}, s{c.COL}, 64']: e.e(x)
    F = Filler(e, epi_gu(c.ACC[2]) + inc, 72, dma=d[:12], dma_stride=6)
    p1_tile(e, c.ACC[1], c.V_RD0, c.V_RD1, False, F, own_q=True, nxt_q=True)
    e.e(f'v_add_u32 v{c.V_RD0}, {c.BUF1}, v{c.V_BG0}')
    F = Filler(e, epi_gu(c.ACC[0]) + inc + epi_a(c.ACC[1]), 72, dma=d[12:], dma_stride=6)
    p1_tile(e, c.ACC[2], c.V_RD1, c.V_RD0, True, F, is_b=True, own_q=True)
    P.stamp('AB done')
    for x in [f'v_add_u32 v{c.V_RD1}, {c.BUF1}, v{c.V_BG1}',
              f's_lshl_b32 s{c.DM0}, s{S_W}, 10',
              f's_add_u32 s{c.COL}, s{c.COL}, 64']: e.e(x)
    F = Filler(e, epi_b(c.ACC[2], 0) + epi_b(c.ACC[2], 1), 72, dma=d[:12], dma_stride=6)
    p1_tile(e, c.ACC[0], c.V_RD0, c.V_RD1, False, F)
    P.stamp('U3c0 done')
    e.e(f'v_mov_b32 v{c.V_RD0}, v{c.V_BG0}')
    F = Filler(e, epi_gu(c.ACC[0]) + inc, 72, dma=d[12:], dma_start=6, dma_stride=6)
    p1_tile(e, c.ACC[1], c.V_RD1, c.V_RD0, True, F, wait=('dma', 'kv'))
    publish(e, F_KV)
    for x in [f'v_mov_b32 v{c.V_RD1}, v{c.V_BG1}',
              f's_lshl_b32 s{c.DM0}, s{S_W}, 10',
              f's_add_u32 s{c.DM0}, s{c.DM0}, {c.BUF1}',
              f's_mov_b32 s{c.COL}, s{c.COL5}']: e.e(x)
    F = Filler(e, epi_gu(c.ACC[1]) + inc, 72, dma=d[:12], dma_stride=6)
    p1_tile(e, c.ACC[0], c.V_RD0, c.V_RD1, False, F)
    for x in [f's_lshl_b32 s{c.TMP2}, s{c.E}, 5',
              f'v_xor_b32 v{c.V_RD0}, s{c.TMP2}, v{c.V_BG0}',
              f'v_add_u32 v{c.V_RD0}, {c.BUF1}, v{c.V_RD0}']: e.e(x)
    ids = ['v_and_b32 v3, 1, v0', 'v_bfe_u32 v6, v0, 1, 2', 'v_lshl_add_u32 v3, v6, 3, v3', 's_and_b32 s48, s2, 0xe6', 'v_add_u32 v3, s48, v3']
    for x in poll_issue(e, F_KV, ids, 8, 4): emit_item(e, x)
    F = Filler(e, epi_gu(c.ACC[0]) + inc, 72, dma=d[12:], dma_stride=6)
    F.hook = (56, lambda: poll_check(e, 8, 4))
    p1_tile(e, c.ACC[1], c.V_RD1, c.V_RD0, True, F)
    P.stamp('p1 loop done')
    for x in p2_bases(): e.e(x)
    F = Filler(e, epi_gu(c.ACC[1]) + [f's_mov_b32 s{c.KG}, s{c.KG5}'], 72, dma=p2_prefetch_groups(), dma_stride=3, first_gap=1)
    p1_tile(e, c.ACC[0], c.V_RD0, None, False, F)
    for x in epi_gu(c.ACC[0]): e.e(x)
    e.wait_all()
    e.e('s_barrier')
    publish(e, F_H)
    P.stamp('p1 done'); P.stamp('rp1 done', real=True)

class P2:
    A, B, C = 65, 66, 67
    T0, TRIP = 50, 54
    X0, X1, X2, X3 = 46, 47, 48, 49
    L_KM, L_KX, L_V = 0, 65536, 73728
    MARGIN = 60.0
    V_KA, V_KXA, V_VA = 8, 9, 10
    V_T0 = 12
    QM = [24, 28]; QE = [32, 36]
    KM = [48, 52]; KE = [56, 60]
    VFR = [[64, 68], [72, 76]]
    PP = [80, 88]
    OO = [96, 112]
    SS = [[128, 144], [160, 176]]

def mf(d, a, b, c):
    cs = '0' if c is None else f'v[{c}:{c+15}]'
    return f'v_mfma_f32_32x32x16_bf16 v[{d}:{d+15}], v[{a}:{a+3}], v[{b}:{b+3}], {cs}'
def qk(buf_s, kb, t):
    c = P2; d = c.SS[buf_s][t]
    return [mf(d, c.KM[kb], c.QM[t], None), mf(d, c.KE[kb], c.QE[t], d)]
def kreads(kb, i):
    c = P2
    return [f'ds_read_b128 v[{c.KM[kb]}:{c.KM[kb]+3}], v{c.V_KA} offset:{i*1024}',
            f'ds_read_b32 v{c.KE[kb]}, v{c.V_KXA} offset:{i*128}']
def vreads(vb, i):
    c = P2
    return [f'ds_read_b128 v[{c.VFR[vb][0]}:{c.VFR[vb][0]+3}], v{c.V_VA} offset:{i*1280}',
            f'ds_read_b128 v[{c.VFR[vb][1]}:{c.VFR[vb][1]+3}], v{c.V_VA} offset:{i*1280+640}']

def attn_iter(e, b, off, first=False, extra=()):
    c = P2
    valu = []
    for t in range(2):
        for g in range(2):
            S = c.SS[b][t] + 8 * g
            valu += [f'v_exp_f32 v{S+r}, v{S+r}' for r in range(8)]
            valu += [f'v_cvt_pk_bf16_f32 v{c.PP[t]+4*g+r}, v{S+2*r}, v{S+2*r+1}' for r in range(4)]
    q0 = qk(b ^ 1, b ^ 1, 0); q1 = qk(b ^ 1, b ^ 1, 1)
    pv = lambda t, g, vb: mf(c.OO[t], c.VFR[vb][g], c.PP[t] + 4 * g, c.OO[t])
    ins = {2: [] if first else [pv(1, 1, b ^ 1)], 8: [q0[0]], 14: [q0[1]], 20: [pv(0, 0, b)], 26: [q1[0]], 32: [pv(0, 1, b)], 38: [q1[1]], 44: [pv(1, 0, b)]}
    kr = kreads(b, off + 2); vr = vreads(b ^ 1, off + 1)
    lds = {4: [vr[0]], 10: [vr[1]], 28: [kr[0]], 34: [kr[1]]}
    extra = list(extra)
    xpos = [6, 12, 16, 22, 24, 30, 36, 40, 42, 46] if len(extra) > 6 else [6, 16, 24, 30, 36, 46]
    for i, v in enumerate(valu):
        for x in ins.get(i, []): e.e(x)
        for x in lds.get(i, []): e.e(x)
        if extra and i in xpos:
            for x in extra.pop(0):
                if callable(x): x()
                else: emit_item(e, x)
        e.e(v)
    assert not extra, len(extra)

def kv_grp(base_s, ldsbase, idx_expr, x0=48, x1=49):
    return idx_expr(x1) + [f's_lshl_b32 s{x0}, s{x1}, 10', f's_add_u32 m0, s{x0}, {ldsbase}', f's_add_u32 s{x0}, s{x0}, s{base_s}',
                           f'buffer_load_dwordx4 v{V_L16}, {WS}, s{x0} offen{SCL} lds']
def p2_bases():
    c = P2
    return [f's_lshl_b32 s{c.A}, s{S_J}, 16', f's_add_u32 s{c.A}, s{c.A}, {KF}',
            f's_lshl_b32 s{c.B}, s{S_J}, 13', f's_add_u32 s{c.B}, s{c.B}, {KX}',
            f's_mul_i32 s{c.C}, s{S_J}, {VF_HEAD}', f's_add_u32 s{c.C}, s{c.C}, {VF}']
def p2_prefetch_groups():
    c = P2; W = S_W; g = []
    g.append(kv_grp(c.A, c.L_KM, lambda x: [f's_mov_b32 s{x}, s{W}']))
    g.append(kv_grp(c.C, c.L_V, lambda x: [f's_mov_b32 s{x}, s{W}']))
    g.append(kv_grp(c.B, c.L_KX, lambda x: [f's_mov_b32 s{x}, s{W}']))
    g.append(kv_grp(c.A, c.L_KM, lambda x: [f's_add_u32 s{x}, s{W}, 4']))
    g.append(kv_grp(c.C, c.L_V, lambda x: [f's_add_u32 s{x}, s{W}, 4']))
    g.append(kv_grp(c.C, c.L_V, lambda x: [f's_add_u32 s{x}, s{W}, 8', f's_min_u32 s{x}, s{x}, 9']))
    g.append([f's_lshl_b32 s49, s{S_J}, 6', f's_add_u32 s49, s49, s{c.T0}', 's_lshl_b32 s49, s49, 10', f's_add_u32 s49, s49, {QF}',
              f'buffer_load_dwordx4 v[{c.QM[0]}:{c.QM[0]+3}], v{V_L16}, {WS}, s49 offen{SCL}'])
    g.append([f'buffer_load_dwordx4 v[{c.QM[1]}:{c.QM[1]+3}], v{V_L16}, {WS}, s49 offen offset:1024{SCL}'])
    g.append(['v_lshlrev_b32 v12, 2, v0', 'v_mov_b32 v13, 0x7ff00000', 'v_cmp_gt_u32 vcc, 32, v0', 's_nop 0', 'v_cndmask_b32 v12, v13, v12, vcc',
              f's_lshl_b32 s49, s{S_J}, 13', f's_lshl_b32 s48, s{c.T0}, 7', 's_add_u32 s49, s49, s48', f's_add_u32 s49, s49, {QX}',
              f'buffer_load_dword v{c.QE[0]}, v12, {WS}, s49 offen{SCL}'])
    g.append([f'buffer_load_dword v{c.QE[1]}, v12, {WS}, s49 offen offset:128{SCL}'])
    for i in range(2, 16): g.append(kv_grp(c.A, c.L_KM, lambda x, i=i: [f's_add_u32 s{x}, s{W}, {4*i}']))
    g.append(kv_grp(c.B, c.L_KX, lambda x: [f's_add_u32 s{x}, s{W}, 4']))
    return g

def emit_p2(e, P):
    c = P2
    W = S_W
    grp = lambda base, lb, f: kv_grp(base, lb, f, 46, 47)
    b1 = [grp(c.C, c.L_V, lambda x, i=i: [f's_add_u32 s{x}, s{W}, {10+4*i}', f's_min_u32 s{x}, s{x}, 39']) for i in range(8)]
    b2 = [grp(c.C, c.L_V, lambda x, i=i: [f's_add_u32 s{x}, s{W}, {40+4*i}']) for i in range(10)]
    for t in range(2):
        for r in (1, 2, 3): e.e(f'v_mov_b32 v{c.QE[t]+r}, 0')
        e.e(f'v_mov_b32 v{c.KE[t]+1}, 0x3f80')
        e.e(f'v_mov_b32 v{c.KE[t]+2}, 0'); e.e(f'v_mov_b32 v{c.KE[t]+3}, 0')
    e.e(f'v_mov_b32 v{c.V_KA}, v{V_L16}')
    e.e('v_and_b32 v12, 31, v0')
    e.e(f'v_lshlrev_b32 v{c.V_KXA}, 2, v12')
    e.e(f'v_add_u32 v{c.V_KXA}, {c.L_KX}, v{c.V_KXA}')
    e.e('v_min_u32 v13, 19, v12')
    e.e('v_lshrrev_b32 v14, 5, v0')
    e.e('v_mul_u32_u24 v14, 320, v14')
    e.e(f'v_lshl_add_u32 v{c.V_VA}, v13, 4, v14')
    e.e(f'v_add_u32 v{c.V_VA}, {c.L_V}, v{c.V_VA}')
    for t in range(2):
        for r in range(16): e.e(f'v_mov_b32 v{c.OO[t]+r}, 0')
    P.stamp('c0 ready')
    for x in kreads(0, 0) + kreads(1, 1) + vreads(0, 0): e.e(x)
    for kt in range(2):
        for t in range(2):
            for x in qk(kt, kt, t): e.e(x)
    for t in range(2):
        m = c.V_T0 + t
        e.e(f'v_max3_f32 v{m}, v{c.SS[0][t]}, v{c.SS[0][t]+1}, v{c.SS[0][t]+2}')
        regs = [c.SS[0][t] + r for r in range(3, 16)] + [c.SS[1][t] + r for r in range(16)]
        while len(regs) >= 2:
            e.e(f'v_max3_f32 v{m}, v{m}, v{regs[0]}, v{regs[1]}'); regs = regs[2:]
        if regs: e.e(f'v_max_f32 v{m}, v{m}, v{regs[0]}')
    e.e(f's_mov_b32 s{c.X0}, {fh(c.MARGIN)}')
    for t in range(2):
        m = c.V_T0 + t; x = c.V_T0 + 2 + t
        e.e(f'v_mov_b32 v{x}, v{m}')
        e.e(f'v_permlane32_swap_b32 v{m}, v{x}')
        e.e(f'v_max_f32 v{m}, v{m}, v{x}')
        e.e(f'v_add_f32 v{m}, s{c.X0}, v{m}')
        e.e(f'v_cvt_pk_bf16_f32 v{m}, -v{m}, 0')
        e.e('v_cmp_gt_u32 vcc, 32, v0')
        e.e(f'v_cndmask_b32 v{c.QE[t]+1}, 0, v{m}, vcc')
    for t in range(2):
        for x in qk(0, 0, t): e.e(x)
    P.stamp('max done')
    def body(first=False, extra=()):
        extra = list(extra); h = (len(extra) + 1) // 2
        attn_iter(e, 0, 0, first=first, extra=extra[:h])
        attn_iter(e, 1, 1, extra=extra[h:])
        e.e(f'v_add_u32 v{c.V_KA}, 2048, v{c.V_KA}')
        e.e(f'v_add_u32 v{c.V_KXA}, 256, v{c.V_KXA}')
        e.e(f'v_add_u32 v{c.V_VA}, 2560, v{c.V_VA}')
    body(True, b1[:4]); body(False, b1[4:]); body()
    e.wait_vm0(); e.e('s_barrier')
    body()
    body(False, b2[:4]); body(False, b2[4:8]); body(False, b2[8:]); body()
    P.stamp('trip1 done')
    make_srd(e, S_R0, P_WD, 4608 * 1152)
    e.e(f's_bfe_u32 s{c.X0}, s2, 0x20001')
    e.e(f's_mul_i32 s55, s{c.X0}, {1152*1152}')
    e.e(f's_lshr_b32 s{c.X0}, s2, 3')
    e.e(f's_lshl_b32 s{c.X0}, s{c.X0}, 2')
    e.e(f's_add_u32 s{c.X0}, s{c.X0}, s{S_W}')
    e.e(f's_mul_i32 s{c.X0}, s{c.X0}, {1152*1152 // 128}')
    e.e(f's_add_u32 s55, s55, s{c.X0}')
    warm = [[f'buffer_load_dwordx4 v[224:227], v{V_L16}, s[{S_R0}:{S_R0+3}], s55 offen', 's_add_u32 s55, s55, 1024'] for _ in range(3)]
    e.e(f's_mov_b32 s{c.TRIP}, 2')
    lab = f'{NAME}_p2loop'
    e.label(lab)
    st0 = e.state(); m0 = e.mark()
    e.raw('    s_waitcnt vmcnt(0)'); e.vm_q = []
    e.e('s_barrier')
    auto = e.auto
    body(False, [[('RAW', warm[0][0]), warm[0][1]]]); body(False, [[('RAW', warm[1][0]), warm[1][1]]]); body(False, [[('RAW', warm[2][0]), warm[2][1]]]); body()
    e.e(f's_add_u32 s{c.TRIP}, s{c.TRIP}, 1')
    e.e(f's_cmp_lt_u32 s{c.TRIP}, 6')
    e.e(f's_cbranch_scc1 {lab}')
    bad = e.check_loop(m0); assert not bad, bad
    st1 = e.state(); assert [a for a, b in st0[0]] == [a for a, b in st1[0]], (st0[0], st1[0])
    e.raw('    s_waitcnt vmcnt(0)'); e.vm_q = []
    sa, sb = p3_setup()
    ca = [sa[i:i+6] for i in range(0, len(sa), 6)]
    cb_ = [sb[i:i+10] for i in range(0, len(sb), 10)]
    pi = poll_issue(e, F_H, p3_ids8(47), 8, 4)
    bl = []
    for u in range(8): bl += p3_bload_groups(0, base=32 * u)
    t6 = [pi] + ca + cb_[:9] + [[lambda: poll_check(e, 8, 4)]]
    rest_b = cb_[9:]
    k = 0
    while len(t6) < 56:
        t6.append(bl.pop(0))
        if rest_b: t6.append(rest_b.pop(0))
    assert not rest_b
    q4 = -(-len(t6) // 4)
    for i in range(4): body(False, t6[i*q4:(i+1)*q4])
    e.e('s_barrier')
    p3_srds(e)
    w0 = p3_dma_unit(P3.WD, P3.V_DO, P3.R[0])
    w1 = p3_dma_unit(P3.WD, P3.V_DO, P3.R[1])
    w1[0] = [f's_add_u32 s{P3.WOFF}, s{P3.WOFF}, {128*1152}'] + w1[0]
    t7 = []
    ws_ = w0 + w1
    while bl or ws_:
        if ws_: t7.append(ws_.pop(0))
        if bl: t7.append(bl.pop(0))
        if bl: t7.append(bl.pop(0))
    q4 = -(-len(t7) // 4)
    for i in range(4): body(False, t7[i*q4:(i+1)*q4])
    e.e(f's_add_u32 s{P3.WOFF}, s{P3.WOFF}, {128*1152}')
    P.stamp('p2 loop done')
    e.e(mf(c.OO[1], c.VFR[1][1], c.PP[1] + 4, c.OO[1]))
    e.e(f's_mov_b32 s{c.X0}, {fh(2.0**120)}')
    for t in range(2):
        O = c.OO[t]; l = c.V_T0 + t; x = c.V_T0 + 2 + t; mx = c.V_T0 + 4 + t
        e.e(f'v_mov_b32 v{l}, v{O+10}')
        e.e(f'v_mov_b32 v{x}, v{O+10}')
        e.e(f'v_max3_f32 v{mx}, |v{O}|, |v{O+1}|, |v{O+2}|')
        for r in range(3, 9, 2): e.e(f'v_max3_f32 v{mx}, v{mx}, |v{O+r}|, |v{O+r+1}|')
        e.e(f'v_max3_f32 v{mx}, v{mx}, |v{O+9}|, |v{O+10}|')
        e.e(f'v_permlane32_swap_b32 v{l}, v{x}')
    e.e(f'v_cmp_nge_f32 vcc, s{c.X0}, v{c.V_T0+4}')
    e.e(f's_mov_b64 s[{c.X2}:{c.X3}], vcc')
    e.e(f'v_cmp_nge_f32 vcc, s{c.X0}, v{c.V_T0+5}')
    e.e(f's_or_b64 vcc, vcc, s[{c.X2}:{c.X3}]')
    e.e(f's_cmp_lg_u64 vcc, 0')
    e.e(f's_cselect_b32 s{c.X0}, 1, 0')
    e.e(f'v_mov_b32 v{c.V_T0+7}, s{c.X0}')
    e.e(f's_lshl_b32 s{c.X1}, s{S_W}, 2')
    e.e(f's_add_u32 s{c.X1}, s{c.X1}, {L_MISC + 16}')
    e.e(f'v_mov_b32 v{c.V_T0+8}, s{c.X1}')
    e.e(f'ds_write_b32 v{c.V_T0+8}, v{c.V_T0+7}')
    e.label(f'{NAME}_p2fin')
    for t in range(2):
        O = c.OO[t]; l = c.V_T0 + t
        e.e(f'v_rcp_f32 v{l}, v{l}')
        for r in range(10): e.e(f'v_mul_f32 v{O+r}, v{O+r}, v{l}')
        pk = 128 + 8 * t
        for r in range(5): e.e(f'v_cvt_pk_bf16_f32 v{pk+r}, v{O+2*r}, v{O+2*r+1}')
        e.e(f's_add_u32 s{c.X1}, s{c.T0}, {t}')
        e.e(f's_mul_i32 s{c.X1}, s{c.X1}, 36864')
        e.e(f's_add_u32 s{c.X1}, s{c.X1}, {OF}')
        e.e(f's_lshl_b32 s{c.X2}, s{S_J}, 10')
        e.e(f's_add_u32 s{c.X2}, s{c.X2}, s{c.X1}')
        e.e(f'buffer_store_dwordx4 v[{pk}:{pk+3}], v{V_L16}, {WS}, s{c.X2} offen{SC}')
        e.e(f's_lshr_b32 s{c.X2}, s{S_J}, 3')
        e.e(f's_add_u32 s{c.X2}, s{c.X2}, 32')
        e.e(f's_lshl_b32 s{c.X2}, s{c.X2}, 10')
        e.e(f's_add_u32 s{c.X1}, s{c.X1}, s{c.X2}')
        e.e(f's_bfe_u32 s{c.X2}, s{S_J}, 0x10002')
        e.e(f's_lshl_b32 s{c.X2}, s{c.X2}, 9')
        e.e(f's_add_u32 s{c.X1}, s{c.X1}, s{c.X2}')
        e.e(f's_and_b32 s{c.X2}, s{S_J}, 3')
        e.e(f's_lshl_b32 s{c.X2}, s{c.X2}, 2')
        e.e(f's_add_u32 s{c.X1}, s{c.X1}, s{c.X2}')
        if t == 0:
            e.e(f'v_mov_b32 v{c.V_T0+6}, 0x7ff00000')
            e.e('v_cmp_gt_u32 vcc, 32, v0')
            e.e(f'v_cndmask_b32 v{c.V_T0+6}, v{c.V_T0+6}, v{V_L16}, vcc')
        e.e(f'buffer_store_dword v{pk+4}, v{c.V_T0+6}, {WS}, s{c.X1} offen{SC}')
    e.wait_all()
    e.e('s_barrier')
    e.e(f'v_mov_b32 v{c.V_T0+8}, {L_MISC + 16}')
    e.e(f'ds_read_b128 v[{c.V_T0+4}:{c.V_T0+7}], v{c.V_T0+8}')
    e.e(f'v_or3_b32 v{c.V_T0+4}, v{c.V_T0+4}, v{c.V_T0+5}, v{c.V_T0+6}')
    e.e(f'v_or_b32 v{c.V_T0+4}, v{c.V_T0+4}, v{c.V_T0+7}')
    e.e(f'v_readfirstlane_b32 s{c.X0}, v{c.V_T0+4}')
    e.e(f's_cmp_lg_u32 s{c.X0}, 0')
    e.e(f's_cbranch_scc1 {NAME}_p2slow')
    e.label(f'{NAME}_p2ok')
    publish(e, F_O)
    P.stamp('p2 done'); P.stamp('rp2 done', real=True)

def emit_p2_slow(e):
    c = P2
    e.label(f'{NAME}_p2slow')
    e.lds_q = []; e.vm_q = []
    e.e('s_waitcnt vmcnt(0) lgkmcnt(0)')
    e.e('s_barrier')
    e.e(f'v_mov_b32 v{c.V_T0+7}, 0')
    e.e(f's_lshl_b32 s{c.X1}, s{S_W}, 2')
    e.e(f's_add_u32 s{c.X1}, s{c.X1}, {L_MISC + 16}')
    e.e(f'v_mov_b32 v{c.V_T0+8}, s{c.X1}')
    e.e(f'ds_write_b32 v{c.V_T0+8}, v{c.V_T0+7}')
    for i in range(9):
        for x in kv_grp(c.A, c.L_KM, lambda x, i=i: [f's_add_u32 s{x}, s{S_W}, {4*i}'], 46, 47): e.e(x)
        for x in kv_grp(c.C, c.L_V, lambda x, i=i: [f's_add_u32 s{x}, s{S_W}, {4*i}'], 46, 47): e.e(x)
    e.e('s_waitcnt vmcnt(0) lgkmcnt(0)')
    e.e('s_barrier')
    MX = [160, 161]; AL = 162; TM = 163; TX = 164
    for t in range(2):
        e.e(f'v_mov_b32 v{c.QE[t]+1}, 0')
        e.e(f'v_mov_b32 v{MX[t]}, 0xff7fffff')
        for r in range(16): e.e(f'v_mov_b32 v{c.OO[t]+r}, 0')
    e.e(f'v_subrev_u32 v{c.V_KA}, {32*2048}, v{c.V_KA}')
    e.e(f'v_subrev_u32 v{c.V_KXA}, {32*256}, v{c.V_KXA}')
    e.e(f'v_subrev_u32 v{c.V_VA}, {32*2560}, v{c.V_VA}')
    e.e(f's_mov_b32 s{c.TRIP}, 0')
    lab = f'{NAME}_p2slowloop'
    e.label(lab)
    ms = e.mark()
    for x in kreads(0, 0) + vreads(0, 0): e.e(x)
    for t in range(2):
        for x in qk(0, 0, t): e.e(x)
    for t in range(2):
        S = c.SS[0][t]
        e.e(f'v_max3_f32 v{TM}, v{S}, v{S+1}, v{S+2}')
        for r in range(3, 15, 2): e.e(f'v_max3_f32 v{TM}, v{TM}, v{S+r}, v{S+r+1}')
        e.e(f'v_max_f32 v{TM}, v{TM}, v{S+15}')
        e.e(f'v_mov_b32 v{TX}, v{TM}')
        e.e(f'v_permlane32_swap_b32 v{TM}, v{TX}')
        e.e(f'v_max3_f32 v{TM}, v{TM}, v{TX}, v{MX[t]}')
        e.e(f'v_sub_f32 v{AL}, v{MX[t]}, v{TM}')
        e.e(f'v_exp_f32 v{AL}, v{AL}')
        e.e(f'v_mov_b32 v{MX[t]}, v{TM}')
        for r in range(16): e.e(f'v_sub_f32 v{S+r}, v{S+r}, v{TM}')
        for r in range(16): e.e(f'v_exp_f32 v{S+r}, v{S+r}')
        for r in range(16): e.e(f'v_mul_f32 v{c.OO[t]+r}, v{c.OO[t]+r}, v{AL}')
        for r in range(8): e.e(f'v_cvt_pk_bf16_f32 v{c.PP[t]+r}, v{S+2*r}, v{S+2*r+1}')
        for g in range(2): e.e(mf(c.OO[t], c.VFR[0][g], c.PP[t] + 4 * g, c.OO[t]))
    e.e(f'v_add_u32 v{c.V_KA}, 1024, v{c.V_KA}')
    e.e(f'v_add_u32 v{c.V_KXA}, 128, v{c.V_KXA}')
    e.e(f'v_add_u32 v{c.V_VA}, 1280, v{c.V_VA}')
    e.e('s_nop 15')
    e.e(f's_add_u32 s{c.TRIP}, s{c.TRIP}, 1')
    e.e(f's_cmp_lt_u32 s{c.TRIP}, 64')
    e.e(f's_cbranch_scc1 {lab}')
    bad = e.check_loop(ms); assert not bad, bad
    e.e('s_nop 15')
    e.e('s_waitcnt lgkmcnt(0)')
    e.e('s_barrier')
    e.e(f's_sub_u32 s{P3.WOFF}, s{P3.WOFF}, {2*128*1152}')
    for g in p3_dma_unit(P3.WD, P3.V_DO, P3.R[0]):
        for x in g: e.e(x)
    e.e(f's_add_u32 s{P3.WOFF}, s{P3.WOFF}, {128*1152}')
    for g in p3_dma_unit(P3.WD, P3.V_DO, P3.R[1]):
        for x in g: e.e(x)
    e.e(f's_add_u32 s{P3.WOFF}, s{P3.WOFF}, {128*1152}')
    for t in range(2):
        O = c.OO[t]; l = c.V_T0 + t; x = c.V_T0 + 2 + t
        e.e(f'v_mov_b32 v{l}, v{O+10}')
        e.e(f'v_mov_b32 v{x}, v{O+10}')
        e.e(f'v_permlane32_swap_b32 v{l}, v{x}')
    e.e(f's_branch {NAME}_p2fin')

class P3:
    WD, WO = S_R0, S_R1
    C2, MT, CQ, TT, HB, WOFF, U = 55, 56, 57, 58, 59, 60, 61
    R = [62, 63, 64, 68]
    A, B = 46, 47
    V_DO, V_D2, V_DX = 192, 201, 210
    V_RB, V_RD, V_BO = 219, 220, 222
    AF = 32
    NSLOT, DIST = 6, 4
    BF = [0, 32]
    ACC = 96
    UNIT = 36864
    SLOTS = [0, 73728, 36864, 110592]

def p3_areads(vrd, ks, cb, slot):
    b = P3.AF + 4 * slot
    o = ks * 9216 + cb * 32
    return [f'ds_read_b64_tr_b16 v[{b}:{b+1}], v{vrd} offset:{o}',
            f'ds_read_b64_tr_b16 v[{b+2}:{b+3}], v{vrd} offset:{o + 8*288}']

def poll_ids(e, phase, idexpr, n):
    for x in idexpr: e.e(x)
    poll(e, phase, 3, n)

def p3_ids8(a):
    return ['v_and_b32 v3, 7, v0', 'v_lshlrev_b32 v3, 5, v3', f's_lshr_b32 s{a}, s2, 6', f's_lshl_b32 s{a}, s{a}, 3',
            f'v_add_u32 v3, s{a}, v3', f's_and_b32 s{a}, s2, 7', f'v_add_u32 v3, s{a}, v3']

def p3_setup():
    c = P3; o = []
    t0, t1, t2 = 223, 12, 13
    o += [f's_bfe_u32 s{c.C2}, s2, 0x20001', f's_and_b32 s{c.MT}, s2, 1', f's_lshl_b32 s{c.MT}, s{c.MT}, 3', f's_lshr_b32 s{c.A}, s2, 5',
          f's_add_u32 s{c.MT}, s{c.MT}, s{c.A}', f's_bfe_u32 s{c.CQ}, s2, 0x20003', f's_lshl_b32 s{c.TT}, s{c.MT}, 2', f's_add_u32 s{c.TT}, s{c.TT}, s{S_W}']
    o += [f'v_lshrrev_b32 v{t0}, 5, v0', f'v_lshlrev_b32 v{t0}, 10, v{t0}', f'v_bfe_u32 v{t1}, v0, 4, 1', f'v_lshl_add_u32 v{t0}, v{t1}, 9, v{t0}',
          f'v_and_b32 v{t1}, 15, v0', f'v_lshl_add_u32 v{c.V_BO}, v{t1}, 4, v{t0}']
    o += [f's_mul_i32 s{c.HB}, s{c.TT}, {288*1024}', f's_mul_i32 s{c.A}, s{c.C2}, {72*1024}', f's_add_u32 s{c.HB}, s{c.HB}, s{c.A}', f's_add_u32 s{c.HB}, s{c.HB}, {HF}']
    first = o; o = []
    o += [f's_mul_i32 s{c.WOFF}, s{c.C2}, {72*16}', f's_lshl_b32 s{c.A}, s{S_W}, 5', f's_add_u32 s{c.WOFF}, s{c.WOFF}, s{c.A}', f's_mul_i32 s{c.WOFF}, s{c.WOFF}, 1152']
    o += [f's_mov_b32 s{c.R[i]}, {c.SLOTS[i]}' for i in range(4)]
    o += [f's_mul_i32 s{c.U}, s{c.CQ}, 288', f's_mov_b32 s{c.B}, {(2**32 + 287) // 288}']
    for j in range(9):
        o += [f'v_add_u32 v{t0}, {j*1024}, v{V_L16}',
              f'v_mul_hi_u32 v{t1}, v{t0}, s{c.B}',
              f'v_mul_u32_u24 v{t2}, 288, v{t1}',
              f'v_sub_u32 v{t0}, v{t0}, v{t2}',
              f'v_add_u32 v{t0}, s{c.U}, v{t0}',
              f'v_mul_u32_u24 v{t2}, 1152, v{t1}',
              f'v_add_u32 v{c.V_DO+j}, v{t0}, v{t2}',
              f'v_lshrrev_b32 v{t2}, 4, v{t1}',
              f'v_mul_u32_u24 v{t2}, {2*1152}, v{t2}',
              f'v_add_u32 v{c.V_D2+j}, v{c.V_DO+j}, v{t2}',
              f'v_bfe_u32 v{t2}, v{t1}, 2, 1', f'v_lshlrev_b32 v{t2}, 2, v{t2}', f'v_bfe_u32 v14, v{t1}, 1, 1', f'v_add_u32 v{t2}, v{t2}, v14',
              f'v_bfe_u32 v14, v{t1}, 3, 1', f'v_lshl_add_u32 v{t2}, v14, 1, v{t2}', f'v_mul_u32_u24 v{t2}, 18, v{t2}', f'v_and_b32 v14, 1, v{t1}',
              f'v_add3_u32 v{t2}, v{t2}, v14, 16', f'v_mul_u32_u24 v{t2}, 1152, v{t2}', f'v_add_u32 v{c.V_DX+j}, v{t0}, v{t2}']
    o += [f'v_lshrrev_b32 v{t0}, 5, v0', f'v_lshlrev_b32 v{t0}, 4, v{t0}', f'v_bfe_u32 v{t1}, v0, 4, 1', f'v_lshl_add_u32 v{t0}, v{t1}, 2, v{t0}',
          f'v_bfe_u32 v{t1}, v0, 2, 2', f'v_add_u32 v{t0}, v{t0}, v{t1}', f'v_mul_u32_u24 v{t0}, 288, v{t0}', f'v_and_b32 v{t1}, 3, v0',
          f'v_lshl_add_u32 v{c.V_RB}, v{t1}, 3, v{t0}']
    return first, o

def p3_srds(e):
    make_srd(e, P3.WD, P_WD, 4608 * 1152)
    make_srd(e, P3.WO, P_WO, 576 * 1152)

def p3_dma_unit(srd, vo, rslot):
    c = P3; out = []
    for j in range(9):
        g = []
        if j == 0: g += [f's_mul_i32 s48, s{S_W}, 9216', f's_add_u32 s48, s48, s{rslot}']
        g += [f's_add_u32 m0, s48, {j*1024}', f'buffer_load_dwordx4 v{vo+j}, s[{srd}:{srd+3}], s{c.WOFF} offen lds']
        out.append(g)
    return out

def p3_bloads(base):
    c = P3
    return [f'buffer_load_dwordx4 a[{base+8*k+4*th}:{base+8*k+4*th+3}], v{c.V_BO}, {WS}, s{c.HB} offen offset:{(k%2)*2048+th*256}{SCL}'
            for k in range(4) for th in range(2)]

def p3_bload_groups(buf, base=None):
    c = P3; L = p3_bloads(base); out = []
    for i, x in enumerate(L):
        g = []
        if i == 4: g.append(f's_add_u32 s{c.HB}, s{c.HB}, 4096')
        g.append(x)
        if i == 7: g.append(f's_add_u32 s{c.HB}, s{c.HB}, 4096')
        out.append(g)
    return out

def emit_p3(e, P, prefetched):
    c = P3
    e.e(f'v_add_u32 v{c.V_RD}, s{c.R[0]}, v{c.V_RB}')
    P.stamp('p3 u0 ready')
    seq = [(ks, cb) for ks in range(4) for cb in range(9)]
    for i in range(c.DIST):
        for x in p3_areads(c.V_RD, seq[i][0], seq[i][1], i % c.NSLOT): e.e(x)
    def unit(bb, first, dma, bl, nks=4, nxt=True, hook=None):
        n = nks * 9
        fl = [list(g) for g in dma]; bl = [list(g) for g in bl]
        e.e(f'v_add_u32 v{c.V_RD+1}, s{c.R[1]}, v{c.V_RB}')
        for i in range(n):
            ks, cb = seq[i]
            if i == n - c.DIST and nxt:
                wait_tags(e, ('dma_prev',))
                e.e('s_barrier')
            if hook and i == hook[0]: hook[1]()
            j = i + c.DIST
            rd = []
            if j < n: rd = p3_areads(c.V_RD, seq[j][0], seq[j][1], j % c.NSLOT)
            elif nxt: rd = p3_areads(c.V_RD + 1, seq[j - n][0], seq[j - n][1], j % c.NSLOT)
            a = c.AF + 4 * (i % c.NSLOT)
            g = None
            for th in range(2):
                d = c.ACC + 4 * (th * 9 + cb); b = bb + 8 * ks + 4 * th
                cc = '0' if (first and ks == 0) else f'v[{d}:{d+3}]'
                e.e(f'v_mfma_f32_16x16x32_bf16 v[{d}:{d+3}], v[{a}:{a+3}], a[{b}:{b+3}], {cc}')
                if th == 0:
                    if fl and i % 3 == 1:
                        g = fl.pop(0)
                        for x in g[:-1]: e.e(x)
                    if rd: e.e(rd[0])
                else:
                    if rd: e.e(rd[1])
                    if g: e.e(g[-1], tag='dma'); g = None
                    if bl and i % 4 == 3:
                        for x in bl.pop(0): e.e(x)
        assert not fl and not bl
        e.e(f'v_mov_b32 v{c.V_RD}, v{c.V_RD+1}')
        e.e(f's_mov_b32 s{c.A}, s{c.R[0]}')
        for i in range(3): e.e(f's_mov_b32 s{c.R[i]}, s{c.R[i+1]}')
        e.e(f's_mov_b32 s{c.R[3]}, s{c.A}')
    def retag():
        e.vm_q = [(d, 'dma_prev' if t == 'dma' else t) for d, t in e.vm_q]
    adv = lambda: e.e(f's_add_u32 s{c.WOFF}, s{c.WOFF}, {128*1152}')
    for u in range(7):
        if u == 6:
            for x in poll_issue(e, F_O, p3_ids8(c.A), 8, 8): emit_item(e, x)
        retag()
        unit(32 * u, u == 0, p3_dma_unit(c.WD, c.V_DO, c.R[2]), p3_bload_groups(0, base=0) if u == 1 else [])
        adv()
    P.stamp('p3 loop')
    e.e(f's_lshl_b32 s{c.WOFF}, s{c.C2}, 3')
    e.e(f's_lshl_b32 s{c.A}, s{S_W}, 1')
    e.e(f's_add_u32 s{c.WOFF}, s{c.WOFF}, s{c.A}')
    e.e(f's_mul_i32 s{c.WOFF}, s{c.WOFF}, {18*1152}')
    retag()
    unit(32 * 7, False, p3_dma_unit(c.WO, c.V_D2, c.R[2]), [])
    e.e(f's_mul_i32 s{c.WOFF}, s{c.C2}, {144*1152}')
    e.e(f's_mul_i32 s{c.HB}, s{c.TT}, 36864')
    e.e(f's_lshl_b32 s{c.A}, s{c.C2}, 13')
    e.e(f's_add_u32 s{c.HB}, s{c.HB}, s{c.A}')
    e.e(f's_add_u32 s{c.HB}, s{c.HB}, {OF}')
    poll_check(e, 8, 8)
    retag()
    unit(0, False, p3_dma_unit(c.WO, c.V_DX, c.R[2]), p3_bload_groups(0, base=32))
    e.e(f's_mul_i32 s{c.HB}, s{c.TT}, 36864')
    e.e(f's_add_u32 s{c.A}, s{c.C2}, 32')
    e.e(f's_lshl_b32 s{c.A}, s{c.A}, 10')
    e.e(f's_add_u32 s{c.HB}, s{c.HB}, s{c.A}')
    e.e(f's_add_u32 s{c.HB}, s{c.HB}, {OF}')
    e.e('v_mov_b32 v12, 0x7ff00000')
    e.e('v_cmp_gt_u32 vcc, 32, v0')
    e.e(f'v_cndmask_b32 v12, v12, v{c.V_BO}, vcc')
    ext = [[f'buffer_load_dwordx4 a[{64+4*th}:{64+4*th+3}], v12, {WS}, s{c.HB} offen offset:{th*256}{SCL}'] for th in range(2)]
    retag()
    unit(32, False, [], ext)
    unit(64, False, [], [], nks=1, nxt=False)
    P.stamp('p3 k done'); P.stamp('rp3 k done', real=True)
    e.e(f's_mul_i32 s{c.A}, s{c.C2}, {64*36*1024}')
    e.e(f's_mul_i32 s{c.B}, s{c.TT}, {36*1024}')
    e.e(f's_add_u32 s{c.A}, s{c.A}, s{c.B}')
    e.e(f's_mul_i32 s{c.B}, s{c.CQ}, {9*1024}')
    e.e(f's_add_u32 s{c.A}, s{c.A}, s{c.B}')
    e.e(f's_add_u32 s{c.A}, s{c.A}, {PART}')
    for cb in range(9):
        pk = 32 + 4 * (cb % 6)
        for th in range(2):
            d = c.ACC + 4 * (th * 9 + cb)
            for r in range(2): e.e(f'v_cvt_pk_bf16_f32 v{pk+2*th+r}, v{d+2*r}, v{d+2*r+1}')
        if cb and cb % 4 == 0: e.e(f's_add_u32 s{c.A}, s{c.A}, 4096')
        e.e(f'buffer_store_dwordx4 v[{pk}:{pk+3}], v{V_L16}, {WS}, s{c.A} offen offset:{(cb%4)*1024}{SC}')
    e.wait_all()
    e.e('s_barrier')
    publish(e, F_PART)
    P.stamp('p3 done')

def emit_p4_pre(e):
    c = P3
    X, OUT = S_R0, S_R1
    make_srd(e, X, P_X, 2048 * 1152)
    make_srd(e, OUT, P_OUT, 2048 * 1152)
    TF, RO, PB = 50, 51, 52
    e.e(f's_lshl_b32 s{TF}, s{c.MT}, 2')
    e.e(f's_add_u32 s{TF}, s{TF}, s{c.C2}')
    e.e(f's_mul_i32 s{RO}, s{TF}, {32*1152}')
    e.e(f's_mul_i32 s{c.A}, s{c.CQ}, 288')
    e.e(f's_add_u32 s{RO}, s{RO}, s{c.A}')
    e.e(f's_mul_i32 s{PB}, s{TF}, {36*1024}')
    e.e(f's_mul_i32 s{c.A}, s{c.CQ}, {9*1024}')
    e.e(f's_add_u32 s{PB}, s{PB}, s{c.A}')
    e.e(f's_add_u32 s{PB}, s{PB}, {PART}')
    e.e('v_and_b32 v14, 15, v0')
    e.e('v_mul_u32_u24 v14, 1152, v14')
    e.e('v_lshrrev_b32 v15, 4, v0')
    e.e('v_lshl_add_u32 v16, v15, 3, v14')
    e.e('v_and_b32 v17, 1, v15')
    e.e(f'v_mul_u32_u24 v17, {16*1152}, v17')
    e.e('v_add_u32 v17, v17, v14')
    e.e('v_lshrrev_b32 v15, 1, v15')
    e.e('v_lshl_add_u32 v17, v15, 4, v17')
    for k in range(3):
        e.e(f's_add_u32 s{53+k}, s{S_W}, {4*k}')
        e.e(f's_cmp_lt_u32 s{53+k}, 9')
        e.e(f's_cselect_b32 s{56+k+10}, 0, 0x70000000')
        e.e(f's_lshl_b32 s{c.A}, s{53+k}, 5')
        e.e(f's_add_u32 s{c.A}, s{c.A}, s{RO}')
        e.e(f's_add_u32 s{c.A}, s{c.A}, s{66+k}')
        e.e(f'v_add_u32 v{8+k}, s{c.A}, v16')
        e.e(f'v_add_u32 v{11+k}, s{c.A}, v17')
        e.e(f's_lshl_b32 s{53+k}, s{53+k}, 10')
        e.e(f's_add_u32 s{53+k}, s{53+k}, s{PB}')
        e.e(f's_add_u32 s{53+k}, s{53+k}, s{66+k}')
    for k in range(3):
        e.e(f'buffer_load_dwordx2 v[{20+4*k}:{21+4*k}], v{8+k}, s[{X}:{X+3}], 0 offen')
        e.e(f's_mov_b32 s{c.A}, {16*1152}')
        e.e(f'buffer_load_dwordx2 v[{22+4*k}:{23+4*k}], v{8+k}, s[{X}:{X+3}], s{c.A} offen')

def emit_p4(e, P):
    c = P3
    OUT = S_R1
    ids = ['v_and_b32 v3, 3, v0', 'v_lshlrev_b32 v3, 1, v3', f's_and_b32 s{c.A}, s2, 0xf9', f'v_add_u32 v3, s{c.A}, v3']
    poll_ids(e, F_PART, ids, 4)
    P.stamp('p4 polled')
    PR = 64
    for k in range(3):
        for cc in range(4):
            r = PR + (k * 4 + cc) * 4
            e.e(f'buffer_load_dwordx4 v[{r}:{r+3}], v{V_L16}, {WS}, s{53+k} offen{SCL}')
            if cc < 3: e.e(f's_add_u32 s{53+k}, s{53+k}, {64*36*1024}')
    for k in range(3):
        A = 128 + 16 * k; Tm = A + 8
        for i in range(4):
            e.e(f'v_lshlrev_b32 v{A+2*i}, 16, v{20+4*k+i}')
            e.e(f'v_and_b32 v{A+2*i+1}, 0xffff0000, v{20+4*k+i}')
        for cc in range(4):
            r = PR + (k * 4 + cc) * 4
            for i in range(4):
                e.e(f'v_lshlrev_b32 v{Tm+2*i}, 16, v{r+i}')
                e.e(f'v_and_b32 v{Tm+2*i+1}, 0xffff0000, v{r+i}')
            for i in range(8): e.e(f'v_add_f32 v{A+i}, v{A+i}, v{Tm+i}')
        D = 40 + 4 * k
        for i in range(4): e.e(f'v_cvt_pk_bf16_f32 v{D+i}, v{A+2*i}, v{A+2*i+1}')
        e.e(f'v_permlane16_swap_b32 v{D}, v{D+2}')
        e.e(f'v_permlane16_swap_b32 v{D+1}, v{D+3}')
        e.e(f'buffer_store_dwordx4 v[{D}:{D+3}], v{11+k}, s[{OUT}:{OUT+3}], 0 offen')
    P.stamp('p4 stores issued')

def gen_mega(prof=False):
    e = Emitter()
    header(e, NAME)
    P = Prof2(e, prof)
    P.stamp('start', hold=True); P.stamp('rstart', real=True, hold=True)
    emit_start(e, P)
    l1 = e.newlabel('w23'); l2 = e.newlabel('join'); l4 = e.newlabel('w3')
    e.e(f's_cmp_ge_u32 s{S_W}, 2')
    e.e(f's_cbranch_scc1 {l1}')
    emit_ln(e, P)
    p1_setup(e)
    e.e(f's_branch {l2}')
    e.label(l1)
    e.vm_q = []; e.lds_q = []
    e.e(f's_cmp_eq_u32 s{S_W}, 2')
    e.e(f's_cbranch_scc0 {l4}')
    p1_setup(e, first=True)
    e.e(f's_branch {l2}')
    e.label(l4)
    e.vm_q = []; e.lds_q = []
    emit_nonce(e)
    p1_setup(e)
    e.label(l2)
    e.vm_q = []; e.lds_q = []
    P.stamp('pre bar1', hold=True)
    e.e('s_barrier')
    P.stamp('bar1', hold=True)
    read_nonce(e)
    l3 = e.newlabel('lnp')
    e.e(f's_cmp_lg_u32 s{S_W}, 0')
    e.e(f's_cbranch_scc1 {l3}')
    emit_ln_store(e)
    P.stamp('ln stored', hold=True)
    publish(e, F_LN)
    e.e('v_and_b32 v3, 31, v0')
    e.e(f's_lshl_b32 s{T[0]}, s{S_MI}, 5')
    e.e(f'v_add_u32 v3, s{T[0]}, v3')
    poll(e, F_LN, 3, 32)
    e.label(l3)

    pass
    e.raw('    s_waitcnt vmcnt(0)'); e.vm_q = []
    pass
    e.e('s_barrier')
    P.stamp('ln synced'); P.stamp('rln synced', real=True)
    emit_p1(e, P)
    emit_p2(e, P)
    emit_p3(e, P, False)
    emit_p4_pre(e)
    emit_p4(e, P)
    if prof:
        e.e('s_waitcnt vmcnt(0)')
        P.stamp('done'); P.stamp('rend', real=True)
        P.dump(P_WS, S_W)
    e.e('s_endpgm')
    emit_p2_slow(e)
    emit_slow_polls(e)
    e.label(f'{NAME}_end')
    e.e('s_endpgm')
    print(f'mega: {len(e.out)} lines, nops {e.nops}, waits {e.waits}')
    return e.text(), descriptor(NAME, 256, 256, ns=102), dict(name=NAME, grid=256, block=256, lds=LDS_TOTAL, prof=P.names)

if __name__ == '__main__':
    import sys, json
    from build import HEAD
    from asmlib import build
    prof = 'prof' in sys.argv
    if 'plainld' in sys.argv: SCL = ''
    t, d, i = gen_mega(prof)
    s = HEAD + f"; @launch grid=({i['grid']},1,1) block=({i['block']},1,1) lds={i['lds']}\n"
    s += '.amdgcn_target "amdgcn-amd-amdhsa--gfx950"\n.text\n' + t + '.section .rodata,"a"\n' + d
    open('mega.s', 'w').write(s)
    build(s, NAME, 'mega.co')
    json.dump({NAME: i['prof']}, open('mega.json', 'w'))
    print('built', len(s))
```

```python
from kcommon import *

NAME = 'parallel_sum__softmax_full_mha__swiglu_ffn__prompt_kernel'
P_X, P_WQKV, P_WO, P_BX, P_WG, P_WU, P_WD, P_OUT, P_DBG, P_WS = 4, 6, 8, 10, 12, 14, 16, 18, 20, 22
S_WS, S_R0, S_R1, S_R2 = 24, 28, 32, 36
S_MI, S_J, S_W, S_C = 40, 41, 42, 43
S_NONCE = 44
T = list(range(46, 70))
WS = f's[{S_WS}:{S_WS+3}]'
F_LN, F_KV, F_H, F_O, F_PART = 0, 1, 2, 3, 4
LDS_TOTAL = 163840
L_MISC = 163840 - 256
V_L16 = 2
S_SPIN = 69
SPIN_MAX = 400000
SCL = ' sc1'
SCX = ' sc1'
SC = ' sc1'

def publish(e, phase):
    lab = e.newlabel('pub')
    e.e(f's_cmp_lg_u32 s{S_W}, 0')
    e.e(f's_cbranch_scc1 {lab}')
    e.e(f's_lshl_b32 s49, s2, 7')
    e.e(f's_add_u32 s49, s49, {FLAGS + 8*phase}')
    e.e(f'v_mov_b32 v4, s{S_NONCE}')
    e.e(f'v_mov_b32 v5, s{S_NONCE+1}')
    e.e('v_mov_b32 v6, 0')
    e.e('s_mov_b64 exec, 1')
    e.e(f'buffer_store_dwordx2 v[4:5], v6, {WS}, s49 offen sc1')
    e.e('s_mov_b64 exec, -1')
    e.label(lab)

def poll(e, phase, vid, nlanes, vt=4):
    lab = e.newlabel('poll'); ok = e.newlabel('pollok')
    e.e(f'v_lshlrev_b32 v{vt+2}, 7, v{vid}')
    e.e(f'v_add_u32 v{vt+2}, {FLAGS + 8*phase}, v{vt+2}')
    e.e(f's_mov_b64 exec, {hex((1 << nlanes) - 1)}' if nlanes > 32 or nlanes == 32 else f's_mov_b64 exec, {(1 << nlanes) - 1}')
    e.e(f's_mov_b32 s{S_SPIN}, {SPIN_MAX}')
    e.label(lab)
    e.raw(f'    s_sub_u32 s{S_SPIN}, s{S_SPIN}, 1')
    e.raw(f'    s_cbranch_scc1 {ok}')
    e.raw(f'    buffer_load_dwordx2 v[{vt}:{vt+1}], v{vt+2}, {WS}, 0 offen sc1')
    e.raw('    s_waitcnt vmcnt(0)')
    e.raw(f'    v_cmp_ne_u32 vcc, s{S_NONCE}, v{vt}')
    e.raw(f'    v_cmp_ne_u32 s[{T[1]+ (T[1] & 1)}:{T[1]+(T[1]&1)+1}], s{S_NONCE+1}, v{vt+1}')
    e.raw('    s_nop 4')
    e.raw(f'    s_or_b64 vcc, vcc, s[{T[1]+(T[1]&1)}:{T[1]+(T[1]&1)+1}]')
    e.raw('    s_nop 4')
    e.raw(f'    s_cbranch_vccz {ok}')
    e.raw('    s_sleep 1')
    e.raw(f'    s_branch {lab}')
    e.label(ok)
    e.e('s_mov_b64 exec, -1')
    e.vm_q = []

SLOW_POLLS = []
def poll_issue(e, phase, idexpr, n, vt):
    out = list(idexpr)
    out += [f'v_lshlrev_b32 v{vt+2}, 7, v3', f'v_add_u32 v{vt+2}, {FLAGS + 8*phase}, v{vt+2}',
            f's_mov_b64 exec, {(1 << n) - 1}', (f'buffer_load_dwordx2 v[{vt}:{vt+1}], v{vt+2}, {WS}, 0 offen sc1', 'poll'), 's_mov_b64 exec, -1']
    return out
def poll_check(e, n, vt):
    slow = e.newlabel('pslow'); back = e.newlabel('pback')
    pr = 48
    wait_tags(e, ('poll',))
    e.e(f's_mov_b64 exec, {(1 << n) - 1}')
    e.e(f'v_cmp_ne_u32 vcc, s{S_NONCE}, v{vt}')
    e.e(f'v_cmp_ne_u32 s[{pr}:{pr+1}], s{S_NONCE+1}, v{vt+1}')
    e.e(f's_or_b64 vcc, vcc, s[{pr}:{pr+1}]')
    e.e(f's_cbranch_vccnz {slow}')
    e.label(back)
    e.e('s_mov_b64 exec, -1')
    SLOW_POLLS.append((slow, back, vt))
def emit_slow_polls(e):
    for slow, back, vt in SLOW_POLLS:
        lp = e.newlabel('psl')
        e.label(slow)
        e.raw(f'    s_mov_b32 s{S_SPIN}, {SPIN_MAX}')
        e.label(lp)
        e.raw(f'    s_sub_u32 s{S_SPIN}, s{S_SPIN}, 1')
        e.raw(f'    s_cbranch_scc1 {back}')
        e.raw('    s_sleep 1')
        e.raw(f'    buffer_load_dwordx2 v[{vt}:{vt+1}], v{vt+2}, {WS}, 0 offen sc1')
        e.raw('    s_waitcnt vmcnt(0)')
        e.raw(f'    v_cmp_ne_u32 vcc, s{S_NONCE}, v{vt}')
        e.raw(f'    v_cmp_ne_u32 s[48:49], s{S_NONCE+1}, v{vt+1}')
        e.raw('    s_nop 4')
        e.raw('    s_or_b64 vcc, vcc, s[48:49]')
        e.raw('    s_nop 4')
        e.raw(f'    s_cbranch_vccnz {lp}')
        e.raw(f'    s_branch {back}')

def emit_start(e, P):
    e.e('s_cmp_ge_u32 s2, 256')
    e.e(f's_cbranch_scc1 {NAME}_end')
    e.e('s_load_dwordx16 s[4:19], s[0:1], 0')
    e.e('s_load_dwordx4 s[20:23], s[0:1], 64')
    e.e('v_lshrrev_b32 v1, 6, v0')
    e.e('v_and_b32 v0, 63, v0')
    e.e(f'v_readfirstlane_b32 s{S_W}, v1')
    e.e(f's_and_b32 s{S_C}, s2, 7')
    e.e(f's_and_b32 s{T[0]}, s2, 1')
    e.e(f's_lshl_b32 s{T[0]}, s{T[0]}, 2')
    e.e(f's_bfe_u32 s{T[1]}, s2, 0x20003')
    e.e(f's_add_u32 s{S_MI}, s{T[0]}, s{T[1]}')
    e.e(f's_bfe_u32 s{T[0]}, s2, 0x20001')
    e.e(f's_lshl_b32 s{T[0]}, s{T[0]}, 3')
    e.e(f's_lshr_b32 s{T[1]}, s2, 5')
    e.e(f's_add_u32 s{S_J}, s{T[0]}, s{T[1]}')
    e.e(f'v_lshlrev_b32 v{V_L16}, 4, v0')
    e.wait_lgkm0()
    make_srd(e, S_WS, P_WS, WS_USED)

L_XN = 73728
def emit_ln(e, P):
    make_srd(e, S_R2, P_X, 2048 * 1152)
    e.e('v_lshrrev_b32 v3, 4, v0')
    e.e('v_and_b32 v6, 15, v0')
    e.e(f's_lshl_b32 s{T[0]}, s2, 3')
    e.e(f's_lshl_b32 s{T[1]}, s{S_W}, 2')
    e.e(f's_add_u32 s{T[0]}, s{T[0]}, s{T[1]}')
    e.e(f'v_add_u32 v4, s{T[0]}, v3')
    e.e('v_mul_u32_u24 v4, 1152, v4')
    e.e('v_lshl_add_u32 v4, v6, 3, v4')
    for i in range(9):
        e.e(f'buffer_load_dwordx2 v[{8+2*i}:{9+2*i}], v4, s[{S_R2}:{S_R2+3}], 0 offen offset:{128*i}')
    e.e(f'v_add_u32 v3, s{T[1]}, v3')
    e.e('v_lshrrev_b32 v5, 1, v6')
    e.e('v_lshl_add_u32 v5, v5, 3, v3')
    e.e('v_lshlrev_b32 v5, 4, v5')
    e.e('v_and_b32 v6, 1, v6')
    e.e('v_lshl_add_u32 v5, v6, 3, v5')
    e.e(f'v_add_u32 v5, {L_XN}, v5')
    e.e(f's_mov_b32 s{T[0]}, 0x3f803f80')
    e.e('v_mov_b32 v30, 0'); e.e('v_mov_b32 v31, 0'); e.e('v_mov_b32 v32, 0'); e.e('v_mov_b32 v33, 0')
    for i in range(18):
        e.e(f'v_dot2_f32_bf16 v{30+(i&1)}, v{8+i}, s{T[0]}, v{30+(i&1)}')
        e.e(f'v_dot2_f32_bf16 v{32+(i&1)}, v{8+i}, v{8+i}, v{32+(i&1)}')
    pass
    e.e('v_add_f32 v30, v30, v31'); e.e('v_add_f32 v32, v32, v33')
    for m in ('quad_perm:[1,0,3,2]', 'quad_perm:[2,3,0,1]', 'row_half_mirror', 'row_mirror'):
        e.e(f'v_add_f32_dpp v30, v30, v30 {m} row_mask:0xf bank_mask:0xf')
        e.e(f'v_add_f32_dpp v32, v32, v32 {m} row_mask:0xf bank_mask:0xf')
    e.e(f'v_mul_f32 v30, {fh(1.0/576)}, v30')
    e.e(f'v_mul_f32 v32, {fh(1.0/576)}, v32')
    e.e('v_fma_f32 v32, -v30, v30, v32')
    e.e('v_max_f32 v32, 0, v32')
    e.e(f'v_add_f32 v32, {fh(1e-5)}, v32')
    e.e('v_rsq_f32 v32, v32')
    e.e('v_mul_f32 v30, v30, v32')
    for i in range(18):
        e.e(f'v_lshlrev_b32 v34, 16, v{8+i}')
        e.e(f'v_and_b32 v35, 0xffff0000, v{8+i}')
        e.e('v_fma_f32 v34, v34, v32, -v30')
        e.e('v_fma_f32 v35, v35, v32, -v30')
        e.e(f'v_cvt_pk_bf16_f32 v{8+i}, v34, v35')
    for i in range(9):
        e.e(f'ds_write_b64 v5, v[{8+2*i}:{9+2*i}] offset:{1024*i}')
    e.wait_lgkm0()

def emit_ln_store(e):
    e.e(f'v_add_u32 v5, {L_XN}, v{V_L16}')
    for i in range(9): e.e(f'ds_read_b128 v[{8+4*i}:{11+4*i}], v5 offset:{1024*i}')
    e.e(f's_lshr_b32 s{T[0]}, s2, 2')
    e.e(f's_mul_i32 s{T[0]}, s{T[0]}, 36864')
    e.e(f's_and_b32 s{T[1]}, s2, 3')
    e.e(f's_lshl_b32 s{T[1]}, s{T[1]}, 7')
    e.e(f's_add_u32 s{T[0]}, s{T[0]}, s{T[1]}')
    e.e('v_lshrrev_b32 v3, 4, v0')
    e.e('v_lshlrev_b32 v3, 10, v3')
    e.e('v_bfe_u32 v4, v0, 3, 1')
    e.e('v_lshl_add_u32 v3, v4, 9, v3')
    e.e('v_and_b32 v4, 7, v0')
    e.e('v_lshl_add_u32 v3, v4, 4, v3')
    e.e(f'v_add_u32 v3, s{T[0]}, v3')
    for i in range(9):
        e.e(f's_mov_b32 s{T[0]}, {XNF + 4096*i}')
        e.e(f'buffer_store_dwordx4 v[{8+4*i}:{11+4*i}], v3, {WS}, s{T[0]} offen{SCX}')

def emit_nonce(e):
    make_srd(e, S_R2, P_DBG, 256)
    DB = f's[{S_R2}:{S_R2+3}]'
    lab = e.newlabel('nn'); pl = e.newlabel('npoll'); ok = e.newlabel('nok')
    e.e('v_mov_b32 v6, 0')
    e.e('s_cmp_lg_u32 s2, 0')
    e.e(f's_cbranch_scc1 {lab}')
    e.e(f's_memrealtime s[{S_NONCE}:{S_NONCE+1}]')
    e.e('s_waitcnt lgkmcnt(0)'); e.lds_q = []
    e.e(f's_or_b32 s{S_NONCE}, s{S_NONCE}, 1')
    e.e(f'v_mov_b32 v4, s{S_NONCE}')
    e.e(f'v_mov_b32 v5, s{S_NONCE+1}')
    e.e('s_mov_b64 exec, 1')
    e.e(f'buffer_store_dwordx2 v[4:5], v6, {DB}, 0 offen sc1')
    e.e('s_mov_b64 exec, -1')
    e.label(lab)
    e.e(f's_mov_b32 s{S_SPIN}, {SPIN_MAX}')
    e.label(pl)
    e.raw(f'    s_sub_u32 s{S_SPIN}, s{S_SPIN}, 1')
    e.raw(f'    s_cbranch_scc1 {ok}')
    e.raw(f'    buffer_load_dwordx2 v[4:5], v6, {DB}, 0 offen sc1')
    e.raw('    s_waitcnt vmcnt(0)')
    e.raw('    v_cmp_eq_u32 vcc, 0, v4')
    e.raw('    s_nop 4')
    e.raw(f'    s_cbranch_vccz {ok}')
    e.raw('    s_sleep 2')
    e.raw(f'    s_branch {pl}')
    e.label(ok)
    e.vm_q = []
    e.e(f'v_mov_b32 v6, {L_MISC}')
    e.e('ds_write_b64 v6, v[4:5]')
    e.wait_lgkm0()

def read_nonce(e):
    e.e(f'v_mov_b32 v6, {L_MISC}')
    e.e('ds_read_b64 v[4:5], v6')
    e.e(f'v_readfirstlane_b32 s{S_NONCE}, v4')
    e.e(f'v_readfirstlane_b32 s{S_NONCE+1}, v5')

class P1:
    TMP, TMP2 = 46, 47
    T0, DM0, DOFF, DML, BUF, U, HST0, HST1, KG, NL2E, QS, COL, COL5, KG5, E = range(50, 65)
    WQ, WG, WU = S_R0, S_R1, S_R2
    V_DG, V_DU, V_DA, V_DB, V_BA, V_BB, V_BG0, V_BG1, V_RD0, V_RD1, V_SC, V_BI, V_VST, V_QXST, V_BAH, V_BBH = range(208, 224)
    V_RD2 = 3
    WF = 40; WFB = 52
    ACC = [64, 96, 176, 8]
    WFC = 8
    VT = 128
    XT1 = 224
    MAT1 = 36864
    BUF1 = 83968
    PQ = 144

def xfrag(t, s):
    if t == 0: return f'a[{4*s}:{4*s+3}]'
    if s < 28: return f'a[{144+4*s}:{144+4*s+3}]'
    return f'v[{P1.XT1+4*(s-28)}:{P1.XT1+4*(s-28)+3}]'

def p1_reads(vrd, s, base=P1.WF, ks=1024, off2=256):
    b = base + 4 * (s % 3)
    if ks != 1024 and s >= 18:
        vrd = P1.V_BAH if vrd == P1.V_RD0 else P1.V_BBH
        return [f'ds_read_b64_tr_b16 v[{b}:{b+1}], v{vrd} offset:{(s-18)*ks}',
                f'ds_read_b64_tr_b16 v[{b+2}:{b+3}], v{vrd} offset:{(s-18)*ks+off2}']
    return [f'ds_read_b64_tr_b16 v[{b}:{b+1}], v{vrd} offset:{s*ks}',
            f'ds_read_b64_tr_b16 v[{b+2}:{b+3}], v{vrd} offset:{s*ks+off2}']

def epi_gu(acc):
    c = P1; out = []
    for t in range(2):
        G = acc + 16 * t; U = G + 8
        Tt = c.VT + 24 * t; Pp = Tt + 8; O = Tt + 16
        for r in range(8): out.append(f'v_mul_f32 v{Tt+r}, s{c.NL2E}, v{G+r}')
        for r in range(8): out.append(f'v_exp_f32 v{Tt+r}, v{Tt+r}')
        for r in range(8): out.append(f'v_mul_f32 v{Pp+r}, v{G+r}, v{U+r}')
        for r in range(8): out.append(f'v_add_f32 v{Tt+r}, 1.0, v{Tt+r}')
        for r in range(8): out.append(f'v_rcp_f32 v{Tt+r}, v{Tt+r}')
        tm = c.TMP if t == 0 else c.TMP2
        out.append(f's_lshl_b32 s{tm}, s{c.KG}, 10')
        out.append(f's_add_u32 s{tm}, s{tm}, s{c.HST0 if t == 0 else c.HST1}')
        for r in range(8): out.append(f'v_mul_f32 v{Pp+r}, v{Pp+r}, v{Tt+r}')
        for r in range(4): out.append(f'v_cvt_pk_bf16_f32 v{O+r}, v{Pp+2*r}, v{Pp+2*r+1}')
        out.append(f'buffer_store_dwordx4 v[{O}:{O+3}], v{V_L16}, {WS}, s{tm} offen{SC}')
    return out

def epi_a(acc):
    c = P1; out = []
    for t in range(2):
        Q = acc + 16 * t; Kk = Q + 8
        Tt = c.VT + 24 * t; O = Tt + 8; O2 = Tt + 12
        for r in range(8): out.append(f'v_mul_f32 v{Tt+r}, s{c.QS}, v{Q+r}')
        for r in range(4): out.append(f'v_cvt_pk_bf16_f32 v{O2+r}, v{Kk+2*r}, v{Kk+2*r+1}')
        for r in range(4): out.append(f'v_cvt_pk_bf16_f32 v{O+r}, v{Tt+2*r}, v{Tt+2*r+1}')
        out.append(f's_lshl_b32 s{c.TMP}, s{S_J}, 6')
        out.append(f's_add_u32 s{c.TMP}, s{c.TMP}, s{c.T0}')
        if t: out.append(f's_add_u32 s{c.TMP}, s{c.TMP}, 1')
        out.append(f's_lshl_b32 s{c.TMP}, s{c.TMP}, 10')
        out.append(f's_add_u32 s{c.TMP2}, s{c.TMP}, {KF}')
        out.append(f's_add_u32 s{c.TMP}, s{c.TMP}, {QF}')
        out.append((f'buffer_store_dwordx4 v[{O2}:{O2+3}], v{V_L16}, {WS}, s{c.TMP2} offen{SC}', 'kv'))
        out.append((f'buffer_store_dwordx4 v[{O}:{O+3}], v{V_L16}, {WS}, s{c.TMP} offen{SC}', 'kv'))
    return out

def epi_b(acc, t):
    c = P1; out = []
    A = acc + 16 * t
    X = c.VT; Y = c.VT + 16; O = c.VT + 32
    for r in range(16): out.append(f'v_fma_f32 v{X+r}, v{A+r}, v{c.V_SC}, v{c.V_BI}')
    for r in range(8): out.append(f'v_cvt_pk_bf16_f32 v{O+r}, v{X+2*r}, v{X+2*r+1}')
    out.append(f's_mul_i32 s{c.TMP}, s{S_J}, {VF_HEAD}')
    out.append(f's_add_u32 s{c.TMP2}, s{c.T0}, {t}')
    out.append(f's_mul_i32 s{c.TMP2}, s{c.TMP2}, {2*VF_G}')
    out.append(f's_add_u32 s{c.TMP}, s{c.TMP}, s{c.TMP2}')
    out.append(f's_add_u32 s{c.TMP}, s{c.TMP}, {VF}')
    out.append((f'buffer_store_dwordx4 v[{O}:{O+3}], v{c.V_VST}, {WS}, s{c.TMP} offen{SC}', 'kv'))
    out.append((f'buffer_store_dwordx4 v[{O+4}:{O+7}], v{c.V_VST}, {WS}, s{c.TMP} offen offset:{VF_G}{SC}', 'kv'))
    for r in range(16): out.append(f'v_mov_b32_dpp v{Y+r}, v{X+r} row_shl:1 row_mask:0xf bank_mask:0xf bound_ctrl:0')
    for r in range(16): out.append(f'v_cvt_pk_bf16_f32 v{Y+r}, v{X+r}, v{Y+r}')
    out.append(f's_lshl_b32 s{c.TMP}, s{S_J}, 13')
    out.append(f's_add_u32 s{c.TMP2}, s{c.T0}, {t}')
    out.append(f's_lshl_b32 s{c.TMP2}, s{c.TMP2}, 7')
    out.append(f's_add_u32 s{c.TMP}, s{c.TMP}, s{c.TMP2}')
    for g in range(4):
        out.append((f'buffer_store_dwordx4 v[{Y+4*g}:{Y+4*g+3}], v{c.V_QXST}, {WS}, s{c.TMP} offen offset:{32*g}{SC}', 'kv'))
    return out

def dma_gu():
    c = P1; out = []
    for i in range(9):
        for m, (srd, vo) in enumerate(((c.WG, c.V_DG), (c.WU, c.V_DU))):
            g = []
            if i == 0 and m == 0:
                g.append(f's_mul_i32 s{c.DOFF}, s{S_W}, {16*9216}')
                g.append(f's_add_u32 s{c.DOFF}, s{c.DOFF}, s{c.COL}')
                g.append(f's_mov_b32 s{c.DML}, s{c.DM0}')
            elif m == 0:
                g.append(f's_add_u32 s{c.DOFF}, s{c.DOFF}, {4*16*9216}')
                g.append(f's_add_u32 s{c.DML}, s{c.DML}, 4096')
            g.append(f's_add_u32 m0, s{c.DML}, {m*c.MAT1}')
            g.append(f'buffer_load_dwordx4 v{vo}, s[{srd}:{srd+3}], s{c.DOFF} offen lds')
            out.append(g)
    return out

def emit_item(e, x):
    if isinstance(x, tuple) and x[0] == 'RAW':
        e.out.append(Ins(x[1])); e.vm_q.append((set(), 'warm'))
    elif isinstance(x, tuple): e.e(x[0], tag=x[1])
    else: e.e(x)

def emit_dma(e, x):
    if isinstance(x, tuple) and x[0] == 'X63':
        e.e('s_mov_b32 exec_hi, 0x7fffffff'); e.e(x[1]); e.e('s_mov_b32 exec_hi, -1')
    else: e.e(x)

class Filler:
    def __init__(self, e, fillers, ngaps, first_gap=3, dma=(), dma_start=0, dma_stride=6):
        self.e = e; self.fl = list(fillers); self.dma = list(dma); self.gap = 0
        self.first = first_gap; self.ds = dma_start; self.st = dma_stride
        self.n0 = len(self.fl)
        self.slots = max(1, ngaps - first_gap - 2 - len(self.dma))
        self.used = 0
        self.pend = []
    def pre(self):
        g = self.gap + 1
        if self.dma and g > self.ds and (g - self.ds - 1) % self.st == 0:
            grp = self.dma.pop(0)
            for x in grp[:-1]: self.e.e(x)
            self.pend.append(grp[-1])
    def post(self):
        self.gap += 1
        if getattr(self, 'hook', None) and self.gap == self.hook[0]: self.hook[1]()
        if self.pend:
            emit_dma(self.e, self.pend.pop(0)); return
        if self.gap > self.first:
            self.used += 1
            target = -(-self.n0 * self.used // self.slots)
            while self.fl and self.n0 - len(self.fl) < target: emit_item(self.e, self.fl.pop(0))
    def flush(self):
        while self.dma:
            grp = self.dma.pop(0)
            for x in grp[:-1]: self.e.e(x)
            emit_dma(self.e, grp[-1])
        while self.fl: emit_item(self.e, self.fl.pop(0))

def wait_tags(e, tags):
    idx = [i for i, (d, t) in enumerate(e.vm_q) if t in tags]
    if idx: e.wait(vm=len(e.vm_q) - 1 - max(idx))

def p1_tile(e, acc, vrd, nxt_vrd, switch, F, wait=('dma',), is_b=False, own_q=False, nxt_q=False):
    QG = (P1.WF, 16 * P1.PQ, 4 * P1.PQ); GG = (P1.WF, 1024, 256)
    own = QG if own_q else GG
    nx = QG if nxt_q else GG
    for s in range(36):
        if s == 35 and switch:
            F.flush()
            e.wait(lg=0)
            wait_tags(e, wait)
            e.e('s_barrier')
            for r in p1_reads(nxt_vrd, 0, *nx) + p1_reads(nxt_vrd, 1, *nx): e.e(r)
        rd = []
        if s + 2 < 36: rd = p1_reads(vrd, s + 2, *own)
        elif not switch and nxt_vrd is not None: rd = p1_reads(nxt_vrd, s + 2 - 36, *nx)
        w = P1.WF + 4 * (s % 3)
        for t in range(2):
            d = acc + 16 * t
            cc = '0' if s == 0 else f'v[{d}:{d+15}]'
            if is_b: e.e(f'v_mfma_f32_32x32x16_bf16 v[{d}:{d+15}], {xfrag(t, s)}, v[{w}:{w+3}], {cc}')
            else: e.e(f'v_mfma_f32_32x32x16_bf16 v[{d}:{d+15}], v[{w}:{w+3}], {xfrag(t, s)}, {cc}')
            F.pre()
            if rd: e.e(rd[t])
            F.post()
    F.flush()

def p1_setup(e, first=False):
    c = P1
    make_srd(e, c.WQ, P_WQKV, 576 * 3456)
    e.e(f's_and_b32 s{c.E}, s{S_J}, 1')
    e.e(f's_lshl_b32 s{c.T0}, s{S_MI}, 3')
    e.e(f's_lshl_b32 s{c.TMP}, s{S_W}, 1')
    e.e(f's_add_u32 s{c.T0}, s{c.T0}, s{c.TMP}')
    e.e(f's_mul_i32 s{c.TMP}, s{S_J}, 36')
    e.e(f's_mov_b32 s{c.TMP2}, {(2**32 + 8) // 9}')
    e.e(f'v_mul_hi_u32 v24, v0, s{c.TMP2}')
    e.e('v_mul_u32_u24 v25, 9, v24')
    e.e('v_sub_u32 v25, v0, v25')
    e.e('v_mul_u32_u24 v26, 86, v25')
    e.e('v_lshrrev_b32 v26, 8, v26')
    e.e('v_mul_u32_u24 v27, 3, v26')
    e.e('v_sub_u32 v27, v25, v27')
    e.e('v_mul_u32_u24 v24, 3456, v24')
    e.e('v_mul_u32_u24 v26, 1152, v26')
    e.e('v_lshl_add_u32 v24, v27, 4, v24')
    e.e(f'v_add3_u32 v{c.V_DA}, v24, v26, s{c.TMP}')
    make_srd(e, c.WG, P_WG, 576 * 9216)
    e.e(f's_mov_b32 s{c.NL2E}, {fh(-LOG2E)}')
    e.e(f's_mov_b32 s{c.QS}, {fh(QSCALE)}')
    e.e('v_lshrrev_b32 v24, 2, v0')
    e.e('v_and_b32 v25, 3, v0')
    e.e('v_mul_u32_u24 v26, 9216, v24')
    e.e(f'v_lshl_add_u32 v{c.V_DG}, v25, 4, v26')
    e.e('v_xor_b32 v27, 2, v25')
    e.e(f'v_lshl_add_u32 v{c.V_DU}, v27, 4, v26')
    e.e('v_lshrrev_b32 v24, 4, v0')
    e.e('v_bfe_u32 v25, v0, 2, 2')
    e.e('v_and_b32 v26, 3, v0')
    e.e('v_lshrrev_b32 v27, 1, v24')
    e.e('v_lshl_add_u32 v27, v27, 3, v25')
    e.e('v_and_b32 v28, 1, v24')
    e.e(f'v_mul_u32_u24 v29, {c.PQ}, v27')
    e.e('v_mul_u32_u24 v30, 48, v28')
    e.e('v_lshl_add_u32 v30, v26, 3, v30')
    e.e(f'v_add_u32 v{c.V_BA}, v29, v30')
    e.e('v_mov_b32 v30, 80')
    e.e('v_mov_b32 v31, 128')
    e.e('v_cmp_eq_u32 vcc, 0, v26')
    e.e('v_cndmask_b32 v30, v30, v31, vcc')
    e.e('v_mov_b32 v31, 32')
    e.e('v_cmp_eq_u32 vcc, 1, v26')
    e.e('v_cndmask_b32 v30, v30, v31, vcc')
    e.e('v_lshlrev_b32 v31, 3, v26')
    e.e('v_add_u32 v31, 96, v31')
    e.e('v_cmp_eq_u32 vcc, 1, v28')
    e.e('v_cndmask_b32 v30, v31, v30, vcc')
    e.e(f'v_add_u32 v{c.V_BB}, v29, v30')
    e.e(f'v_add_u32 v{c.V_BAH}, {18*16*c.PQ}, v{c.V_BA}')
    e.e(f'v_add_u32 v{c.V_BBH}, {18*16*c.PQ}, v{c.V_BB}')
    e.e('v_lshlrev_b32 v27, 6, v27')
    e.e('v_lshl_add_u32 v27, v26, 3, v27')
    e.e(f'v_mul_u32_u24 v29, {c.MAT1}, v28')
    e.e('v_add_u32 v29, v29, v27')
    e.e(f'v_lshl_add_u32 v{c.V_BG0}, v28, 5, v29')
    e.e(f'v_xor_b32 v{c.V_BG1}, 32, v{c.V_BG0}')
    e.e('v_and_b32 v24, 31, v0')
    e.e('v_lshrrev_b32 v25, 5, v0')
    e.e(f'v_mov_b32 v{c.V_SC}, 1.0')
    e.e(f'v_mov_b32 v26, s{c.QS}')
    e.e('v_and_b32 v27, 30, v24')
    e.e('v_cmp_eq_u32 vcc, 20, v27')
    e.e(f'v_cndmask_b32 v{c.V_SC}, v{c.V_SC}, v26, vcc')
    e.e('v_mov_b32 v26, 0')
    e.e('v_cmp_eq_u32 vcc, 18, v27')
    e.e(f'v_cndmask_b32 v{c.V_SC}, v{c.V_SC}, v26, vcc')
    e.e(f'v_mov_b32 v{c.V_BI}, 0')
    e.e('v_mov_b32 v26, 1.0')
    e.e('v_cmp_eq_u32 vcc, 18, v24')
    e.e(f'v_cndmask_b32 v{c.V_BI}, v{c.V_BI}, v26, vcc')
    e.e('v_mul_u32_u24 v26, 320, v25')
    e.e('v_lshl_add_u32 v26, v24, 4, v26')
    e.e(f'v_mov_b32 v{c.V_VST}, 0x7ff00000')
    e.e('v_cmp_ge_u32 vcc, 19, v24')
    e.e(f'v_cndmask_b32 v{c.V_VST}, v{c.V_VST}, v26, vcc')
    e.e('v_lshlrev_b32 v26, 4, v25')
    e.e(f'v_add_u32 v27, {QX}, v26')
    e.e(f'v_add_u32 v26, {KX}, v26')
    e.e(f'v_mov_b32 v{c.V_QXST}, 0x7ff00000')
    e.e('v_cmp_eq_u32 vcc, 20, v24')
    e.e(f'v_cndmask_b32 v{c.V_QXST}, v{c.V_QXST}, v27, vcc')
    e.e('v_cmp_eq_u32 vcc, 24, v24')
    e.e(f'v_cndmask_b32 v{c.V_QXST}, v{c.V_QXST}, v26, vcc')
    e.e(f's_mul_i32 s{c.COL}, s{S_J}, 288')
    e.e(f's_lshl_b32 s{c.TMP}, s{c.E}, 5')
    e.e(f's_add_u32 s{c.COL5}, s{c.COL}, 256')
    e.e(f's_sub_u32 s{c.TMP2}, s{c.COL}, 32')
    e.e(f's_cmp_eq_u32 s{c.E}, 0')
    e.e(f's_cselect_b32 s{c.COL5}, s{c.COL5}, s{c.TMP2}')
    e.e(f's_add_u32 s{c.COL}, s{c.COL}, s{c.TMP}')
    e.e(f's_mul_i32 s{c.KG}, s{S_J}, 9')
    e.e(f's_add_u32 s{c.KG5}, s{c.KG}, 8')
    e.e(f's_cmp_eq_u32 s{c.E}, 0')
    e.e(f's_cselect_b32 s{c.KG5}, s{c.KG5}, s{c.KG}')
    e.e(f's_add_u32 s{c.KG}, s{c.KG}, s{c.E}')
    e.e(f's_mul_i32 s{c.HST0}, s{c.T0}, {288*1024}')
    e.e(f's_add_u32 s{c.HST0}, s{c.HST0}, {HF}')
    e.e(f's_add_u32 s{c.HST1}, s{c.HST0}, {288*1024}')
    make_srd(e, c.WU, P_WU, 576 * 9216)

def p1_dma_first(e, buf, dcol, i0=0, i1=36):
    c = P1
    for i in range(i0, i1):
        for m, (srd, vo) in enumerate(((c.WG, c.V_DG), (c.WU, c.V_DU))):
            e.e(f's_mov_b32 m0, {buf + m*c.MAT1 + i*1024}')
            if m == 0: e.e(f's_add_u32 s{c.DOFF}, s{c.COL}, {i*16*9216 + dcol}')
            else: e.e('s_nop 0')
            e.e(f'buffer_load_dwordx4 v{vo}, s[{srd}:{srd+3}], s{c.DOFF} offen lds')

def dma_qkv_groups(idx):
    c = P1; out = []
    n = -(-len(idx) // 4)
    idx = list(idx) + [idx[-1]] * (4 * n - len(idx))
    for k in range(n):
        i0, i1, i2, i3 = idx[4*k:4*k+4]
        if (i1, i2, i3) == (i0 + 1, i0 + 2, i0 + 3):
            g = [f's_add_u32 s{c.DML}, s{S_W}, {i0}']
        else:
            g = [f's_mov_b32 s{c.DML}, {i0}', f's_cmp_eq_u32 s{S_W}, 1', f's_cselect_b32 s{c.DML}, {i1}, s{c.DML}',
                 f's_cmp_eq_u32 s{S_W}, 2', f's_cselect_b32 s{c.DML}, {i2}, s{c.DML}', f's_cmp_eq_u32 s{S_W}, 3', f's_cselect_b32 s{c.DML}, {i3}, s{c.DML}']
        g += [f's_mul_i32 s{c.DOFF}, s{c.DML}, {7*3456}', f's_mul_i32 s{c.DML}, s{c.DML}, {7*c.PQ}', f's_mov_b32 m0, s{c.DML}',
              ('X63', f'buffer_load_dwordx4 v{c.V_DA}, s[{c.WQ}:{c.WQ+3}], s{c.DOFF} offen lds')]
        out.append(g)
    return out

def dma_gu_half(m):
    c = P1; out = []
    srd, vo = ((c.WG, c.V_DG), (c.WU, c.V_DU))[m]
    for i in range(9):
        g = []
        if i == 0:
            g += [f's_mul_i32 s{c.DOFF}, s{S_W}, {16*9216}', f's_add_u32 s{c.DOFF}, s{c.DOFF}, s{c.COL}', f's_add_u32 s{c.DML}, s{c.DM0}, {m*c.MAT1}']
        else:
            g += [f's_add_u32 s{c.DOFF}, s{c.DOFF}, {4*16*9216}', f's_add_u32 s{c.DML}, s{c.DML}, 4096']
        g += [f's_mov_b32 m0, s{c.DML}', f'buffer_load_dwordx4 v{vo}, s[{srd}:{srd+3}], s{c.DOFF} offen lds']
        out.append(g)
    return out

class EpiQ:
    def __init__(self): self.q = []
    def push(self, acc, instrs): self.q += [(acc, x) for x in instrs]
    def busy(self, acc): return any(a == acc for a, _ in self.q)
    def take(self, n=None, until_free=()):
        out = []
        while self.q and (n is None or len(out) < n or any(self.busy(a) for a in until_free)):
            out.append(self.q.pop(0)[1])
        return out

def emit_p1(e, P):
    c = P1
    make_srd(e, c.WU, P_WU, 576 * 9216)
    e.e(f's_mul_i32 s{c.TMP}, s{c.T0}, 36864')
    if XNF: e.e(f's_add_u32 s{c.TMP}, s{c.TMP}, {XNF}')
    e.e(f's_add_u32 s{c.TMP2}, s{c.TMP}, 36864')
    xl = []
    for s in range(36):
        if s and s % 4 == 0:
            xl.append(f's_add_u32 s{c.TMP}, s{c.TMP}, 4096')
            xl.append(f's_add_u32 s{c.TMP2}, s{c.TMP2}, 4096')
        xl.append(f'buffer_load_dwordx4 {xfrag(0, s)}, v{V_L16}, {WS}, s{c.TMP} offen offset:{(s%4)*1024}{SCL}')
        xl.append(f'buffer_load_dwordx4 {xfrag(1, s)}, v{V_L16}, {WS}, s{c.TMP2} offen offset:{(s%4)*1024}{SCL}')
    nx = 0; i = 0
    while nx < 48:
        e.e(xl[i]); nx += xl[i].startswith('buffer'); i += 1
    xrest = xl[i:]
    A0, A1, A2, A3 = c.ACC
    e.e(f'v_mov_b32 v{c.V_RD0}, v{c.V_BG0}')
    e.e(f'v_mov_b32 v{c.V_RD1}, v{c.V_BG1}')
    e.e(f'v_add_u32 v{c.V_RD2}, {c.BUF1}, v{c.V_BG0}')
    rA = lambda s: p1_reads(c.V_RD0, s, c.WF)
    rB = lambda s: p1_reads(c.V_RD1, s, c.WFB)
    rC = lambda s: p1_reads(c.V_RD2, s, c.WFC)
    for s in range(2):
        for r in rA(s) + rB(s) + rC(s): e.e(r)
    xg = []; cur = []
    for x in xrest:
        cur.append(x)
        if x.startswith('buffer'): xg.append(cur); cur = []
    early = list(range(0, 18)) + list(range(37, 54)) + list(range(74, 83))
    late = [i for i in range(83) if i not in early]
    F = Filler(e, [], 108, dma=xg, dma_start=0, dma_stride=3)
    for s in range(36):
        if s == 20:
            F.flush()
            e.e('s_barrier')
            F = Filler(e, [], 96, dma=dma_qkv_groups(early), dma_start=0, dma_stride=7)
        if s == 35:
            F.flush()
            e.wait(lg=0)
            e.e(f'v_add_u32 v{c.V_RD1}, {c.BUF1}, v{c.V_BG1}')
            e.e('s_barrier')
            for r in p1_reads(c.V_RD1, 0) + p1_reads(c.V_RD1, 1): e.e(r)
        rd = (rA(s + 2) + rB(s + 2) + rC(s + 2)) if s + 2 < 36 else []
        k = 0
        for tl in range(3):
            w = (c.WF, c.WFB, c.WFC)[tl] + 4 * (s % 3)
            for t in range(2):
                dd = c.ACC[tl] + 16 * t
                cc = '0' if s == 0 else f'v[{dd}:{dd+15}]'
                e.e(f'v_mfma_f32_32x32x16_bf16 v[{dd}:{dd+15}], v[{w}:{w+3}], {xfrag(t, s)}, {cc}')
                F.pre()
                if rd: e.e(rd[k])
                k += 1
                F.post()
    P.stamp('trio done'); P.stamp('rtrio', real=True)
    inc = [f's_add_u32 s{c.KG}, s{c.KG}, 1']
    Q = EpiQ()
    Q.push(A0, epi_gu(A0) + inc); Q.push(A1, epi_gu(A1) + inc); Q.push(A2, epi_gu(A2) + inc)
    d = dma_gu()
    BUD = 140
    def tile(acc, vrd, nxt, switch, dma=(), stride=6, start=0, wait=('dma',), pre=(), hook=None, epi=None, tk={}, **kw):
        assert not Q.busy(acc), acc
        for x in pre: e.e(x)
        F = Filler(e, Q.take(BUD, until_free=kw.pop('free', ())), 72, dma=dma, dma_start=start, dma_stride=stride, **kw)
        if hook: F.hook = hook
        p1_tile(e, acc, vrd, nxt, switch, F, wait=wait, **tk)
        Q.push(acc, epi if epi is not None else epi_gu(acc) + inc)
    tile(A3, c.V_RD1, c.V_RD0, True, dma=dma_qkv_groups(late), stride=5, pre=[f'v_mov_b32 v{c.V_RD0}, v{c.V_BA}'], free=(A0,), tk=dict(nxt_q=True))
    u3 = [f'v_mov_b32 v{c.V_RD1}, v{c.V_BB}', f's_lshl_b32 s{c.DM0}, s{S_W}, 10', f's_add_u32 s{c.DM0}, s{c.DM0}, {c.BUF1}', f's_add_u32 s{c.COL}, s{c.COL}, 128']
    tile(A0, c.V_RD0, c.V_RD1, False, dma=d[:12], pre=u3, free=(A1,), epi=epi_a(A0), tk=dict(own_q=True, nxt_q=True))
    tile(A1, c.V_RD1, c.V_RD0, True, dma=d[12:], pre=[f'v_add_u32 v{c.V_RD0}, {c.BUF1}, v{c.V_BG0}'], free=(A2,),
         epi=epi_b(A1, 0) + epi_b(A1, 1), tk=dict(is_b=True, own_q=True))
    P.stamp('AB done'); P.stamp('rAB', real=True)
    u4 = [f'v_add_u32 v{c.V_RD1}, {c.BUF1}, v{c.V_BG1}', f's_lshl_b32 s{c.DM0}, s{S_W}, 10', f's_add_u32 s{c.COL}, s{c.COL}, 64']
    tile(A2, c.V_RD0, c.V_RD1, False, dma=d[:12], pre=u4, free=(A3,))
    tile(A3, c.V_RD1, c.V_RD0, True, dma=d[12:], wait=('dma', 'kv'), pre=[f'v_mov_b32 v{c.V_RD0}, v{c.V_BG0}'], free=(A0, A1))
    publish(e, F_KV)
    u5 = [f'v_mov_b32 v{c.V_RD1}, v{c.V_BG1}', f's_lshl_b32 s{c.DM0}, s{S_W}, 10', f's_add_u32 s{c.DM0}, s{c.DM0}, {c.BUF1}', f's_mov_b32 s{c.COL}, s{c.COL5}']
    tile(A0, c.V_RD0, c.V_RD1, False, dma=d[:12], pre=u5)
    pre = [f's_lshl_b32 s49, s{c.E}, 5', f'v_xor_b32 v{c.V_RD0}, s49, v{c.V_BG0}', f'v_add_u32 v{c.V_RD0}, {c.BUF1}, v{c.V_RD0}']
    ids = ['v_and_b32 v3, 1, v0', 'v_bfe_u32 v6, v0, 1, 2', 'v_lshl_add_u32 v3, v6, 3, v3', 's_and_b32 s48, s2, 0xe6', 'v_add_u32 v3, s48, v3']
    for x in poll_issue(e, F_KV, ids, 8, 4): emit_item(e, x)
    tile(A1, c.V_RD1, c.V_RD0, True, dma=d[12:], pre=pre, hook=(56, lambda: poll_check(e, 8, 4)), free=(A2, A3),
         epi=epi_gu(A1) + [f's_mov_b32 s{c.KG}, s{c.KG5}'])
    P.stamp('p1 loop done'); P.stamp('rU4', real=True)
    for x in p2_bases(): e.e(x)
    assert not Q.busy(A3)
    BUD = 10000
    tile(A2, c.V_RD0, None, False, dma=p2_prefetch_groups(), stride=3, first_gap=1, epi=epi_gu(A2))
    for x in Q.take(): emit_item(e, x)
    e.wait_all()
    e.e('s_barrier')
    publish(e, F_H)
    P.stamp('p1 done'); P.stamp('rp1 done', real=True)

class P2:
    A, B, C = 65, 66, 67
    T0, TRIP = 50, 54
    X0, X1, X2, X3 = 46, 47, 48, 49
    L_KM, L_KX, L_V = 0, 65536, 73728
    MARGIN = 60.0
    V_KA, V_KXA, V_VA = 8, 9, 10
    V_T0 = 12
    QM = [24, 28]; QE = [32, 36]
    KM = [48, 52]; KE = [56, 60]
    VFR = [[64, 68], [72, 76]]
    PP = [80, 88]
    OO = [96, 112]
    SS = [[128, 144], [160, 176]]

def mf(d, a, b, c):
    cs = '0' if c is None else f'v[{c}:{c+15}]'
    return f'v_mfma_f32_32x32x16_bf16 v[{d}:{d+15}], v[{a}:{a+3}], v[{b}:{b+3}], {cs}'
def qk(buf_s, kb, t):
    c = P2; d = c.SS[buf_s][t]
    return [mf(d, c.KM[kb], c.QM[t], None), mf(d, c.KE[kb], c.QE[t], d)]
def kreads(kb, i):
    c = P2
    return [f'ds_read_b128 v[{c.KM[kb]}:{c.KM[kb]+3}], v{c.V_KA} offset:{i*1024}',
            f'ds_read_b32 v{c.KE[kb]}, v{c.V_KXA} offset:{i*128}']
def vreads(vb, i):
    c = P2
    return [f'ds_read_b128 v[{c.VFR[vb][0]}:{c.VFR[vb][0]+3}], v{c.V_VA} offset:{i*1280}',
            f'ds_read_b128 v[{c.VFR[vb][1]}:{c.VFR[vb][1]+3}], v{c.V_VA} offset:{i*1280+640}']

ATT_ORDER = 1
def attn_iter(e, b, off, first=False, extra=()):
    c = P2
    valu = []
    for t in range(2):
        for g in range(2):
            S = c.SS[b][t] + 8 * g
            valu += [f'v_exp_f32 v{S+r}, v{S+r}' for r in range(8)]
            valu += [f'v_cvt_pk_bf16_f32 v{c.PP[t]+4*g+r}, v{S+2*r}, v{S+2*r+1}' for r in range(4)]
    q0 = qk(b ^ 1, b ^ 1, 0); q1 = qk(b ^ 1, b ^ 1, 1)
    pv = lambda t, g, vb: mf(c.OO[t], c.VFR[vb][g], c.PP[t] + 4 * g, c.OO[t])
    ins = {2: [] if first else [pv(1, 1, b ^ 1)], 8: [q0[0]], 14: [q1[0]], 20: [pv(0, 0, b)], 26: [q0[1]], 32: [pv(0, 1, b)], 38: [pv(1, 0, b)], 44: [q1[1]]}
    if ATT_ORDER == 0: ins = {2: [] if first else [pv(1, 1, b ^ 1)], 8: [q0[0]], 14: [q0[1]], 20: [pv(0, 0, b)], 26: [q1[0]], 32: [pv(0, 1, b)], 38: [q1[1]], 44: [pv(1, 0, b)]}
    kr = kreads(b, off + 2); vr = vreads(b ^ 1, off + 1)
    lds = {2: [vr[0]], 14: [vr[1]], 26: [kr[0]], 32: [kr[1]]}
    extra = list(extra)
    slots = [8, 20, 38, 44] if len(extra) <= 4 else [2, 8, 14, 20, 26, 32, 38, 44]
    xtra = {}
    for k, g in enumerate(extra): xtra.setdefault(slots[k * len(slots) // len(extra)], []).append(g)
    for i, v in enumerate(valu):
        if i == 8: e.wait(lg=1)
        for x in ins.get(i, []): e.e(x)
        for x in lds.get(i, []): e.e(x)
        for g in xtra.get(i, []):
            for x in g:
                if callable(x): x()
                else: emit_item(e, x)
        e.e(v)

def kv_grp(base_s, ldsbase, idx_expr, x0=48, x1=49):
    return idx_expr(x1) + [f's_lshl_b32 s{x0}, s{x1}, 10', f's_add_u32 m0, s{x0}, {ldsbase}', f's_add_u32 s{x0}, s{x0}, s{base_s}',
                           f'buffer_load_dwordx4 v{V_L16}, {WS}, s{x0} offen{SCL} lds']
def p2_bases():
    c = P2
    return [f's_lshl_b32 s{c.A}, s{S_J}, 16', f's_add_u32 s{c.A}, s{c.A}, {KF}',
            f's_lshl_b32 s{c.B}, s{S_J}, 13', f's_add_u32 s{c.B}, s{c.B}, {KX}',
            f's_mul_i32 s{c.C}, s{S_J}, {VF_HEAD}', f's_add_u32 s{c.C}, s{c.C}, {VF}']
def p2_prefetch_groups():
    c = P2; W = S_W; g = []
    g.append(kv_grp(c.A, c.L_KM, lambda x: [f's_mov_b32 s{x}, s{W}']))
    g.append(kv_grp(c.C, c.L_V, lambda x: [f's_mov_b32 s{x}, s{W}']))
    g.append(kv_grp(c.B, c.L_KX, lambda x: [f's_mov_b32 s{x}, s{W}']))
    g.append(kv_grp(c.A, c.L_KM, lambda x: [f's_add_u32 s{x}, s{W}, 4']))
    g.append(kv_grp(c.C, c.L_V, lambda x: [f's_add_u32 s{x}, s{W}, 4']))
    g.append(kv_grp(c.C, c.L_V, lambda x: [f's_add_u32 s{x}, s{W}, 8', f's_min_u32 s{x}, s{x}, 9']))
    g.append([f's_lshl_b32 s49, s{S_J}, 6', f's_add_u32 s49, s49, s{c.T0}', 's_lshl_b32 s49, s49, 10', f's_add_u32 s49, s49, {QF}',
              f'buffer_load_dwordx4 v[{c.QM[0]}:{c.QM[0]+3}], v{V_L16}, {WS}, s49 offen{SCL}'])
    g.append([f'buffer_load_dwordx4 v[{c.QM[1]}:{c.QM[1]+3}], v{V_L16}, {WS}, s49 offen offset:1024{SCL}'])
    g.append(['v_lshlrev_b32 v12, 2, v0', 'v_mov_b32 v13, 0x7ff00000', 'v_cmp_gt_u32 vcc, 32, v0', 's_nop 0', 'v_cndmask_b32 v12, v13, v12, vcc',
              f's_lshl_b32 s49, s{S_J}, 13', f's_lshl_b32 s48, s{c.T0}, 7', 's_add_u32 s49, s49, s48', f's_add_u32 s49, s49, {QX}',
              f'buffer_load_dword v{c.QE[0]}, v12, {WS}, s49 offen{SCL}'])
    g.append([f'buffer_load_dword v{c.QE[1]}, v12, {WS}, s49 offen offset:128{SCL}'])
    for i in range(2, 16): g.append(kv_grp(c.A, c.L_KM, lambda x, i=i: [f's_add_u32 s{x}, s{W}, {4*i}']))
    g.append(kv_grp(c.B, c.L_KX, lambda x: [f's_add_u32 s{x}, s{W}, 4']))
    return g

def emit_p2(e, P):
    c = P2
    W = S_W
    grp = lambda base, lb, f: kv_grp(base, lb, f, 46, 47)
    b1 = [grp(c.C, c.L_V, lambda x, i=i: [f's_add_u32 s{x}, s{W}, {10+4*i}', f's_min_u32 s{x}, s{x}, 39']) for i in range(8)]
    b2 = [grp(c.C, c.L_V, lambda x, i=i: [f's_add_u32 s{x}, s{W}, {40+4*i}']) for i in range(10)]
    for t in range(2):
        for r in (1, 2, 3): e.e(f'v_mov_b32 v{c.QE[t]+r}, 0')
        e.e(f'v_mov_b32 v{c.KE[t]+1}, 0x3f80')
        e.e(f'v_mov_b32 v{c.KE[t]+2}, 0'); e.e(f'v_mov_b32 v{c.KE[t]+3}, 0')
    e.e(f'v_mov_b32 v{c.V_KA}, v{V_L16}')
    e.e('v_and_b32 v12, 31, v0')
    e.e(f'v_lshlrev_b32 v{c.V_KXA}, 2, v12')
    e.e(f'v_add_u32 v{c.V_KXA}, {c.L_KX}, v{c.V_KXA}')
    e.e('v_min_u32 v13, 19, v12')
    e.e('v_lshrrev_b32 v14, 5, v0')
    e.e('v_mul_u32_u24 v14, 320, v14')
    e.e(f'v_lshl_add_u32 v{c.V_VA}, v13, 4, v14')
    e.e(f'v_add_u32 v{c.V_VA}, {c.L_V}, v{c.V_VA}')
    for t in range(2):
        for r in range(16): e.e(f'v_mov_b32 v{c.OO[t]+r}, 0')
    for x in kreads(0, 0) + kreads(1, 1) + vreads(0, 0): e.e(x)
    for kt in range(2):
        for t in range(2):
            for x in qk(kt, kt, t): e.e(x)
    for t in range(2):
        m = c.V_T0 + t
        e.e(f'v_max3_f32 v{m}, v{c.SS[0][t]}, v{c.SS[0][t]+1}, v{c.SS[0][t]+2}')
        regs = [c.SS[0][t] + r for r in range(3, 16)] + [c.SS[1][t] + r for r in range(16)]
        while len(regs) >= 2:
            e.e(f'v_max3_f32 v{m}, v{m}, v{regs[0]}, v{regs[1]}'); regs = regs[2:]
        if regs: e.e(f'v_max_f32 v{m}, v{m}, v{regs[0]}')
    e.e(f's_mov_b32 s{c.X0}, {fh(c.MARGIN)}')
    for t in range(2):
        m = c.V_T0 + t; x = c.V_T0 + 2 + t
        e.e(f'v_mov_b32 v{x}, v{m}')
        e.e(f'v_permlane32_swap_b32 v{m}, v{x}')
        e.e(f'v_max_f32 v{m}, v{m}, v{x}')
        e.e(f'v_add_f32 v{m}, s{c.X0}, v{m}')
        e.e(f'v_cvt_pk_bf16_f32 v{m}, -v{m}, 0')
        e.e('v_cmp_gt_u32 vcc, 32, v0')
        e.e(f'v_cndmask_b32 v{c.QE[t]+1}, 0, v{m}, vcc')
    for t in range(2):
        for x in qk(0, 0, t): e.e(x)
    P.stamp('max done')
    nb = [0]
    def body(first=False, extra=()):
        extra = list(extra); h = (len(extra) + 1) // 2
        o = 2 * (nb[0] % 4)
        attn_iter(e, 0, o, first=first, extra=extra[:h])
        attn_iter(e, 1, o + 1, extra=extra[h:])
        nb[0] += 1
        if nb[0] % 4 == 0:
            e.e(f'v_add_u32 v{c.V_KA}, {8*1024}, v{c.V_KA}')
            e.e(f'v_add_u32 v{c.V_KXA}, {8*128}, v{c.V_KXA}')
            e.e(f'v_add_u32 v{c.V_VA}, {8*1280}, v{c.V_VA}')
    body(True, b1[:4]); body(False, b1[4:]); body()
    e.wait_vm0(); e.e('s_barrier')
    body()
    body(False, b2[:4]); body(False, b2[4:8]); body(False, b2[8:]); body()
    P.stamp('trip1 done')
    make_srd(e, S_R0, P_WD, 4608 * 1152)
    e.e(f's_bfe_u32 s{c.X0}, s2, 0x20001')
    e.e(f's_mul_i32 s55, s{c.X0}, {1152*1152}')
    e.e(f's_lshr_b32 s{c.X0}, s2, 3')
    e.e(f's_lshl_b32 s{c.X0}, s{c.X0}, 2')
    e.e(f's_add_u32 s{c.X0}, s{c.X0}, s{S_W}')
    e.e(f's_mul_i32 s{c.X0}, s{c.X0}, {1152*1152 // 128}')
    e.e(f's_add_u32 s55, s55, s{c.X0}')
    warm = [[f'buffer_load_dwordx4 v[224:227], v{V_L16}, s[{S_R0}:{S_R0+3}], s55 offen', 's_add_u32 s55, s55, 1024'] for _ in range(3)]
    e.wait_vm0()
    e.e('s_barrier')
    e.e(f's_mov_b32 s{c.TRIP}, 2')
    lab = f'{NAME}_p2loop'
    e.label(lab)
    st0 = e.state(); m0 = e.mark()
    body(False, [[('RAW', warm[0][0]), warm[0][1]]]); body(False, [[('RAW', warm[1][0]), warm[1][1]]]); body(False, [[('RAW', warm[2][0]), warm[2][1]]]); body()
    e.e(f's_add_u32 s{c.TRIP}, s{c.TRIP}, 1')
    e.e(f's_cmp_lt_u32 s{c.TRIP}, 6')
    e.e(f's_cbranch_scc1 {lab}')
    bad = e.check_loop(m0); assert not bad, bad
    st1 = e.state(); assert [a for a, b in st0[0]] == [a for a, b in st1[0]], (st0[0], st1[0])
    P.stamp('loop4 done')
    e.raw('    s_waitcnt vmcnt(0)'); e.vm_q = []
    sa, sb = p3_setup()
    ca = [sa[i:i+8] for i in range(0, len(sa), 8)]
    cb_ = [sb[i:i+7] for i in range(0, len(sb), 7)]
    pi = poll_issue(e, F_H, p3_ids8(47), 8, 4)
    bl = []
    for u in range(8): bl += p3_bload_groups(0, base=32 * u)
    t6 = [pi] + ca + cb_ + [[lambda: poll_check(e, 8, 4)]]
    while len(t6) < 40: t6.append(bl.pop(0))
    q4 = -(-len(t6) // 4)
    for i in range(4): body(False, t6[i*q4:(i+1)*q4])
    e.e('s_barrier')
    p3_srds(e)
    w0 = p3_dma_unit(P3.WD, P3.V_DO, P3.R[0])
    w1 = p3_dma_unit(P3.WD, P3.V_DO, P3.R[1])
    w1[0] = [f's_add_u32 s{P3.WOFF}, s{P3.WOFF}, {128*1152}'] + w1[0]
    t7 = []
    ws_ = w0 + w1
    while bl or ws_:
        if ws_: t7.append(ws_.pop(0))
        if bl: t7.append(bl.pop(0))
        if bl: t7.append(bl.pop(0))
    q4 = -(-len(t7) // 4)
    for i in range(4): body(False, t7[i*q4:(i+1)*q4])
    e.e(f's_add_u32 s{P3.WOFF}, s{P3.WOFF}, {128*1152}')
    P.stamp('p2 loop done')
    e.e(mf(c.OO[1], c.VFR[1][1], c.PP[1] + 4, c.OO[1]))
    e.e(f's_mov_b32 s{c.X0}, {fh(2.0**120)}')
    for t in range(2):
        O = c.OO[t]; l = c.V_T0 + t; x = c.V_T0 + 2 + t; mx = c.V_T0 + 4 + t
        e.e(f'v_mov_b32 v{l}, v{O+10}')
        e.e(f'v_mov_b32 v{x}, v{O+10}')
        e.e(f'v_max3_f32 v{mx}, |v{O}|, |v{O+1}|, |v{O+2}|')
        for r in range(3, 9, 2): e.e(f'v_max3_f32 v{mx}, v{mx}, |v{O+r}|, |v{O+r+1}|')
        e.e(f'v_max3_f32 v{mx}, v{mx}, |v{O+9}|, |v{O+10}|')
        e.e(f'v_permlane32_swap_b32 v{l}, v{x}')
    e.e(f'v_cmp_nge_f32 vcc, s{c.X0}, v{c.V_T0+4}')
    e.e(f's_mov_b64 s[{c.X2}:{c.X3}], vcc')
    e.e(f'v_cmp_nge_f32 vcc, s{c.X0}, v{c.V_T0+5}')
    e.e(f's_or_b64 vcc, vcc, s[{c.X2}:{c.X3}]')
    e.e(f's_cmp_lg_u64 vcc, 0')
    e.e(f's_cselect_b32 s{c.X0}, 1, 0')
    e.e(f'v_mov_b32 v{c.V_T0+7}, s{c.X0}')
    e.e(f's_lshl_b32 s{c.X1}, s{S_W}, 2')
    e.e(f's_add_u32 s{c.X1}, s{c.X1}, {L_MISC + 16}')
    e.e(f'v_mov_b32 v{c.V_T0+8}, s{c.X1}')
    e.e(f'ds_write_b32 v{c.V_T0+8}, v{c.V_T0+7}')
    e.label(f'{NAME}_p2fin')
    for t in range(2):
        O = c.OO[t]; l = c.V_T0 + t
        e.e(f'v_rcp_f32 v{l}, v{l}')
        for r in range(10): e.e(f'v_mul_f32 v{O+r}, v{O+r}, v{l}')
        pk = 128 + 8 * t
        for r in range(5): e.e(f'v_cvt_pk_bf16_f32 v{pk+r}, v{O+2*r}, v{O+2*r+1}')
        e.e(f's_add_u32 s{c.X1}, s{c.T0}, {t}')
        e.e(f's_mul_i32 s{c.X1}, s{c.X1}, 36864')
        e.e(f's_add_u32 s{c.X1}, s{c.X1}, {OF}')
        e.e(f's_lshl_b32 s{c.X2}, s{S_J}, 10')
        e.e(f's_add_u32 s{c.X2}, s{c.X2}, s{c.X1}')
        e.e(f'buffer_store_dwordx4 v[{pk}:{pk+3}], v{V_L16}, {WS}, s{c.X2} offen{SC}')
        e.e(f's_lshr_b32 s{c.X2}, s{S_J}, 3')
        e.e(f's_add_u32 s{c.X2}, s{c.X2}, 32')
        e.e(f's_lshl_b32 s{c.X2}, s{c.X2}, 10')
        e.e(f's_add_u32 s{c.X1}, s{c.X1}, s{c.X2}')
        e.e(f's_bfe_u32 s{c.X2}, s{S_J}, 0x10002')
        e.e(f's_lshl_b32 s{c.X2}, s{c.X2}, 9')
        e.e(f's_add_u32 s{c.X1}, s{c.X1}, s{c.X2}')
        e.e(f's_and_b32 s{c.X2}, s{S_J}, 3')
        e.e(f's_lshl_b32 s{c.X2}, s{c.X2}, 2')
        e.e(f's_add_u32 s{c.X1}, s{c.X1}, s{c.X2}')
        if t == 0:
            e.e(f'v_mov_b32 v{c.V_T0+6}, 0x7ff00000')
            e.e('v_cmp_gt_u32 vcc, 32, v0')
            e.e(f'v_cndmask_b32 v{c.V_T0+6}, v{c.V_T0+6}, v{V_L16}, vcc')
        e.e(f'buffer_store_dword v{pk+4}, v{c.V_T0+6}, {WS}, s{c.X1} offen{SC}')
    e.wait_all()
    e.e('s_barrier')
    e.e(f'v_mov_b32 v{c.V_T0+8}, {L_MISC + 16}')
    e.e(f'ds_read_b128 v[{c.V_T0+4}:{c.V_T0+7}], v{c.V_T0+8}')
    e.e(f'v_or3_b32 v{c.V_T0+4}, v{c.V_T0+4}, v{c.V_T0+5}, v{c.V_T0+6}')
    e.e(f'v_or_b32 v{c.V_T0+4}, v{c.V_T0+4}, v{c.V_T0+7}')
    e.e(f'v_readfirstlane_b32 s{c.X0}, v{c.V_T0+4}')
    e.e(f's_cmp_lg_u32 s{c.X0}, 0')
    e.e(f's_cbranch_scc1 {NAME}_p2slow')
    e.label(f'{NAME}_p2ok')
    publish(e, F_O)
    P.stamp('rp2 done', real=True)

def emit_p2_slow(e):
    c = P2
    e.label(f'{NAME}_p2slow')
    e.lds_q = []; e.vm_q = []
    e.e('s_waitcnt vmcnt(0) lgkmcnt(0)')
    e.e('s_barrier')
    e.e(f'v_mov_b32 v{c.V_T0+7}, 0')
    e.e(f's_lshl_b32 s{c.X1}, s{S_W}, 2')
    e.e(f's_add_u32 s{c.X1}, s{c.X1}, {L_MISC + 16}')
    e.e(f'v_mov_b32 v{c.V_T0+8}, s{c.X1}')
    e.e(f'ds_write_b32 v{c.V_T0+8}, v{c.V_T0+7}')
    for i in range(9):
        for x in kv_grp(c.A, c.L_KM, lambda x, i=i: [f's_add_u32 s{x}, s{S_W}, {4*i}'], 46, 47): e.e(x)
        for x in kv_grp(c.C, c.L_V, lambda x, i=i: [f's_add_u32 s{x}, s{S_W}, {4*i}'], 46, 47): e.e(x)
    e.e('s_waitcnt vmcnt(0) lgkmcnt(0)')
    e.e('s_barrier')
    MX = [160, 161]; AL = 162; TM = 163; TX = 164
    for t in range(2):
        e.e(f'v_mov_b32 v{c.QE[t]+1}, 0')
        e.e(f'v_mov_b32 v{MX[t]}, 0xff7fffff')
        for r in range(16): e.e(f'v_mov_b32 v{c.OO[t]+r}, 0')
    e.e(f'v_subrev_u32 v{c.V_KA}, {32*2048}, v{c.V_KA}')
    e.e(f'v_subrev_u32 v{c.V_KXA}, {32*256}, v{c.V_KXA}')
    e.e(f'v_subrev_u32 v{c.V_VA}, {32*2560}, v{c.V_VA}')
    e.e(f's_mov_b32 s{c.TRIP}, 0')
    lab = f'{NAME}_p2slowloop'
    e.label(lab)
    ms = e.mark()
    for x in kreads(0, 0) + vreads(0, 0): e.e(x)
    for t in range(2):
        for x in qk(0, 0, t): e.e(x)
    for t in range(2):
        S = c.SS[0][t]
        e.e(f'v_max3_f32 v{TM}, v{S}, v{S+1}, v{S+2}')
        for r in range(3, 15, 2): e.e(f'v_max3_f32 v{TM}, v{TM}, v{S+r}, v{S+r+1}')
        e.e(f'v_max_f32 v{TM}, v{TM}, v{S+15}')
        e.e(f'v_mov_b32 v{TX}, v{TM}')
        e.e(f'v_permlane32_swap_b32 v{TM}, v{TX}')
        e.e(f'v_max3_f32 v{TM}, v{TM}, v{TX}, v{MX[t]}')
        e.e(f'v_sub_f32 v{AL}, v{MX[t]}, v{TM}')
        e.e(f'v_exp_f32 v{AL}, v{AL}')
        e.e(f'v_mov_b32 v{MX[t]}, v{TM}')
        for r in range(16): e.e(f'v_sub_f32 v{S+r}, v{S+r}, v{TM}')
        for r in range(16): e.e(f'v_exp_f32 v{S+r}, v{S+r}')
        for r in range(16): e.e(f'v_mul_f32 v{c.OO[t]+r}, v{c.OO[t]+r}, v{AL}')
        for r in range(8): e.e(f'v_cvt_pk_bf16_f32 v{c.PP[t]+r}, v{S+2*r}, v{S+2*r+1}')
        for g in range(2): e.e(mf(c.OO[t], c.VFR[0][g], c.PP[t] + 4 * g, c.OO[t]))
    e.e(f'v_add_u32 v{c.V_KA}, 1024, v{c.V_KA}')
    e.e(f'v_add_u32 v{c.V_KXA}, 128, v{c.V_KXA}')
    e.e(f'v_add_u32 v{c.V_VA}, 1280, v{c.V_VA}')
    e.e('s_nop 15')
    e.e(f's_add_u32 s{c.TRIP}, s{c.TRIP}, 1')
    e.e(f's_cmp_lt_u32 s{c.TRIP}, 64')
    e.e(f's_cbranch_scc1 {lab}')
    bad = e.check_loop(ms); assert not bad, bad
    e.e('s_nop 15')
    e.e('s_waitcnt lgkmcnt(0)')
    e.e('s_barrier')
    e.e(f's_sub_u32 s{P3.WOFF}, s{P3.WOFF}, {2*128*1152}')
    for g in p3_dma_unit(P3.WD, P3.V_DO, P3.R[0]):
        for x in g: e.e(x)
    e.e(f's_add_u32 s{P3.WOFF}, s{P3.WOFF}, {128*1152}')
    for g in p3_dma_unit(P3.WD, P3.V_DO, P3.R[1]):
        for x in g: e.e(x)
    e.e(f's_add_u32 s{P3.WOFF}, s{P3.WOFF}, {128*1152}')
    for t in range(2):
        O = c.OO[t]; l = c.V_T0 + t; x = c.V_T0 + 2 + t
        e.e(f'v_mov_b32 v{l}, v{O+10}')
        e.e(f'v_mov_b32 v{x}, v{O+10}')
        e.e(f'v_permlane32_swap_b32 v{l}, v{x}')
    e.e(f's_branch {NAME}_p2fin')

class P3:
    WD, WO = S_R0, S_R1
    C2, MT, CQ, TT, HB, WOFF, U = 55, 56, 57, 58, 59, 60, 61
    R = [62, 63, 64, 68]
    A, B = 46, 47
    V_DO, V_D2, V_DX = 192, 201, 210
    V_RB, V_RD, V_BO = 219, 220, 222
    AF = 32
    NSLOT, DIST = 6, 4
    BF = [0, 32]
    ACC = 96
    UNIT = 36864
    SLOTS = [0, 73728, 36864, 110592]

def p3_areads(vrd, ks, cb, slot):
    b = P3.AF + 4 * slot
    o = ks * 9216 + cb * 32
    return [f'ds_read_b64_tr_b16 v[{b}:{b+1}], v{vrd} offset:{o}',
            f'ds_read_b64_tr_b16 v[{b+2}:{b+3}], v{vrd} offset:{o + 8*288}']

def poll_ids(e, phase, idexpr, n):
    for x in idexpr: e.e(x)
    poll(e, phase, 3, n)

def p3_ids8(a):
    return ['v_and_b32 v3, 7, v0', 'v_lshlrev_b32 v3, 5, v3', f's_lshr_b32 s{a}, s2, 6', f's_lshl_b32 s{a}, s{a}, 3',
            f'v_add_u32 v3, s{a}, v3', f's_and_b32 s{a}, s2, 7', f'v_add_u32 v3, s{a}, v3']

L_STASH = 157696
P3_STASH = None
def p3_stash_regs():
    c = P3
    return [c.V_DO + j for j in range(9)] + [c.V_D2] + [c.V_DX + j for j in range(9)] + [c.V_RB, c.V_BO]

def p3_lane_setup(e):
    c = P3
    t0, t1, t2, t3 = 8, 9, 10, 11
    R = 16
    e.e('s_bfe_u32 s48, s2, 0x20003')
    e.e('s_mul_i32 s48, s48, 288')
    e.e(f's_mov_b32 s49, {(2**32 + 287) // 288}')
    for j in range(9):
        for x in [f'v_add_u32 v{t0}, {j*1024}, v{V_L16}',
                  f'v_mul_hi_u32 v{t1}, v{t0}, s49',
                  f'v_mul_u32_u24 v{t2}, 288, v{t1}',
                  f'v_sub_u32 v{t0}, v{t0}, v{t2}',
                  f'v_add_u32 v{t0}, s48, v{t0}',
                  f'v_mul_u32_u24 v{t2}, 1152, v{t1}',
                  f'v_add_u32 v{R+j}, v{t0}, v{t2}']: e.e(x)
        if j == 4:
            for x in [f'v_lshrrev_b32 v{t2}, 4, v{t1}', f'v_mul_u32_u24 v{t2}, {2*1152}, v{t2}', f'v_add_u32 v{R+9}, v{R+j}, v{t2}']: e.e(x)
        for x in [f'v_bfe_u32 v{t2}, v{t1}, 2, 1', f'v_lshlrev_b32 v{t2}, 2, v{t2}', f'v_bfe_u32 v{t3}, v{t1}, 1, 1', f'v_add_u32 v{t2}, v{t2}, v{t3}',
                  f'v_bfe_u32 v{t3}, v{t1}, 3, 1', f'v_lshl_add_u32 v{t2}, v{t3}, 1, v{t2}', f'v_mul_u32_u24 v{t2}, 18, v{t2}', f'v_and_b32 v{t3}, 1, v{t1}',
                  f'v_add3_u32 v{t2}, v{t2}, v{t3}, 16', f'v_mul_u32_u24 v{t2}, 1152, v{t2}', f'v_add_u32 v{R+10+j}, v{t0}, v{t2}']: e.e(x)
    for x in [f'v_lshrrev_b32 v{t0}, 5, v0', f'v_lshlrev_b32 v{t0}, 4, v{t0}', f'v_bfe_u32 v{t1}, v0, 4, 1', f'v_lshl_add_u32 v{t0}, v{t1}, 2, v{t0}',
              f'v_bfe_u32 v{t1}, v0, 2, 2', f'v_add_u32 v{t0}, v{t0}, v{t1}', f'v_mul_u32_u24 v{t0}, 288, v{t0}', f'v_and_b32 v{t1}, 3, v0',
              f'v_lshl_add_u32 v{R+19}, v{t1}, 3, v{t0}',
              f'v_lshrrev_b32 v{t0}, 5, v0', f'v_lshlrev_b32 v{t0}, 10, v{t0}', f'v_bfe_u32 v{t1}, v0, 4, 1', f'v_lshl_add_u32 v{t0}, v{t1}, 9, v{t0}',
              f'v_and_b32 v{t1}, 15, v0', f'v_lshl_add_u32 v{R+20}, v{t1}, 4, v{t0}',
              f'v_lshlrev_b32 v{t0}, 2, v0', f'v_add_u32 v{t0}, {L_STASH}, v{t0}']: e.e(x)
    for k in range(21): e.e(f'ds_write_b32 v{t0}, v{R+k} offset:{256*k}')
    e.wait_lgkm0()

def p3_setup():
    c = P3; o = []
    o += [f's_bfe_u32 s{c.C2}, s2, 0x20001', f's_and_b32 s{c.MT}, s2, 1', f's_lshl_b32 s{c.MT}, s{c.MT}, 3', f's_lshr_b32 s{c.A}, s2, 5',
          f's_add_u32 s{c.MT}, s{c.MT}, s{c.A}', f's_bfe_u32 s{c.CQ}, s2, 0x20003', f's_lshl_b32 s{c.TT}, s{c.MT}, 2', f's_add_u32 s{c.TT}, s{c.TT}, s{S_W}']
    o += [f's_mul_i32 s{c.HB}, s{c.TT}, {288*1024}', f's_mul_i32 s{c.A}, s{c.C2}, {72*1024}', f's_add_u32 s{c.HB}, s{c.HB}, s{c.A}', f's_add_u32 s{c.HB}, s{c.HB}, {HF}']
    o += ['v_lshlrev_b32 v12, 2, v0', f'v_add_u32 v12, {L_STASH}, v12']
    regs = p3_stash_regs()
    o += [f'ds_read_b32 v{regs[20]}, v12 offset:{256*20}']
    first = o; o = []
    o += [f'ds_read_b32 v{regs[k]}, v12 offset:{256*k}' for k in range(20)]
    o += [f's_mul_i32 s{c.WOFF}, s{c.C2}, {72*16}', f's_lshl_b32 s{c.A}, s{S_W}, 5', f's_add_u32 s{c.WOFF}, s{c.WOFF}, s{c.A}', f's_mul_i32 s{c.WOFF}, s{c.WOFF}, 1152']
    o += [f's_mov_b32 s{c.R[i]}, {c.SLOTS[i]}' for i in range(4)]
    return first, o

def p3_srds(e):
    make_srd(e, P3.WD, P_WD, 4608 * 1152)
    make_srd(e, P3.WO, P_WO, 576 * 1152)

def p3_dma_unit(srd, vo, rslot):
    c = P3; out = []
    for j in range(9):
        g = []
        if j == 0: g += [f's_mul_i32 s48, s{S_W}, 9216', f's_add_u32 s48, s48, s{rslot}']
        reg, so = vo + j, c.WOFF
        if vo == c.V_D2:
            reg = c.V_D2 if j == 4 else c.V_DO + j
            so = c.U if j > 4 else c.WOFF
            if j == 0: g.append(f's_add_u32 s{c.U}, s{c.WOFF}, {2*1152}')
        g += [f's_add_u32 m0, s48, {j*1024}', f'buffer_load_dwordx4 v{reg}, s[{srd}:{srd+3}], s{so} offen lds']
        out.append(g)
    return out

def p3_bloads(base):
    c = P3
    return [f'buffer_load_dwordx4 a[{base+8*k+4*th}:{base+8*k+4*th+3}], v{c.V_BO}, {WS}, s{c.HB} offen offset:{(k%2)*2048+th*256}{SCL}'
            for k in range(4) for th in range(2)]

def p3_bload_groups(buf, base=None):
    c = P3; L = p3_bloads(base); out = []
    for i, x in enumerate(L):
        g = []
        if i == 4: g.append(f's_add_u32 s{c.HB}, s{c.HB}, 4096')
        g.append(x)
        if i == 7: g.append(f's_add_u32 s{c.HB}, s{c.HB}, 4096')
        out.append(g)
    return out

def emit_p3(e, P, prefetched):
    c = P3
    e.e(f'v_add_u32 v{c.V_RD}, s{c.R[0]}, v{c.V_RB}')
    P.stamp('p3 u0 ready')
    seq = [(ks, cb) for ks in range(4) for cb in range(9)]
    for i in range(c.DIST):
        for x in p3_areads(c.V_RD, seq[i][0], seq[i][1], i % c.NSLOT): e.e(x)
    def unit(bb, first, dma, bl, nks=4, nxt=True, hook=None):
        n = nks * 9
        fl = [list(g) for g in dma]; bl = [list(g) for g in bl]
        e.e(f'v_add_u32 v{c.V_RD+1}, s{c.R[1]}, v{c.V_RB}')
        for i in range(n):
            ks, cb = seq[i]
            if i == n - c.DIST and nxt:
                wait_tags(e, ('dma_prev',))
                e.e('s_barrier')
            if hook and i == hook[0]: hook[1]()
            j = i + c.DIST
            rd = []
            if j < n: rd = p3_areads(c.V_RD, seq[j][0], seq[j][1], j % c.NSLOT)
            elif nxt: rd = p3_areads(c.V_RD + 1, seq[j - n][0], seq[j - n][1], j % c.NSLOT)
            a = c.AF + 4 * (i % c.NSLOT)
            g = None
            for th in range(2):
                d = c.ACC + 4 * (th * 9 + cb); b = bb + 8 * ks + 4 * th
                cc = '0' if (first and ks == 0) else f'v[{d}:{d+3}]'
                e.e(f'v_mfma_f32_16x16x32_bf16 v[{d}:{d+3}], v[{a}:{a+3}], a[{b}:{b+3}], {cc}')
                if th == 0:
                    if fl and i % 3 == 1:
                        g = fl.pop(0)
                        for x in g[:-1]: e.e(x)
                    if rd: e.e(rd[0])
                else:
                    if rd: e.e(rd[1])
                    if g: e.e(g[-1], tag='dma'); g = None
                    if bl and i % 4 == 3:
                        for x in bl.pop(0): e.e(x)
        assert not fl and not bl
        e.e(f'v_mov_b32 v{c.V_RD}, v{c.V_RD+1}')
        e.e(f's_mov_b32 s{c.A}, s{c.R[0]}')
        for i in range(3): e.e(f's_mov_b32 s{c.R[i]}, s{c.R[i+1]}')
        e.e(f's_mov_b32 s{c.R[3]}, s{c.A}')
    def retag():
        e.vm_q = [(d, 'dma_prev' if t == 'dma' else t) for d, t in e.vm_q]
    adv = lambda: e.e(f's_add_u32 s{c.WOFF}, s{c.WOFF}, {128*1152}')
    for u in range(7):
        if u == 6:
            for x in poll_issue(e, F_O, p3_ids8(c.A), 8, 8): emit_item(e, x)
        retag()
        unit(32 * u, u == 0, p3_dma_unit(c.WD, c.V_DO, c.R[2]), p3_bload_groups(0, base=0) if u == 1 else [])
        adv()
    e.e(f's_lshl_b32 s{c.WOFF}, s{c.C2}, 3')
    e.e(f's_lshl_b32 s{c.A}, s{S_W}, 1')
    e.e(f's_add_u32 s{c.WOFF}, s{c.WOFF}, s{c.A}')
    e.e(f's_mul_i32 s{c.WOFF}, s{c.WOFF}, {18*1152}')
    retag()
    unit(32 * 7, False, p3_dma_unit(c.WO, c.V_D2, c.R[2]), [])
    e.e(f's_mul_i32 s{c.WOFF}, s{c.C2}, {144*1152}')
    e.e(f's_mul_i32 s{c.HB}, s{c.TT}, 36864')
    e.e(f's_lshl_b32 s{c.A}, s{c.C2}, 13')
    e.e(f's_add_u32 s{c.HB}, s{c.HB}, s{c.A}')
    e.e(f's_add_u32 s{c.HB}, s{c.HB}, {OF}')
    poll_check(e, 8, 8)
    retag()
    unit(0, False, p3_dma_unit(c.WO, c.V_DX, c.R[2]), p3_bload_groups(0, base=32))
    e.e(f's_mul_i32 s{c.HB}, s{c.TT}, 36864')
    e.e(f's_add_u32 s{c.A}, s{c.C2}, 32')
    e.e(f's_lshl_b32 s{c.A}, s{c.A}, 10')
    e.e(f's_add_u32 s{c.HB}, s{c.HB}, s{c.A}')
    e.e(f's_add_u32 s{c.HB}, s{c.HB}, {OF}')
    e.e('v_mov_b32 v12, 0x7ff00000')
    e.e('v_cmp_gt_u32 vcc, 32, v0')
    e.e(f'v_cndmask_b32 v12, v12, v{c.V_BO}, vcc')
    ext = [[f'buffer_load_dwordx4 a[{64+4*th}:{64+4*th+3}], v12, {WS}, s{c.HB} offen offset:{th*256}{SCL}'] for th in range(2)]
    retag()
    unit(32, False, [], ext)
    unit(64, False, [], [], nks=1, nxt=False)
    P.stamp('p3 k done'); P.stamp('rp3 k done', real=True)
    e.e(f's_mul_i32 s{c.A}, s{c.C2}, {64*36*1024}')
    e.e(f's_mul_i32 s{c.B}, s{c.TT}, {36*1024}')
    e.e(f's_add_u32 s{c.A}, s{c.A}, s{c.B}')
    e.e(f's_mul_i32 s{c.B}, s{c.CQ}, {9*1024}')
    e.e(f's_add_u32 s{c.A}, s{c.A}, s{c.B}')
    e.e(f's_add_u32 s{c.A}, s{c.A}, {PART}')
    for cb in range(9):
        pk = 32 + 4 * (cb % 6)
        for th in range(2):
            d = c.ACC + 4 * (th * 9 + cb)
            for r in range(2): e.e(f'v_cvt_pk_bf16_f32 v{pk+2*th+r}, v{d+2*r}, v{d+2*r+1}')
        if cb and cb % 4 == 0: e.e(f's_add_u32 s{c.A}, s{c.A}, 4096')
        e.e(f'buffer_store_dwordx4 v[{pk}:{pk+3}], v{V_L16}, {WS}, s{c.A} offen offset:{(cb%4)*1024}{SC}')
    e.wait_all()
    e.e('s_barrier')
    publish(e, F_PART)
    P.stamp('p3 done')

def emit_p4_pre(e):
    c = P3
    X, OUT = S_R0, S_R1
    make_srd(e, X, P_X, 2048 * 1152)
    make_srd(e, OUT, P_OUT, 2048 * 1152)
    TF, RO, PB = 50, 51, 52
    e.e(f's_lshl_b32 s{TF}, s{c.MT}, 2')
    e.e(f's_add_u32 s{TF}, s{TF}, s{c.C2}')
    e.e(f's_mul_i32 s{RO}, s{TF}, {32*1152}')
    e.e(f's_mul_i32 s{c.A}, s{c.CQ}, 288')
    e.e(f's_add_u32 s{RO}, s{RO}, s{c.A}')
    e.e(f's_mul_i32 s{PB}, s{TF}, {36*1024}')
    e.e(f's_mul_i32 s{c.A}, s{c.CQ}, {9*1024}')
    e.e(f's_add_u32 s{PB}, s{PB}, s{c.A}')
    e.e(f's_add_u32 s{PB}, s{PB}, {PART}')
    e.e('v_and_b32 v14, 15, v0')
    e.e('v_mul_u32_u24 v14, 1152, v14')
    e.e('v_lshrrev_b32 v15, 4, v0')
    e.e('v_lshl_add_u32 v16, v15, 3, v14')
    e.e('v_and_b32 v17, 1, v15')
    e.e(f'v_mul_u32_u24 v17, {16*1152}, v17')
    e.e('v_add_u32 v17, v17, v14')
    e.e('v_lshrrev_b32 v15, 1, v15')
    e.e('v_lshl_add_u32 v17, v15, 4, v17')
    for k in range(3):
        e.e(f's_add_u32 s{53+k}, s{S_W}, {4*k}')
        e.e(f's_cmp_lt_u32 s{53+k}, 9')
        e.e(f's_cselect_b32 s{56+k+10}, 0, 0x70000000')
        e.e(f's_lshl_b32 s{c.A}, s{53+k}, 5')
        e.e(f's_add_u32 s{c.A}, s{c.A}, s{RO}')
        e.e(f's_add_u32 s{c.A}, s{c.A}, s{66+k}')
        e.e(f'v_add_u32 v{8+k}, s{c.A}, v16')
        e.e(f'v_add_u32 v{11+k}, s{c.A}, v17')
        e.e(f's_lshl_b32 s{53+k}, s{53+k}, 10')
        e.e(f's_add_u32 s{53+k}, s{53+k}, s{PB}')
        e.e(f's_add_u32 s{53+k}, s{53+k}, s{66+k}')
    for k in range(3):
        e.e(f'buffer_load_dwordx2 v[{20+4*k}:{21+4*k}], v{8+k}, s[{X}:{X+3}], 0 offen')
        e.e(f's_mov_b32 s{c.A}, {16*1152}')
        e.e(f'buffer_load_dwordx2 v[{22+4*k}:{23+4*k}], v{8+k}, s[{X}:{X+3}], s{c.A} offen')

def emit_p4(e, P):
    c = P3
    OUT = S_R1
    ids = ['v_and_b32 v3, 3, v0', 'v_lshlrev_b32 v3, 1, v3', f's_and_b32 s{c.A}, s2, 0xf9', f'v_add_u32 v3, s{c.A}, v3']
    poll_ids(e, F_PART, ids, 4)
    P.stamp('p4 polled')
    PR = 64
    for k in range(3):
        for cc in range(4):
            r = PR + (k * 4 + cc) * 4
            e.e(f'buffer_load_dwordx4 v[{r}:{r+3}], v{V_L16}, {WS}, s{53+k} offen{SCL}')
            if cc < 3: e.e(f's_add_u32 s{53+k}, s{53+k}, {64*36*1024}')
    for k in range(3):
        A = 128 + 16 * k; Tm = A + 8
        for i in range(4):
            e.e(f'v_lshlrev_b32 v{A+2*i}, 16, v{20+4*k+i}')
            e.e(f'v_and_b32 v{A+2*i+1}, 0xffff0000, v{20+4*k+i}')
        for cc in range(4):
            r = PR + (k * 4 + cc) * 4
            for i in range(4):
                e.e(f'v_lshlrev_b32 v{Tm+2*i}, 16, v{r+i}')
                e.e(f'v_and_b32 v{Tm+2*i+1}, 0xffff0000, v{r+i}')
            for i in range(8): e.e(f'v_add_f32 v{A+i}, v{A+i}, v{Tm+i}')
        D = 40 + 4 * k
        for i in range(4): e.e(f'v_cvt_pk_bf16_f32 v{D+i}, v{A+2*i}, v{A+2*i+1}')
        e.e(f'v_permlane16_swap_b32 v{D}, v{D+2}')
        e.e(f'v_permlane16_swap_b32 v{D+1}, v{D+3}')
        e.e(f'buffer_store_dwordx4 v[{D}:{D+3}], v{11+k}, s[{OUT}:{OUT+3}], 0 offen')
    P.stamp('p4 stores issued')

def gen_mega(prof=False):
    e = Emitter()
    header(e, NAME)
    P = Prof2(e, prof)
    P.stamp('start', hold=True); P.stamp('rstart', real=True, hold=True)
    emit_start(e, P)
    l1 = e.newlabel('w23'); l2 = e.newlabel('join'); l4 = e.newlabel('w3')
    e.e(f's_cmp_ge_u32 s{S_W}, 2')
    e.e(f's_cbranch_scc1 {l1}')
    emit_ln(e, P)
    p1_setup(e)
    e.e(f's_branch {l2}')
    e.label(l1)
    e.vm_q = []; e.lds_q = []
    e.e(f's_cmp_eq_u32 s{S_W}, 2')
    e.e(f's_cbranch_scc0 {l4}')
    p1_setup(e)
    p1_dma_first(e, 0, 0, 0, 14)
    e.e(f's_branch {l2}')
    e.label(l4)
    e.vm_q = []; e.lds_q = []
    emit_nonce(e)
    p1_setup(e)
    e.label(l2)
    e.vm_q = []; e.lds_q = []
    pass
    e.e('s_barrier')
    pass
    read_nonce(e)
    l3 = e.newlabel('lnp')
    e.e(f's_cmp_lg_u32 s{S_W}, 0')
    e.e(f's_cbranch_scc1 {l3}')
    emit_ln_store(e)
    e.wait_vm0()
    pass
    publish(e, F_LN)
    e.e('v_and_b32 v3, 31, v0')
    e.e(f's_lshl_b32 s{T[0]}, s{S_MI}, 5')
    e.e(f'v_add_u32 v3, s{T[0]}, v3')
    poll(e, F_LN, 3, 32)
    l6 = e.newlabel('lnq'); l7 = e.newlabel('lnw3')
    e.e(f's_branch {l6}')
    e.label(l3)
    e.vm_q = []; e.lds_q = []
    l9 = e.newlabel('lnw1')
    e.e(f's_cmp_eq_u32 s{S_W}, 1')
    e.e(f's_cbranch_scc1 {l9}')
    l8 = e.newlabel('lnw2')
    e.e(f's_cmp_eq_u32 s{S_W}, 2')
    e.e(f's_cbranch_scc1 {l8}')
    p1_dma_first(e, P1.BUF1, 64, 0, 36)
    e.e(f's_branch {l6}')
    e.label(l8)
    p1_dma_first(e, 0, 0, 14, 36)
    e.e(f's_branch {l6}')
    e.label(l9)
    e.vm_q = []; e.lds_q = []
    p3_lane_setup(e)
    e.label(l7)
    e.label(l6)

    pass
    e.raw('    s_waitcnt vmcnt(0)'); e.vm_q = []
    pass
    e.e('s_barrier')
    P.stamp('ln synced'); P.stamp('rln synced', real=True)
    emit_p1(e, P)
    emit_p2(e, P)
    emit_p3(e, P, False)
    emit_p4_pre(e)
    emit_p4(e, P)
    if prof:
        e.e('s_waitcnt vmcnt(0)')
        P.stamp('done'); P.stamp('rend', real=True)
        P.dump(P_WS, S_W)
    e.e('s_endpgm')
    emit_p2_slow(e)
    emit_slow_polls(e)
    e.label(f'{NAME}_end')
    e.e('s_endpgm')
    print(f'mega: {len(e.out)} lines, nops {e.nops}, waits {e.waits}')
    return e.text(), descriptor(NAME, 256, 256, ns=102), dict(name=NAME, grid=256, block=256, lds=LDS_TOTAL, prof=P.names)

if __name__ == '__main__':
    import sys, json
    from build import HEAD
    from asmlib import build
    prof = 'prof' in sys.argv
    if 'plainld' in sys.argv: SCL = ''
    for a in sys.argv:
        if a.startswith('ao='): ATT_ORDER = int(a[3:])
        if a.startswith('scx='): SCX = ' ' + a[4:].replace('_', ' ')
    t, d, i = gen_mega(prof)
    s = HEAD + f"; @launch grid=({i['grid']},1,1) block=({i['block']},1,1) lds={i['lds']}\n"
    s += '.amdgcn_target "amdgcn-amd-amdhsa--gfx950"\n.text\n' + t + '.section .rodata,"a"\n' + d
    open('mega.s', 'w').write(s)
    build(s, NAME, 'mega.co')
    json.dump({NAME: i['prof']}, open('mega.json', 'w'))
    print('built', len(s))
```

```python
from kcommon import *

NAME = 'parallel_sum__softmax_full_mha__swiglu_ffn__prompt_kernel'
P_X, P_WQKV, P_WO, P_BX, P_WG, P_WU, P_WD, P_OUT, P_DBG, P_WS = 4, 6, 8, 10, 12, 14, 16, 18, 20, 22
S_WS, S_R0, S_R1, S_R2 = 24, 28, 32, 36
S_MI, S_J, S_W, S_C = 40, 41, 42, 43
S_NONCE = 44
T = list(range(46, 70))
WS = f's[{S_WS}:{S_WS+3}]'
F_LN, F_KV, F_H, F_O, F_PART = 0, 1, 2, 3, 4
LDS_TOTAL = 163840
L_MISC = 163840 - 256
V_L16 = 2
S_SPIN = 69
SPIN_MAX = 400000
SCL = ' sc1'
SCX = ' sc1'
SC = ' sc1'

def publish(e, phase):
    lab = e.newlabel('pub')
    e.e(f's_cmp_lg_u32 s{S_W}, 0')
    e.e(f's_cbranch_scc1 {lab}')
    e.e(f's_lshl_b32 s49, s2, 7')
    e.e(f's_add_u32 s49, s49, {FLAGS + 8*phase}')
    e.e(f'v_mov_b32 v4, s{S_NONCE}')
    e.e(f'v_mov_b32 v5, s{S_NONCE+1}')
    e.e('v_mov_b32 v6, 0')
    e.e('s_mov_b64 exec, 1')
    e.e(f'buffer_store_dwordx2 v[4:5], v6, {WS}, s49 offen sc1')
    e.e('s_mov_b64 exec, -1')
    e.label(lab)

def poll(e, phase, vid, nlanes, vt=4):
    lab = e.newlabel('poll'); ok = e.newlabel('pollok')
    e.e(f'v_lshlrev_b32 v{vt+2}, 7, v{vid}')
    e.e(f'v_add_u32 v{vt+2}, {FLAGS + 8*phase}, v{vt+2}')
    e.e(f's_mov_b64 exec, {hex((1 << nlanes) - 1)}' if nlanes > 32 or nlanes == 32 else f's_mov_b64 exec, {(1 << nlanes) - 1}')
    e.e(f's_mov_b32 s{S_SPIN}, {SPIN_MAX}')
    e.label(lab)
    e.raw(f'    s_sub_u32 s{S_SPIN}, s{S_SPIN}, 1')
    e.raw(f'    s_cbranch_scc1 {ok}')
    e.raw(f'    buffer_load_dwordx2 v[{vt}:{vt+1}], v{vt+2}, {WS}, 0 offen sc1')
    e.raw('    s_waitcnt vmcnt(0)')
    e.raw(f'    v_cmp_ne_u32 vcc, s{S_NONCE}, v{vt}')
    e.raw(f'    v_cmp_ne_u32 s[{T[1]+ (T[1] & 1)}:{T[1]+(T[1]&1)+1}], s{S_NONCE+1}, v{vt+1}')
    e.raw('    s_nop 4')
    e.raw(f'    s_or_b64 vcc, vcc, s[{T[1]+(T[1]&1)}:{T[1]+(T[1]&1)+1}]')
    e.raw('    s_nop 4')
    e.raw(f'    s_cbranch_vccz {ok}')
    e.raw('    s_sleep 1')
    e.raw(f'    s_branch {lab}')
    e.label(ok)
    e.e('s_mov_b64 exec, -1')
    e.vm_q = []

SLOW_POLLS = []
def poll_issue(e, phase, idexpr, n, vt):
    out = list(idexpr)
    out += [f'v_lshlrev_b32 v{vt+2}, 7, v3', f'v_add_u32 v{vt+2}, {FLAGS + 8*phase}, v{vt+2}',
            f's_mov_b64 exec, {(1 << n) - 1}', (f'buffer_load_dwordx2 v[{vt}:{vt+1}], v{vt+2}, {WS}, 0 offen sc1', 'poll'), 's_mov_b64 exec, -1']
    return out
def poll_check(e, n, vt):
    slow = e.newlabel('pslow'); back = e.newlabel('pback')
    pr = 48
    wait_tags(e, ('poll',))
    e.e(f's_mov_b64 exec, {(1 << n) - 1}')
    e.e(f'v_cmp_ne_u32 vcc, s{S_NONCE}, v{vt}')
    e.e(f'v_cmp_ne_u32 s[{pr}:{pr+1}], s{S_NONCE+1}, v{vt+1}')
    e.e(f's_or_b64 vcc, vcc, s[{pr}:{pr+1}]')
    e.e(f's_cbranch_vccnz {slow}')
    e.label(back)
    e.e('s_mov_b64 exec, -1')
    SLOW_POLLS.append((slow, back, vt))
def emit_slow_polls(e):
    for slow, back, vt in SLOW_POLLS:
        lp = e.newlabel('psl')
        e.label(slow)
        e.raw(f'    s_mov_b32 s{S_SPIN}, {SPIN_MAX}')
        e.label(lp)
        e.raw(f'    s_sub_u32 s{S_SPIN}, s{S_SPIN}, 1')
        e.raw(f'    s_cbranch_scc1 {back}')
        e.raw('    s_sleep 1')
        e.raw(f'    buffer_load_dwordx2 v[{vt}:{vt+1}], v{vt+2}, {WS}, 0 offen sc1')
        e.raw('    s_waitcnt vmcnt(0)')
        e.raw(f'    v_cmp_ne_u32 vcc, s{S_NONCE}, v{vt}')
        e.raw(f'    v_cmp_ne_u32 s[48:49], s{S_NONCE+1}, v{vt+1}')
        e.raw('    s_nop 4')
        e.raw('    s_or_b64 vcc, vcc, s[48:49]')
        e.raw('    s_nop 4')
        e.raw(f'    s_cbranch_vccnz {lp}')
        e.raw(f'    s_branch {back}')

def emit_start(e, P):
    e.e('s_cmp_ge_u32 s2, 256')
    e.e(f's_cbranch_scc1 {NAME}_end')
    e.e('s_load_dwordx16 s[4:19], s[0:1], 0')
    e.e('s_load_dwordx4 s[20:23], s[0:1], 64')
    e.e('v_lshrrev_b32 v1, 6, v0')
    e.e('v_and_b32 v0, 63, v0')
    e.e(f'v_readfirstlane_b32 s{S_W}, v1')
    e.e(f's_and_b32 s{S_C}, s2, 7')
    e.e(f's_and_b32 s{T[0]}, s2, 1')
    e.e(f's_lshl_b32 s{T[0]}, s{T[0]}, 2')
    e.e(f's_bfe_u32 s{T[1]}, s2, 0x20003')
    e.e(f's_add_u32 s{S_MI}, s{T[0]}, s{T[1]}')
    e.e(f's_bfe_u32 s{T[0]}, s2, 0x20001')
    e.e(f's_lshl_b32 s{T[0]}, s{T[0]}, 3')
    e.e(f's_lshr_b32 s{T[1]}, s2, 5')
    e.e(f's_add_u32 s{S_J}, s{T[0]}, s{T[1]}')
    e.e(f'v_lshlrev_b32 v{V_L16}, 4, v0')
    e.wait_lgkm0()
    make_srd(e, S_WS, P_WS, WS_USED)

L_XN = 73728
def emit_ln(e, P):
    make_srd(e, S_R2, P_X, 2048 * 1152)
    e.e('v_lshrrev_b32 v3, 4, v0')
    e.e('v_and_b32 v6, 15, v0')
    e.e(f's_lshl_b32 s{T[0]}, s2, 3')
    e.e(f's_lshl_b32 s{T[1]}, s{S_W}, 2')
    e.e(f's_add_u32 s{T[0]}, s{T[0]}, s{T[1]}')
    e.e(f'v_add_u32 v4, s{T[0]}, v3')
    e.e('v_mul_u32_u24 v4, 1152, v4')
    e.e('v_lshl_add_u32 v4, v6, 3, v4')
    for i in range(9):
        e.e(f'buffer_load_dwordx2 v[{8+2*i}:{9+2*i}], v4, s[{S_R2}:{S_R2+3}], 0 offen offset:{128*i}')
    e.e(f'v_add_u32 v3, s{T[1]}, v3')
    e.e('v_lshrrev_b32 v5, 1, v6')
    e.e('v_lshl_add_u32 v5, v5, 3, v3')
    e.e('v_lshlrev_b32 v5, 4, v5')
    e.e('v_and_b32 v6, 1, v6')
    e.e('v_lshl_add_u32 v5, v6, 3, v5')
    e.e(f'v_add_u32 v5, {L_XN}, v5')
    e.e(f's_mov_b32 s{T[0]}, 0x3f803f80')
    e.e('v_mov_b32 v30, 0'); e.e('v_mov_b32 v31, 0'); e.e('v_mov_b32 v32, 0'); e.e('v_mov_b32 v33, 0')
    for i in range(18):
        e.e(f'v_dot2_f32_bf16 v{30+(i&1)}, v{8+i}, s{T[0]}, v{30+(i&1)}')
        e.e(f'v_dot2_f32_bf16 v{32+(i&1)}, v{8+i}, v{8+i}, v{32+(i&1)}')
    pass
    e.e('v_add_f32 v30, v30, v31'); e.e('v_add_f32 v32, v32, v33')
    for m in ('quad_perm:[1,0,3,2]', 'quad_perm:[2,3,0,1]', 'row_half_mirror', 'row_mirror'):
        e.e(f'v_add_f32_dpp v30, v30, v30 {m} row_mask:0xf bank_mask:0xf')
        e.e(f'v_add_f32_dpp v32, v32, v32 {m} row_mask:0xf bank_mask:0xf')
    e.e(f'v_mul_f32 v30, {fh(1.0/576)}, v30')
    e.e(f'v_mul_f32 v32, {fh(1.0/576)}, v32')
    e.e('v_fma_f32 v32, -v30, v30, v32')
    e.e('v_max_f32 v32, 0, v32')
    e.e(f'v_add_f32 v32, {fh(1e-5)}, v32')
    e.e('v_rsq_f32 v32, v32')
    e.e('v_mul_f32 v30, v30, v32')
    for i in range(18):
        e.e(f'v_lshlrev_b32 v34, 16, v{8+i}')
        e.e(f'v_and_b32 v35, 0xffff0000, v{8+i}')
        e.e('v_fma_f32 v34, v34, v32, -v30')
        e.e('v_fma_f32 v35, v35, v32, -v30')
        e.e(f'v_cvt_pk_bf16_f32 v{8+i}, v34, v35')
    for i in range(9):
        e.e(f'ds_write_b64 v5, v[{8+2*i}:{9+2*i}] offset:{1024*i}')
    e.wait_lgkm0()

def emit_ln_store(e):
    e.e(f'v_add_u32 v5, {L_XN}, v{V_L16}')
    for i in range(9): e.e(f'ds_read_b128 v[{8+4*i}:{11+4*i}], v5 offset:{1024*i}')
    e.e(f's_lshr_b32 s{T[0]}, s2, 2')
    e.e(f's_mul_i32 s{T[0]}, s{T[0]}, 36864')
    e.e(f's_and_b32 s{T[1]}, s2, 3')
    e.e(f's_lshl_b32 s{T[1]}, s{T[1]}, 7')
    e.e(f's_add_u32 s{T[0]}, s{T[0]}, s{T[1]}')
    e.e('v_lshrrev_b32 v3, 4, v0')
    e.e('v_lshlrev_b32 v3, 10, v3')
    e.e('v_bfe_u32 v4, v0, 3, 1')
    e.e('v_lshl_add_u32 v3, v4, 9, v3')
    e.e('v_and_b32 v4, 7, v0')
    e.e('v_lshl_add_u32 v3, v4, 4, v3')
    e.e(f'v_add_u32 v3, s{T[0]}, v3')
    for i in range(9):
        e.e(f's_mov_b32 s{T[0]}, {XNF + 4096*i}')
        e.e(f'buffer_store_dwordx4 v[{8+4*i}:{11+4*i}], v3, {WS}, s{T[0]} offen{SCX}')

def emit_nonce(e):
    make_srd(e, S_R2, P_DBG, 256)
    DB = f's[{S_R2}:{S_R2+3}]'
    lab = e.newlabel('nn'); pl = e.newlabel('npoll'); ok = e.newlabel('nok')
    e.e('v_mov_b32 v6, 0')
    e.e('s_cmp_lg_u32 s2, 0')
    e.e(f's_cbranch_scc1 {lab}')
    e.e(f's_memrealtime s[{S_NONCE}:{S_NONCE+1}]')
    e.e('s_waitcnt lgkmcnt(0)'); e.lds_q = []
    e.e(f's_or_b32 s{S_NONCE}, s{S_NONCE}, 1')
    e.e(f'v_mov_b32 v4, s{S_NONCE}')
    e.e(f'v_mov_b32 v5, s{S_NONCE+1}')
    e.e('s_mov_b64 exec, 1')
    e.e(f'buffer_store_dwordx2 v[4:5], v6, {DB}, 0 offen sc1')
    e.e('s_mov_b64 exec, -1')
    e.label(lab)
    e.e(f's_mov_b32 s{S_SPIN}, {SPIN_MAX}')
    e.label(pl)
    e.raw(f'    s_sub_u32 s{S_SPIN}, s{S_SPIN}, 1')
    e.raw(f'    s_cbranch_scc1 {ok}')
    e.raw(f'    buffer_load_dwordx2 v[4:5], v6, {DB}, 0 offen sc1')
    e.raw('    s_waitcnt vmcnt(0)')
    e.raw('    v_cmp_eq_u32 vcc, 0, v4')
    e.raw('    s_nop 4')
    e.raw(f'    s_cbranch_vccz {ok}')
    e.raw('    s_sleep 2')
    e.raw(f'    s_branch {pl}')
    e.label(ok)
    e.vm_q = []
    e.e(f'v_mov_b32 v6, {L_MISC}')
    e.e('ds_write_b64 v6, v[4:5]')
    e.wait_lgkm0()

def read_nonce(e):
    e.e(f'v_mov_b32 v6, {L_MISC}')
    e.e('ds_read_b64 v[4:5], v6')
    e.e(f'v_readfirstlane_b32 s{S_NONCE}, v4')
    e.e(f'v_readfirstlane_b32 s{S_NONCE+1}, v5')

class P1:
    TMP, TMP2 = 46, 47
    T0, DM0, DOFF, DML, BUF, U, HST0, HST1, KG, NL2E, QS, COL, COL5, KG5, E = range(50, 65)
    WQ, WG, WU = S_R0, S_R1, S_R2
    V_DG, V_DU, V_DA, V_DB, V_BA, V_BB, V_BG0, V_BG1, V_RD0, V_RD1, V_SC, V_BI, V_VST, V_QXST, V_BAH, V_BBH = range(208, 224)
    V_RD2 = 3
    WF = 40; WFB = 52
    ACC = [64, 96, 176, 8]
    WFC = 8
    VT = 128
    XT1 = 224
    MAT1 = 36864
    BUF1 = 83968
    PQ = 144

def xfrag(t, s):
    if t == 0: return f'a[{4*s}:{4*s+3}]'
    if s < 28: return f'a[{144+4*s}:{144+4*s+3}]'
    return f'v[{P1.XT1+4*(s-28)}:{P1.XT1+4*(s-28)+3}]'

def p1_reads(vrd, s, base=P1.WF, ks=1024, off2=256):
    b = base + 4 * (s % 3)
    if ks != 1024 and s >= 18:
        vrd = P1.V_BAH if vrd == P1.V_RD0 else P1.V_BBH
        return [f'ds_read_b64_tr_b16 v[{b}:{b+1}], v{vrd} offset:{(s-18)*ks}',
                f'ds_read_b64_tr_b16 v[{b+2}:{b+3}], v{vrd} offset:{(s-18)*ks+off2}']
    return [f'ds_read_b64_tr_b16 v[{b}:{b+1}], v{vrd} offset:{s*ks}',
            f'ds_read_b64_tr_b16 v[{b+2}:{b+3}], v{vrd} offset:{s*ks+off2}']

def epi_gu(acc):
    c = P1; out = []
    for t in range(2):
        G = acc + 16 * t; U = G + 8
        Tt = c.VT + 24 * t; Pp = Tt + 8; O = Tt + 16
        for r in range(8): out.append(f'v_mul_f32 v{Tt+r}, s{c.NL2E}, v{G+r}')
        for r in range(8): out.append(f'v_exp_f32 v{Tt+r}, v{Tt+r}')
        for r in range(8): out.append(f'v_mul_f32 v{Pp+r}, v{G+r}, v{U+r}')
        for r in range(8): out.append(f'v_add_f32 v{Tt+r}, 1.0, v{Tt+r}')
        for r in range(8): out.append(f'v_rcp_f32 v{Tt+r}, v{Tt+r}')
        tm = c.TMP if t == 0 else c.TMP2
        out.append(f's_lshl_b32 s{tm}, s{c.KG}, 10')
        out.append(f's_add_u32 s{tm}, s{tm}, s{c.HST0 if t == 0 else c.HST1}')
        for r in range(8): out.append(f'v_mul_f32 v{Pp+r}, v{Pp+r}, v{Tt+r}')
        for r in range(4): out.append(f'v_cvt_pk_bf16_f32 v{O+r}, v{Pp+2*r}, v{Pp+2*r+1}')
        out.append(f'buffer_store_dwordx4 v[{O}:{O+3}], v{V_L16}, {WS}, s{tm} offen{SC}')
    return out

def epi_a(acc):
    c = P1; out = []
    for t in range(2):
        Q = acc + 16 * t; Kk = Q + 8
        Tt = c.VT + 24 * t; O = Tt + 8; O2 = Tt + 12
        for r in range(8): out.append(f'v_mul_f32 v{Tt+r}, s{c.QS}, v{Q+r}')
        for r in range(4): out.append(f'v_cvt_pk_bf16_f32 v{O2+r}, v{Kk+2*r}, v{Kk+2*r+1}')
        for r in range(4): out.append(f'v_cvt_pk_bf16_f32 v{O+r}, v{Tt+2*r}, v{Tt+2*r+1}')
        out.append(f's_lshl_b32 s{c.TMP}, s{S_J}, 6')
        out.append(f's_add_u32 s{c.TMP}, s{c.TMP}, s{c.T0}')
        if t: out.append(f's_add_u32 s{c.TMP}, s{c.TMP}, 1')
        out.append(f's_lshl_b32 s{c.TMP}, s{c.TMP}, 10')
        out.append(f's_add_u32 s{c.TMP2}, s{c.TMP}, {KF}')
        out.append(f's_add_u32 s{c.TMP}, s{c.TMP}, {QF}')
        out.append((f'buffer_store_dwordx4 v[{O2}:{O2+3}], v{V_L16}, {WS}, s{c.TMP2} offen{SC}', 'kv'))
        out.append((f'buffer_store_dwordx4 v[{O}:{O+3}], v{V_L16}, {WS}, s{c.TMP} offen{SC}', 'kv'))
    return out

def epi_b(acc, t):
    c = P1; out = []
    A = acc + 16 * t
    X = c.VT; Y = c.VT + 16; O = c.VT + 32
    for r in range(16): out.append(f'v_fma_f32 v{X+r}, v{A+r}, v{c.V_SC}, v{c.V_BI}')
    for r in range(8): out.append(f'v_cvt_pk_bf16_f32 v{O+r}, v{X+2*r}, v{X+2*r+1}')
    out.append(f's_mul_i32 s{c.TMP}, s{S_J}, {VF_HEAD}')
    out.append(f's_add_u32 s{c.TMP2}, s{c.T0}, {t}')
    out.append(f's_mul_i32 s{c.TMP2}, s{c.TMP2}, {2*VF_G}')
    out.append(f's_add_u32 s{c.TMP}, s{c.TMP}, s{c.TMP2}')
    out.append(f's_add_u32 s{c.TMP}, s{c.TMP}, {VF}')
    out.append((f'buffer_store_dwordx4 v[{O}:{O+3}], v{c.V_VST}, {WS}, s{c.TMP} offen{SC}', 'kv'))
    out.append((f'buffer_store_dwordx4 v[{O+4}:{O+7}], v{c.V_VST}, {WS}, s{c.TMP} offen offset:{VF_G}{SC}', 'kv'))
    for r in range(16): out.append(f'v_mov_b32_dpp v{Y+r}, v{X+r} row_shl:1 row_mask:0xf bank_mask:0xf bound_ctrl:0')
    for r in range(16): out.append(f'v_cvt_pk_bf16_f32 v{Y+r}, v{X+r}, v{Y+r}')
    out.append(f's_lshl_b32 s{c.TMP}, s{S_J}, 13')
    out.append(f's_add_u32 s{c.TMP2}, s{c.T0}, {t}')
    out.append(f's_lshl_b32 s{c.TMP2}, s{c.TMP2}, 7')
    out.append(f's_add_u32 s{c.TMP}, s{c.TMP}, s{c.TMP2}')
    for g in range(4):
        out.append((f'buffer_store_dwordx4 v[{Y+4*g}:{Y+4*g+3}], v{c.V_QXST}, {WS}, s{c.TMP} offen offset:{32*g}{SC}', 'kv'))
    return out

def dma_gu():
    c = P1; out = []
    for i in range(9):
        for m, (srd, vo) in enumerate(((c.WG, c.V_DG), (c.WU, c.V_DU))):
            g = []
            if i == 0 and m == 0:
                g.append(f's_mul_i32 s{c.DOFF}, s{S_W}, {16*9216}')
                g.append(f's_add_u32 s{c.DOFF}, s{c.DOFF}, s{c.COL}')
                g.append(f's_mov_b32 s{c.DML}, s{c.DM0}')
            elif m == 0:
                g.append(f's_add_u32 s{c.DOFF}, s{c.DOFF}, {4*16*9216}')
                g.append(f's_add_u32 s{c.DML}, s{c.DML}, 4096')
            g.append(f's_add_u32 m0, s{c.DML}, {m*c.MAT1}')
            g.append(f'buffer_load_dwordx4 v{vo}, s[{srd}:{srd+3}], s{c.DOFF} offen lds')
            out.append(g)
    return out

def emit_item(e, x):
    if isinstance(x, tuple) and x[0] == 'RAW':
        e.out.append(Ins(x[1])); e.vm_q.append((set(), 'warm'))
    elif isinstance(x, tuple): e.e(x[0], tag=x[1])
    else: e.e(x)

def emit_dma(e, x):
    if isinstance(x, tuple) and x[0] == 'X63':
        e.e('s_mov_b32 exec_hi, 0x7fffffff'); e.e(x[1]); e.e('s_mov_b32 exec_hi, -1')
    else: e.e(x)

class Filler:
    def __init__(self, e, fillers, ngaps, first_gap=3, dma=(), dma_start=0, dma_stride=6):
        self.e = e; self.fl = list(fillers); self.dma = list(dma); self.gap = 0
        self.first = first_gap; self.ds = dma_start; self.st = dma_stride
        self.n0 = len(self.fl)
        self.slots = max(1, ngaps - first_gap - 2 - len(self.dma))
        self.used = 0
        self.pend = []
    def pre(self):
        g = self.gap + 1
        if self.dma and g > self.ds and (g - self.ds - 1) % self.st == 0:
            grp = self.dma.pop(0)
            for x in grp[:-1]: self.e.e(x)
            self.pend.append(grp[-1])
    def post(self):
        self.gap += 1
        if getattr(self, 'hook', None) and self.gap == self.hook[0]: self.hook[1]()
        if self.pend:
            emit_dma(self.e, self.pend.pop(0)); return
        if self.gap > self.first:
            self.used += 1
            target = -(-self.n0 * self.used // self.slots)
            while self.fl and self.n0 - len(self.fl) < target: emit_item(self.e, self.fl.pop(0))
    def flush(self):
        while self.dma:
            grp = self.dma.pop(0)
            for x in grp[:-1]: self.e.e(x)
            emit_dma(self.e, grp[-1])
        while self.fl: emit_item(self.e, self.fl.pop(0))

def wait_tags(e, tags):
    idx = [i for i, (d, t) in enumerate(e.vm_q) if t in tags]
    if idx: e.wait(vm=len(e.vm_q) - 1 - max(idx))

def p1_tile(e, acc, vrd, nxt_vrd, switch, F, wait=('dma',), is_b=False, own_q=False, nxt_q=False):
    QG = (P1.WF, 16 * P1.PQ, 4 * P1.PQ); GG = (P1.WF, 1024, 256)
    own = QG if own_q else GG
    nx = QG if nxt_q else GG
    for s in range(36):
        if s == 35 and switch:
            F.flush()
            e.wait(lg=0)
            wait_tags(e, wait)
            e.e('s_barrier')
            for r in p1_reads(nxt_vrd, 0, *nx) + p1_reads(nxt_vrd, 1, *nx): e.e(r)
        rd = []
        if s + 2 < 36: rd = p1_reads(vrd, s + 2, *own)
        elif not switch and nxt_vrd is not None: rd = p1_reads(nxt_vrd, s + 2 - 36, *nx)
        w = P1.WF + 4 * (s % 3)
        for t in range(2):
            d = acc + 16 * t
            cc = '0' if s == 0 else f'v[{d}:{d+15}]'
            if is_b: e.e(f'v_mfma_f32_32x32x16_bf16 v[{d}:{d+15}], {xfrag(t, s)}, v[{w}:{w+3}], {cc}')
            else: e.e(f'v_mfma_f32_32x32x16_bf16 v[{d}:{d+15}], v[{w}:{w+3}], {xfrag(t, s)}, {cc}')
            F.pre()
            if rd: e.e(rd[t])
            F.post()
    F.flush()

def p1_setup(e, first=False):
    c = P1
    make_srd(e, c.WQ, P_WQKV, 576 * 3456)
    e.e(f's_and_b32 s{c.E}, s{S_J}, 1')
    e.e(f's_lshl_b32 s{c.T0}, s{S_MI}, 3')
    e.e(f's_lshl_b32 s{c.TMP}, s{S_W}, 1')
    e.e(f's_add_u32 s{c.T0}, s{c.T0}, s{c.TMP}')
    e.e(f's_mul_i32 s{c.TMP}, s{S_J}, 36')
    e.e(f's_mov_b32 s{c.TMP2}, {(2**32 + 8) // 9}')
    e.e(f'v_mul_hi_u32 v24, v0, s{c.TMP2}')
    e.e('v_mul_u32_u24 v25, 9, v24')
    e.e('v_sub_u32 v25, v0, v25')
    e.e('v_mul_u32_u24 v26, 86, v25')
    e.e('v_lshrrev_b32 v26, 8, v26')
    e.e('v_mul_u32_u24 v27, 3, v26')
    e.e('v_sub_u32 v27, v25, v27')
    e.e('v_mul_u32_u24 v24, 3456, v24')
    e.e('v_mul_u32_u24 v26, 1152, v26')
    e.e('v_lshl_add_u32 v24, v27, 4, v24')
    e.e(f'v_add3_u32 v{c.V_DA}, v24, v26, s{c.TMP}')
    make_srd(e, c.WG, P_WG, 576 * 9216)
    e.e(f's_mov_b32 s{c.NL2E}, {fh(-LOG2E)}')
    e.e(f's_mov_b32 s{c.QS}, {fh(QSCALE)}')
    e.e('v_lshrrev_b32 v24, 2, v0')
    e.e('v_and_b32 v25, 3, v0')
    e.e('v_mul_u32_u24 v26, 9216, v24')
    e.e(f'v_lshl_add_u32 v{c.V_DG}, v25, 4, v26')
    e.e('v_xor_b32 v27, 2, v25')
    e.e(f'v_lshl_add_u32 v{c.V_DU}, v27, 4, v26')
    e.e('v_lshrrev_b32 v24, 4, v0')
    e.e('v_bfe_u32 v25, v0, 2, 2')
    e.e('v_and_b32 v26, 3, v0')
    e.e('v_lshrrev_b32 v27, 1, v24')
    e.e('v_lshl_add_u32 v27, v27, 3, v25')
    e.e('v_and_b32 v28, 1, v24')
    e.e(f'v_mul_u32_u24 v29, {c.PQ}, v27')
    e.e('v_mul_u32_u24 v30, 48, v28')
    e.e('v_lshl_add_u32 v30, v26, 3, v30')
    e.e(f'v_add_u32 v{c.V_BA}, v29, v30')
    e.e('v_mov_b32 v30, 80')
    e.e('v_mov_b32 v31, 128')
    e.e('v_cmp_eq_u32 vcc, 0, v26')
    e.e('v_cndmask_b32 v30, v30, v31, vcc')
    e.e('v_mov_b32 v31, 32')
    e.e('v_cmp_eq_u32 vcc, 1, v26')
    e.e('v_cndmask_b32 v30, v30, v31, vcc')
    e.e('v_lshlrev_b32 v31, 3, v26')
    e.e('v_add_u32 v31, 96, v31')
    e.e('v_cmp_eq_u32 vcc, 1, v28')
    e.e('v_cndmask_b32 v30, v31, v30, vcc')
    e.e(f'v_add_u32 v{c.V_BB}, v29, v30')
    e.e(f'v_add_u32 v{c.V_BAH}, {18*16*c.PQ}, v{c.V_BA}')
    e.e(f'v_add_u32 v{c.V_BBH}, {18*16*c.PQ}, v{c.V_BB}')
    e.e('v_lshlrev_b32 v27, 6, v27')
    e.e('v_lshl_add_u32 v27, v26, 3, v27')
    e.e(f'v_mul_u32_u24 v29, {c.MAT1}, v28')
    e.e('v_add_u32 v29, v29, v27')
    e.e(f'v_lshl_add_u32 v{c.V_BG0}, v28, 5, v29')
    e.e(f'v_xor_b32 v{c.V_BG1}, 32, v{c.V_BG0}')
    e.e('v_and_b32 v24, 31, v0')
    e.e('v_lshrrev_b32 v25, 5, v0')
    e.e(f'v_mov_b32 v{c.V_SC}, 1.0')
    e.e(f'v_mov_b32 v26, s{c.QS}')
    e.e('v_and_b32 v27, 30, v24')
    e.e('v_cmp_eq_u32 vcc, 20, v27')
    e.e(f'v_cndmask_b32 v{c.V_SC}, v{c.V_SC}, v26, vcc')
    e.e('v_mov_b32 v26, 0')
    e.e('v_cmp_eq_u32 vcc, 18, v27')
    e.e(f'v_cndmask_b32 v{c.V_SC}, v{c.V_SC}, v26, vcc')
    e.e(f'v_mov_b32 v{c.V_BI}, 0')
    e.e('v_mov_b32 v26, 1.0')
    e.e('v_cmp_eq_u32 vcc, 18, v24')
    e.e(f'v_cndmask_b32 v{c.V_BI}, v{c.V_BI}, v26, vcc')
    e.e('v_mul_u32_u24 v26, 320, v25')
    e.e('v_lshl_add_u32 v26, v24, 4, v26')
    e.e(f'v_mov_b32 v{c.V_VST}, 0x7ff00000')
    e.e('v_cmp_ge_u32 vcc, 19, v24')
    e.e(f'v_cndmask_b32 v{c.V_VST}, v{c.V_VST}, v26, vcc')
    e.e('v_lshlrev_b32 v26, 4, v25')
    e.e(f'v_add_u32 v27, {QX}, v26')
    e.e(f'v_add_u32 v26, {KX}, v26')
    e.e(f'v_mov_b32 v{c.V_QXST}, 0x7ff00000')
    e.e('v_cmp_eq_u32 vcc, 20, v24')
    e.e(f'v_cndmask_b32 v{c.V_QXST}, v{c.V_QXST}, v27, vcc')
    e.e('v_cmp_eq_u32 vcc, 24, v24')
    e.e(f'v_cndmask_b32 v{c.V_QXST}, v{c.V_QXST}, v26, vcc')
    e.e(f's_mul_i32 s{c.COL}, s{S_J}, 288')
    e.e(f's_lshl_b32 s{c.TMP}, s{c.E}, 5')
    e.e(f's_add_u32 s{c.COL5}, s{c.COL}, 256')
    e.e(f's_sub_u32 s{c.TMP2}, s{c.COL}, 32')
    e.e(f's_cmp_eq_u32 s{c.E}, 0')
    e.e(f's_cselect_b32 s{c.COL5}, s{c.COL5}, s{c.TMP2}')
    e.e(f's_add_u32 s{c.COL}, s{c.COL}, s{c.TMP}')
    e.e(f's_mul_i32 s{c.KG}, s{S_J}, 9')
    e.e(f's_add_u32 s{c.KG5}, s{c.KG}, 8')
    e.e(f's_cmp_eq_u32 s{c.E}, 0')
    e.e(f's_cselect_b32 s{c.KG5}, s{c.KG5}, s{c.KG}')
    e.e(f's_add_u32 s{c.KG}, s{c.KG}, s{c.E}')
    e.e(f's_mul_i32 s{c.HST0}, s{c.T0}, {288*1024}')
    e.e(f's_add_u32 s{c.HST0}, s{c.HST0}, {HF}')
    e.e(f's_add_u32 s{c.HST1}, s{c.HST0}, {288*1024}')
    make_srd(e, c.WU, P_WU, 576 * 9216)

def p1_dma_first(e, buf, dcol, i0=0, i1=36):
    c = P1
    for i in range(i0, i1):
        for m, (srd, vo) in enumerate(((c.WG, c.V_DG), (c.WU, c.V_DU))):
            e.e(f's_mov_b32 m0, {buf + m*c.MAT1 + i*1024}')
            if m == 0: e.e(f's_add_u32 s{c.DOFF}, s{c.COL}, {i*16*9216 + dcol}')
            else: e.e('s_nop 0')
            e.e(f'buffer_load_dwordx4 v{vo}, s[{srd}:{srd+3}], s{c.DOFF} offen lds')

def dma_qkv_groups(idx):
    c = P1; out = []
    n = -(-len(idx) // 4)
    idx = list(idx) + [idx[-1]] * (4 * n - len(idx))
    for k in range(n):
        i0, i1, i2, i3 = idx[4*k:4*k+4]
        if (i1, i2, i3) == (i0 + 1, i0 + 2, i0 + 3):
            g = [f's_add_u32 s{c.DML}, s{S_W}, {i0}']
        else:
            g = [f's_mov_b32 s{c.DML}, {i0}', f's_cmp_eq_u32 s{S_W}, 1', f's_cselect_b32 s{c.DML}, {i1}, s{c.DML}',
                 f's_cmp_eq_u32 s{S_W}, 2', f's_cselect_b32 s{c.DML}, {i2}, s{c.DML}', f's_cmp_eq_u32 s{S_W}, 3', f's_cselect_b32 s{c.DML}, {i3}, s{c.DML}']
        g += [f's_mul_i32 s{c.DOFF}, s{c.DML}, {7*3456}', f's_mul_i32 s{c.DML}, s{c.DML}, {7*c.PQ}', f's_mov_b32 m0, s{c.DML}',
              ('X63', f'buffer_load_dwordx4 v{c.V_DA}, s[{c.WQ}:{c.WQ+3}], s{c.DOFF} offen lds')]
        out.append(g)
    return out

def dma_gu_half(m):
    c = P1; out = []
    srd, vo = ((c.WG, c.V_DG), (c.WU, c.V_DU))[m]
    for i in range(9):
        g = []
        if i == 0:
            g += [f's_mul_i32 s{c.DOFF}, s{S_W}, {16*9216}', f's_add_u32 s{c.DOFF}, s{c.DOFF}, s{c.COL}', f's_add_u32 s{c.DML}, s{c.DM0}, {m*c.MAT1}']
        else:
            g += [f's_add_u32 s{c.DOFF}, s{c.DOFF}, {4*16*9216}', f's_add_u32 s{c.DML}, s{c.DML}, 4096']
        g += [f's_mov_b32 m0, s{c.DML}', f'buffer_load_dwordx4 v{vo}, s[{srd}:{srd+3}], s{c.DOFF} offen lds']
        out.append(g)
    return out

class EpiQ:
    def __init__(self): self.q = []
    def push(self, acc, instrs): self.q += [(acc, x) for x in instrs]
    def busy(self, acc): return any(a == acc for a, _ in self.q)
    def take(self, n=None, until_free=()):
        out = []
        while self.q and (n is None or len(out) < n or any(self.busy(a) for a in until_free)):
            out.append(self.q.pop(0)[1])
        return out

def emit_p1(e, P):
    c = P1
    make_srd(e, c.WU, P_WU, 576 * 9216)
    e.e(f's_mul_i32 s{c.TMP}, s{c.T0}, 36864')
    if XNF: e.e(f's_add_u32 s{c.TMP}, s{c.TMP}, {XNF}')
    e.e(f's_add_u32 s{c.TMP2}, s{c.TMP}, 36864')
    xl = []
    for s in range(36):
        if s and s % 4 == 0:
            xl.append(f's_add_u32 s{c.TMP}, s{c.TMP}, 4096')
            xl.append(f's_add_u32 s{c.TMP2}, s{c.TMP2}, 4096')
        xl.append(f'buffer_load_dwordx4 {xfrag(0, s)}, v{V_L16}, {WS}, s{c.TMP} offen offset:{(s%4)*1024}{SCL}')
        xl.append(f'buffer_load_dwordx4 {xfrag(1, s)}, v{V_L16}, {WS}, s{c.TMP2} offen offset:{(s%4)*1024}{SCL}')
    nx = 0; i = 0
    while nx < 48:
        e.e(xl[i]); nx += xl[i].startswith('buffer'); i += 1
    xrest = xl[i:]
    A0, A1, A2, A3 = c.ACC
    e.e(f'v_mov_b32 v{c.V_RD0}, v{c.V_BG0}')
    e.e(f'v_mov_b32 v{c.V_RD1}, v{c.V_BG1}')
    e.e(f'v_add_u32 v{c.V_RD2}, {c.BUF1}, v{c.V_BG0}')
    rA = lambda s: p1_reads(c.V_RD0, s, c.WF)
    rB = lambda s: p1_reads(c.V_RD1, s, c.WFB)
    rC = lambda s: p1_reads(c.V_RD2, s, c.WFC)
    for s in range(2):
        for r in rA(s) + rB(s) + rC(s): e.e(r)
    xg = []; cur = []
    for x in xrest:
        cur.append(x)
        if x.startswith('buffer'): xg.append(cur); cur = []
    early = list(range(0, 18)) + list(range(37, 54)) + list(range(74, 83))
    late = [i for i in range(83) if i not in early]
    F = Filler(e, [], 108, dma=xg, dma_start=0, dma_stride=3)
    for s in range(36):
        if s == 20:
            F.flush()
            e.e('s_barrier')
            F = Filler(e, [], 96, dma=dma_qkv_groups(early), dma_start=0, dma_stride=7)
        if s == 35:
            F.flush()
            e.wait(lg=0)
            e.e(f'v_add_u32 v{c.V_RD1}, {c.BUF1}, v{c.V_BG1}')
            e.e('s_barrier')
            for r in p1_reads(c.V_RD1, 0) + p1_reads(c.V_RD1, 1): e.e(r)
        rd = (rA(s + 2) + rB(s + 2) + rC(s + 2)) if s + 2 < 36 else []
        k = 0
        for tl in range(3):
            w = (c.WF, c.WFB, c.WFC)[tl] + 4 * (s % 3)
            for t in range(2):
                dd = c.ACC[tl] + 16 * t
                cc = '0' if s == 0 else f'v[{dd}:{dd+15}]'
                e.e(f'v_mfma_f32_32x32x16_bf16 v[{dd}:{dd+15}], v[{w}:{w+3}], {xfrag(t, s)}, {cc}')
                F.pre()
                if rd: e.e(rd[k])
                k += 1
                F.post()
    P.stamp('trio done'); P.stamp('rtrio', real=True)
    inc = [f's_add_u32 s{c.KG}, s{c.KG}, 1']
    Q = EpiQ()
    Q.push(A0, epi_gu(A0) + inc); Q.push(A1, epi_gu(A1) + inc); Q.push(A2, epi_gu(A2) + inc)
    d = dma_gu()
    BUD = 140
    def tile(acc, vrd, nxt, switch, dma=(), stride=6, start=0, wait=('dma',), pre=(), hook=None, epi=None, tk={}, **kw):
        assert not Q.busy(acc), acc
        for x in pre: e.e(x)
        F = Filler(e, Q.take(BUD, until_free=kw.pop('free', ())), 72, dma=dma, dma_start=start, dma_stride=stride, **kw)
        if hook: F.hook = hook
        p1_tile(e, acc, vrd, nxt, switch, F, wait=wait, **tk)
        Q.push(acc, epi if epi is not None else epi_gu(acc) + inc)
    tile(A3, c.V_RD1, c.V_RD0, True, dma=dma_qkv_groups(late), stride=5, pre=[f'v_mov_b32 v{c.V_RD0}, v{c.V_BA}'], free=(A0,), tk=dict(nxt_q=True))
    u3 = [f'v_mov_b32 v{c.V_RD1}, v{c.V_BB}', f's_lshl_b32 s{c.DM0}, s{S_W}, 10', f's_add_u32 s{c.DM0}, s{c.DM0}, {c.BUF1}', f's_add_u32 s{c.COL}, s{c.COL}, 128']
    tile(A0, c.V_RD0, c.V_RD1, False, dma=d[:12], pre=u3, free=(A1,), epi=epi_a(A0), tk=dict(own_q=True, nxt_q=True))
    tile(A1, c.V_RD1, c.V_RD0, True, dma=d[12:], pre=[f'v_add_u32 v{c.V_RD0}, {c.BUF1}, v{c.V_BG0}'], free=(A2,),
         epi=epi_b(A1, 0) + epi_b(A1, 1), tk=dict(is_b=True, own_q=True))
    P.stamp('AB done'); P.stamp('rAB', real=True)
    u4 = [f'v_add_u32 v{c.V_RD1}, {c.BUF1}, v{c.V_BG1}', f's_lshl_b32 s{c.DM0}, s{S_W}, 10', f's_add_u32 s{c.COL}, s{c.COL}, 64']
    tile(A2, c.V_RD0, c.V_RD1, False, dma=d[:12], pre=u4, free=(A3,))
    tile(A3, c.V_RD1, c.V_RD0, True, dma=d[12:], wait=('dma', 'kv'), pre=[f'v_mov_b32 v{c.V_RD0}, v{c.V_BG0}'], free=(A0, A1))
    publish(e, F_KV)
    u5 = [f'v_mov_b32 v{c.V_RD1}, v{c.V_BG1}', f's_lshl_b32 s{c.DM0}, s{S_W}, 10', f's_add_u32 s{c.DM0}, s{c.DM0}, {c.BUF1}', f's_mov_b32 s{c.COL}, s{c.COL5}']
    tile(A0, c.V_RD0, c.V_RD1, False, dma=d[:12], pre=u5)
    pre = [f's_lshl_b32 s49, s{c.E}, 5', f'v_xor_b32 v{c.V_RD0}, s49, v{c.V_BG0}', f'v_add_u32 v{c.V_RD0}, {c.BUF1}, v{c.V_RD0}']
    ids = ['v_and_b32 v3, 1, v0', 'v_bfe_u32 v6, v0, 1, 2', 'v_lshl_add_u32 v3, v6, 3, v3', 's_and_b32 s48, s2, 0xe6', 'v_add_u32 v3, s48, v3']
    for x in poll_issue(e, F_KV, ids, 8, 4): emit_item(e, x)
    tile(A1, c.V_RD1, c.V_RD0, True, dma=d[12:], pre=pre, hook=(56, lambda: poll_check(e, 8, 4)), free=(A2, A3),
         epi=epi_gu(A1) + [f's_mov_b32 s{c.KG}, s{c.KG5}'])
    P.stamp('p1 loop done'); P.stamp('rU4', real=True)
    for x in p2_bases(): e.e(x)
    assert not Q.busy(A3)
    BUD = 10000
    tile(A2, c.V_RD0, None, False, dma=p2_prefetch_groups(), stride=3, first_gap=1, epi=epi_gu(A2))
    for x in Q.take(): emit_item(e, x)
    e.wait_all()
    e.e('s_barrier')
    publish(e, F_H)
    P.stamp('p1 done'); P.stamp('rp1 done', real=True)

class P2:
    A, B, C = 65, 66, 67
    T0, TRIP = 50, 54
    X0, X1, X2, X3 = 46, 47, 48, 49
    L_KM, L_KX, L_V = 0, 65536, 73728
    MARGIN = 60.0
    V_KA, V_KXA, V_VA = 8, 9, 10
    V_T0 = 12
    QM = [24, 28]; QE = [32, 36]
    KM = [48, 52]; KE = [56, 60]
    VFR = [[64, 68], [72, 76]]
    PP = [80, 88]
    OO = [96, 112]
    SS = [[128, 144], [160, 176]]

def mf(d, a, b, c):
    cs = '0' if c is None else f'v[{c}:{c+15}]'
    return f'v_mfma_f32_32x32x16_bf16 v[{d}:{d+15}], v[{a}:{a+3}], v[{b}:{b+3}], {cs}'
def qk(buf_s, kb, t):
    c = P2; d = c.SS[buf_s][t]
    return [mf(d, c.KM[kb], c.QM[t], None), mf(d, c.KE[kb], c.QE[t], d)]
def kreads(kb, i):
    c = P2
    return [f'ds_read_b128 v[{c.KM[kb]}:{c.KM[kb]+3}], v{c.V_KA} offset:{i*1024}',
            f'ds_read_b32 v{c.KE[kb]}, v{c.V_KXA} offset:{i*128}']
def vreads(vb, i):
    c = P2
    return [f'ds_read_b128 v[{c.VFR[vb][0]}:{c.VFR[vb][0]+3}], v{c.V_VA} offset:{i*1280}',
            f'ds_read_b128 v[{c.VFR[vb][1]}:{c.VFR[vb][1]+3}], v{c.V_VA} offset:{i*1280+640}']

ATT_ORDER = 1
DIAG = False
def attn_iter(e, b, off, first=False, extra=()):
    c = P2
    valu = []
    for t in range(2):
        for g in range(2):
            S = c.SS[b][t] + 8 * g
            valu += [f'v_exp_f32 v{S+r}, v{S+r}' for r in range(8)]
            valu += [f'v_cvt_pk_bf16_f32 v{c.PP[t]+4*g+r}, v{S+2*r}, v{S+2*r+1}' for r in range(4)]
    q0 = qk(b ^ 1, b ^ 1, 0); q1 = qk(b ^ 1, b ^ 1, 1)
    pv = lambda t, g, vb: mf(c.OO[t], c.VFR[vb][g], c.PP[t] + 4 * g, c.OO[t])
    ins = {2: [] if first else [pv(1, 1, b ^ 1)], 8: [q0[0]], 14: [q1[0]], 20: [pv(0, 0, b)], 26: [q0[1]], 32: [pv(0, 1, b)], 38: [pv(1, 0, b)], 44: [q1[1]]}
    if ATT_ORDER == 0: ins = {2: [] if first else [pv(1, 1, b ^ 1)], 8: [q0[0]], 14: [q0[1]], 20: [pv(0, 0, b)], 26: [q1[0]], 32: [pv(0, 1, b)], 38: [q1[1]], 44: [pv(1, 0, b)]}
    kr = kreads(b, off + 2); vr = vreads(b ^ 1, off + 1)
    lds = {2: [vr[0]], 14: [vr[1]], 26: [kr[0]], 32: [kr[1]]}
    extra = list(extra)
    slots = [8, 20, 38, 44] if len(extra) <= 4 else [2, 8, 14, 20, 26, 32, 38, 44]
    xtra = {}
    for k, g in enumerate(extra): xtra.setdefault(slots[k * len(slots) // len(extra)], []).append(g)
    for i, v in enumerate(valu):
        if i == 8: e.wait(lg=1)
        for x in ins.get(i, []): e.e(x)
        for x in lds.get(i, []): e.e(x)
        for g in xtra.get(i, []):
            for x in g:
                if callable(x): x()
                else: emit_item(e, x)
        e.e(v)

def kv_grp(base_s, ldsbase, idx_expr, x0=48, x1=49):
    return idx_expr(x1) + [f's_lshl_b32 s{x0}, s{x1}, 10', f's_add_u32 m0, s{x0}, {ldsbase}', f's_add_u32 s{x0}, s{x0}, s{base_s}',
                           f'buffer_load_dwordx4 v{V_L16}, {WS}, s{x0} offen{SCL} lds']
def p2_bases():
    c = P2
    return [f's_lshl_b32 s{c.A}, s{S_J}, 16', f's_add_u32 s{c.A}, s{c.A}, {KF}',
            f's_lshl_b32 s{c.B}, s{S_J}, 13', f's_add_u32 s{c.B}, s{c.B}, {KX}',
            f's_mul_i32 s{c.C}, s{S_J}, {VF_HEAD}', f's_add_u32 s{c.C}, s{c.C}, {VF}']
def p2_prefetch_groups():
    c = P2; W = S_W; g = []
    g.append(kv_grp(c.A, c.L_KM, lambda x: [f's_mov_b32 s{x}, s{W}']))
    g.append(kv_grp(c.C, c.L_V, lambda x: [f's_mov_b32 s{x}, s{W}']))
    g.append(kv_grp(c.B, c.L_KX, lambda x: [f's_mov_b32 s{x}, s{W}']))
    g.append(kv_grp(c.A, c.L_KM, lambda x: [f's_add_u32 s{x}, s{W}, 4']))
    g.append(kv_grp(c.C, c.L_V, lambda x: [f's_add_u32 s{x}, s{W}, 4']))
    g.append(kv_grp(c.C, c.L_V, lambda x: [f's_add_u32 s{x}, s{W}, 8', f's_min_u32 s{x}, s{x}, 9']))
    g.append([f's_lshl_b32 s49, s{S_J}, 6', f's_add_u32 s49, s49, s{c.T0}', 's_lshl_b32 s49, s49, 10', f's_add_u32 s49, s49, {QF}',
              f'buffer_load_dwordx4 v[{c.QM[0]}:{c.QM[0]+3}], v{V_L16}, {WS}, s49 offen{SCL}'])
    g.append([f'buffer_load_dwordx4 v[{c.QM[1]}:{c.QM[1]+3}], v{V_L16}, {WS}, s49 offen offset:1024{SCL}'])
    g.append(['v_lshlrev_b32 v12, 2, v0', 'v_mov_b32 v13, 0x7ff00000', 'v_cmp_gt_u32 vcc, 32, v0', 's_nop 0', 'v_cndmask_b32 v12, v13, v12, vcc',
              f's_lshl_b32 s49, s{S_J}, 13', f's_lshl_b32 s48, s{c.T0}, 7', 's_add_u32 s49, s49, s48', f's_add_u32 s49, s49, {QX}',
              f'buffer_load_dword v{c.QE[0]}, v12, {WS}, s49 offen{SCL}'])
    g.append([f'buffer_load_dword v{c.QE[1]}, v12, {WS}, s49 offen offset:128{SCL}'])
    for i in range(2, 16): g.append(kv_grp(c.A, c.L_KM, lambda x, i=i: [f's_add_u32 s{x}, s{W}, {4*i}']))
    g.append(kv_grp(c.B, c.L_KX, lambda x: [f's_add_u32 s{x}, s{W}, 4']))
    return g

def emit_p2(e, P):
    c = P2
    W = S_W
    grp = lambda base, lb, f: kv_grp(base, lb, f, 46, 47)
    b1 = [grp(c.C, c.L_V, lambda x, i=i: [f's_add_u32 s{x}, s{W}, {10+4*i}', f's_min_u32 s{x}, s{x}, 39']) for i in range(8)]
    b2 = [grp(c.C, c.L_V, lambda x, i=i: [f's_add_u32 s{x}, s{W}, {40+4*i}']) for i in range(10)]
    for t in range(2):
        for r in (1, 2, 3): e.e(f'v_mov_b32 v{c.QE[t]+r}, 0')
        e.e(f'v_mov_b32 v{c.KE[t]+1}, 0x3f80')
        e.e(f'v_mov_b32 v{c.KE[t]+2}, 0'); e.e(f'v_mov_b32 v{c.KE[t]+3}, 0')
    e.e(f'v_mov_b32 v{c.V_KA}, v{V_L16}')
    e.e('v_and_b32 v12, 31, v0')
    e.e(f'v_lshlrev_b32 v{c.V_KXA}, 2, v12')
    e.e(f'v_add_u32 v{c.V_KXA}, {c.L_KX}, v{c.V_KXA}')
    e.e('v_min_u32 v13, 19, v12')
    e.e('v_lshrrev_b32 v14, 5, v0')
    e.e('v_mul_u32_u24 v14, 320, v14')
    e.e(f'v_lshl_add_u32 v{c.V_VA}, v13, 4, v14')
    e.e(f'v_add_u32 v{c.V_VA}, {c.L_V}, v{c.V_VA}')
    for t in range(2):
        for r in range(16): e.e(f'v_mov_b32 v{c.OO[t]+r}, 0')
    for x in kreads(0, 0) + kreads(1, 1) + vreads(0, 0): e.e(x)
    for kt in range(2):
        for t in range(2):
            for x in qk(kt, kt, t): e.e(x)
    for t in range(2):
        m = c.V_T0 + t
        e.e(f'v_max3_f32 v{m}, v{c.SS[0][t]}, v{c.SS[0][t]+1}, v{c.SS[0][t]+2}')
        regs = [c.SS[0][t] + r for r in range(3, 16)] + [c.SS[1][t] + r for r in range(16)]
        while len(regs) >= 2:
            e.e(f'v_max3_f32 v{m}, v{m}, v{regs[0]}, v{regs[1]}'); regs = regs[2:]
        if regs: e.e(f'v_max_f32 v{m}, v{m}, v{regs[0]}')
    e.e(f's_mov_b32 s{c.X0}, {fh(c.MARGIN)}')
    for t in range(2):
        m = c.V_T0 + t; x = c.V_T0 + 2 + t
        e.e(f'v_mov_b32 v{x}, v{m}')
        e.e(f'v_permlane32_swap_b32 v{m}, v{x}')
        e.e(f'v_max_f32 v{m}, v{m}, v{x}')
        e.e(f'v_add_f32 v{m}, s{c.X0}, v{m}')
        e.e(f'v_cvt_pk_bf16_f32 v{m}, -v{m}, 0')
        e.e('v_cmp_gt_u32 vcc, 32, v0')
        e.e(f'v_cndmask_b32 v{c.QE[t]+1}, 0, v{m}, vcc')
    for t in range(2):
        for x in qk(0, 0, t): e.e(x)
    P.stamp('max done')
    nb = [0]
    def body(first=False, extra=()):
        extra = list(extra); h = (len(extra) + 1) // 2
        o = 2 * (nb[0] % 4)
        attn_iter(e, 0, o, first=first, extra=extra[:h])
        attn_iter(e, 1, o + 1, extra=extra[h:])
        nb[0] += 1
        if nb[0] % 4 == 0:
            e.e(f'v_add_u32 v{c.V_KA}, {8*1024}, v{c.V_KA}')
            e.e(f'v_add_u32 v{c.V_KXA}, {8*128}, v{c.V_KXA}')
            e.e(f'v_add_u32 v{c.V_VA}, {8*1280}, v{c.V_VA}')
    body(True, b1[:4]); body(False, b1[4:]); body()
    e.wait_vm0(); e.e('s_barrier')
    body()
    body(False, b2[:4]); body(False, b2[4:8]); body(False, b2[8:]); body()
    P.stamp('trip1 done')
    make_srd(e, S_R0, P_WD, 4608 * 1152)
    e.e(f's_bfe_u32 s{c.X0}, s2, 0x20001')
    e.e(f's_mul_i32 s55, s{c.X0}, {1152*1152}')
    e.e(f's_lshr_b32 s{c.X0}, s2, 3')
    e.e(f's_lshl_b32 s{c.X0}, s{c.X0}, 2')
    e.e(f's_add_u32 s{c.X0}, s{c.X0}, s{S_W}')
    e.e(f's_mul_i32 s{c.X0}, s{c.X0}, {1152*1152 // 128}')
    e.e(f's_add_u32 s55, s55, s{c.X0}')
    warm = [[f'buffer_load_dwordx4 v[224:227], v{V_L16}, s[{S_R0}:{S_R0+3}], s55 offen', 's_add_u32 s55, s55, 1024'] for _ in range(3)]
    e.wait_vm0()
    e.e('s_barrier')
    e.e(f's_mov_b32 s{c.TRIP}, 2')
    lab = f'{NAME}_p2loop'
    e.label(lab)
    st0 = e.state(); m0 = e.mark()
    body(False, [[('RAW', warm[0][0]), warm[0][1]]]); body(False, [[('RAW', warm[1][0]), warm[1][1]]]); body(False, [[('RAW', warm[2][0]), warm[2][1]]]); body()
    e.e(f's_add_u32 s{c.TRIP}, s{c.TRIP}, 1')
    e.e(f's_cmp_lt_u32 s{c.TRIP}, 6')
    e.e(f's_cbranch_scc1 {lab}')
    bad = e.check_loop(m0); assert not bad, bad
    st1 = e.state(); assert [a for a, b in st0[0]] == [a for a, b in st1[0]], (st0[0], st1[0])
    P.stamp('loop4 done')
    e.raw('    s_waitcnt vmcnt(0)'); e.vm_q = []
    sa, sb = p3_setup()
    ca = [sa[i:i+8] for i in range(0, len(sa), 8)]
    cb_ = [sb[i:i+7] for i in range(0, len(sb), 7)]
    pi = poll_issue(e, F_H, p3_ids8(47), 8, 4)
    bl = []
    for u in range(8): bl += p3_bload_groups(0, base=32 * u)
    t6 = [pi] + ca + cb_ + [[lambda: poll_check(e, 8, 4)]]
    while len(t6) < 40: t6.append(bl.pop(0))
    q4 = -(-len(t6) // 4)
    for i in range(4): body(False, t6[i*q4:(i+1)*q4])
    e.e('s_barrier')
    p3_srds(e)
    w0 = p3_dma_unit(P3.WD, P3.V_DO, P3.R[0])
    w1 = p3_dma_unit(P3.WD, P3.V_DO, P3.R[1])
    w1[0] = [f's_add_u32 s{P3.WOFF}, s{P3.WOFF}, {128*1152}'] + w1[0]
    t7 = []
    ws_ = w0 + w1
    while bl or ws_:
        if ws_: t7.append(ws_.pop(0))
        if bl: t7.append(bl.pop(0))
        if bl: t7.append(bl.pop(0))
    q4 = -(-len(t7) // 4)
    for i in range(4): body(False, t7[i*q4:(i+1)*q4])
    e.e(f's_add_u32 s{P3.WOFF}, s{P3.WOFF}, {128*1152}')
    P.stamp('p2 loop done')
    e.e(mf(c.OO[1], c.VFR[1][1], c.PP[1] + 4, c.OO[1]))
    e.e(f's_mov_b32 s{c.X0}, {fh(2.0**120)}')
    for t in range(2):
        O = c.OO[t]; l = c.V_T0 + t; x = c.V_T0 + 2 + t; mx = c.V_T0 + 4 + t
        e.e(f'v_mov_b32 v{l}, v{O+10}')
        e.e(f'v_mov_b32 v{x}, v{O+10}')
        e.e(f'v_max3_f32 v{mx}, |v{O}|, |v{O+1}|, |v{O+2}|')
        for r in range(3, 9, 2): e.e(f'v_max3_f32 v{mx}, v{mx}, |v{O+r}|, |v{O+r+1}|')
        e.e(f'v_max3_f32 v{mx}, v{mx}, |v{O+9}|, |v{O+10}|')
        e.e(f'v_permlane32_swap_b32 v{l}, v{x}')
    e.e(f'v_cmp_nge_f32 vcc, s{c.X0}, v{c.V_T0+4}')
    e.e(f's_mov_b64 s[{c.X2}:{c.X3}], vcc')
    e.e(f'v_cmp_nge_f32 vcc, s{c.X0}, v{c.V_T0+5}')
    e.e(f's_or_b64 vcc, vcc, s[{c.X2}:{c.X3}]')
    e.e(f's_cmp_lg_u64 vcc, 0')
    e.e(f's_cselect_b32 s{c.X0}, 1, 0')
    e.e(f'v_mov_b32 v{c.V_T0+7}, s{c.X0}')
    e.e(f's_lshl_b32 s{c.X1}, s{S_W}, 2')
    e.e(f's_add_u32 s{c.X1}, s{c.X1}, {L_MISC + 16}')
    e.e(f'v_mov_b32 v{c.V_T0+8}, s{c.X1}')
    e.e(f'ds_write_b32 v{c.V_T0+8}, v{c.V_T0+7}')
    e.label(f'{NAME}_p2fin')
    for t in range(2):
        O = c.OO[t]; l = c.V_T0 + t
        e.e(f'v_rcp_f32 v{l}, v{l}')
        for r in range(10): e.e(f'v_mul_f32 v{O+r}, v{O+r}, v{l}')
        pk = 128 + 8 * t
        for r in range(5): e.e(f'v_cvt_pk_bf16_f32 v{pk+r}, v{O+2*r}, v{O+2*r+1}')
        e.e(f's_add_u32 s{c.X1}, s{c.T0}, {t}')
        e.e(f's_mul_i32 s{c.X1}, s{c.X1}, 36864')
        e.e(f's_add_u32 s{c.X1}, s{c.X1}, {OF}')
        e.e(f's_lshl_b32 s{c.X2}, s{S_J}, 10')
        e.e(f's_add_u32 s{c.X2}, s{c.X2}, s{c.X1}')
        e.e(f'buffer_store_dwordx4 v[{pk}:{pk+3}], v{V_L16}, {WS}, s{c.X2} offen{SC}')
        e.e(f's_lshr_b32 s{c.X2}, s{S_J}, 3')
        e.e(f's_add_u32 s{c.X2}, s{c.X2}, 32')
        e.e(f's_lshl_b32 s{c.X2}, s{c.X2}, 10')
        e.e(f's_add_u32 s{c.X1}, s{c.X1}, s{c.X2}')
        e.e(f's_bfe_u32 s{c.X2}, s{S_J}, 0x10002')
        e.e(f's_lshl_b32 s{c.X2}, s{c.X2}, 9')
        e.e(f's_add_u32 s{c.X1}, s{c.X1}, s{c.X2}')
        e.e(f's_and_b32 s{c.X2}, s{S_J}, 3')
        e.e(f's_lshl_b32 s{c.X2}, s{c.X2}, 2')
        e.e(f's_add_u32 s{c.X1}, s{c.X1}, s{c.X2}')
        if t == 0:
            e.e(f'v_mov_b32 v{c.V_T0+6}, 0x7ff00000')
            e.e('v_cmp_gt_u32 vcc, 32, v0')
            e.e(f'v_cndmask_b32 v{c.V_T0+6}, v{c.V_T0+6}, v{V_L16}, vcc')
        e.e(f'buffer_store_dword v{pk+4}, v{c.V_T0+6}, {WS}, s{c.X1} offen{SC}')
    e.wait_all()
    e.e('s_barrier')
    e.e(f'v_mov_b32 v{c.V_T0+8}, {L_MISC + 16}')
    e.e(f'ds_read_b128 v[{c.V_T0+4}:{c.V_T0+7}], v{c.V_T0+8}')
    e.e(f'v_or3_b32 v{c.V_T0+4}, v{c.V_T0+4}, v{c.V_T0+5}, v{c.V_T0+6}')
    e.e(f'v_or_b32 v{c.V_T0+4}, v{c.V_T0+4}, v{c.V_T0+7}')
    e.e(f'v_readfirstlane_b32 s{c.X0}, v{c.V_T0+4}')
    e.e(f's_cmp_lg_u32 s{c.X0}, 0')
    e.e(f's_cbranch_scc1 {NAME}_p2slow')
    e.label(f'{NAME}_p2ok')
    publish(e, F_O)
    P.stamp('rp2 done', real=True)

def emit_p2_slow(e):
    c = P2
    e.label(f'{NAME}_p2slow')
    e.lds_q = []; e.vm_q = []
    e.e('s_waitcnt vmcnt(0) lgkmcnt(0)')
    e.e('s_barrier')
    e.e(f'v_mov_b32 v{c.V_T0+7}, 0')
    e.e(f's_lshl_b32 s{c.X1}, s{S_W}, 2')
    e.e(f's_add_u32 s{c.X1}, s{c.X1}, {L_MISC + 16}')
    e.e(f'v_mov_b32 v{c.V_T0+8}, s{c.X1}')
    e.e(f'ds_write_b32 v{c.V_T0+8}, v{c.V_T0+7}')
    for i in range(9):
        for x in kv_grp(c.A, c.L_KM, lambda x, i=i: [f's_add_u32 s{x}, s{S_W}, {4*i}'], 46, 47): e.e(x)
        for x in kv_grp(c.C, c.L_V, lambda x, i=i: [f's_add_u32 s{x}, s{S_W}, {4*i}'], 46, 47): e.e(x)
    e.e('s_waitcnt vmcnt(0) lgkmcnt(0)')
    e.e('s_barrier')
    MX = [160, 161]; AL = 162; TM = 163; TX = 164
    for t in range(2):
        e.e(f'v_mov_b32 v{c.QE[t]+1}, 0')
        e.e(f'v_mov_b32 v{MX[t]}, 0xff7fffff')
        for r in range(16): e.e(f'v_mov_b32 v{c.OO[t]+r}, 0')
    e.e(f'v_subrev_u32 v{c.V_KA}, {32*2048}, v{c.V_KA}')
    e.e(f'v_subrev_u32 v{c.V_KXA}, {32*256}, v{c.V_KXA}')
    e.e(f'v_subrev_u32 v{c.V_VA}, {32*2560}, v{c.V_VA}')
    e.e(f's_mov_b32 s{c.TRIP}, 0')
    lab = f'{NAME}_p2slowloop'
    e.label(lab)
    ms = e.mark()
    for x in kreads(0, 0) + vreads(0, 0): e.e(x)
    for t in range(2):
        for x in qk(0, 0, t): e.e(x)
    for t in range(2):
        S = c.SS[0][t]
        e.e(f'v_max3_f32 v{TM}, v{S}, v{S+1}, v{S+2}')
        for r in range(3, 15, 2): e.e(f'v_max3_f32 v{TM}, v{TM}, v{S+r}, v{S+r+1}')
        e.e(f'v_max_f32 v{TM}, v{TM}, v{S+15}')
        e.e(f'v_mov_b32 v{TX}, v{TM}')
        e.e(f'v_permlane32_swap_b32 v{TM}, v{TX}')
        e.e(f'v_max3_f32 v{TM}, v{TM}, v{TX}, v{MX[t]}')
        e.e(f'v_sub_f32 v{AL}, v{MX[t]}, v{TM}')
        e.e(f'v_exp_f32 v{AL}, v{AL}')
        e.e(f'v_mov_b32 v{MX[t]}, v{TM}')
        for r in range(16): e.e(f'v_sub_f32 v{S+r}, v{S+r}, v{TM}')
        for r in range(16): e.e(f'v_exp_f32 v{S+r}, v{S+r}')
        for r in range(16): e.e(f'v_mul_f32 v{c.OO[t]+r}, v{c.OO[t]+r}, v{AL}')
        for r in range(8): e.e(f'v_cvt_pk_bf16_f32 v{c.PP[t]+r}, v{S+2*r}, v{S+2*r+1}')
        for g in range(2): e.e(mf(c.OO[t], c.VFR[0][g], c.PP[t] + 4 * g, c.OO[t]))
    e.e(f'v_add_u32 v{c.V_KA}, 1024, v{c.V_KA}')
    e.e(f'v_add_u32 v{c.V_KXA}, 128, v{c.V_KXA}')
    e.e(f'v_add_u32 v{c.V_VA}, 1280, v{c.V_VA}')
    e.e('s_nop 15')
    e.e(f's_add_u32 s{c.TRIP}, s{c.TRIP}, 1')
    e.e(f's_cmp_lt_u32 s{c.TRIP}, 64')
    e.e(f's_cbranch_scc1 {lab}')
    bad = e.check_loop(ms); assert not bad, bad
    e.e('s_nop 15')
    e.e('s_waitcnt lgkmcnt(0)')
    e.e('s_barrier')
    e.e(f's_sub_u32 s{P3.WOFF}, s{P3.WOFF}, {2*128*1152}')
    for g in p3_dma_unit(P3.WD, P3.V_DO, P3.R[0]):
        for x in g: e.e(x)
    e.e(f's_add_u32 s{P3.WOFF}, s{P3.WOFF}, {128*1152}')
    for g in p3_dma_unit(P3.WD, P3.V_DO, P3.R[1]):
        for x in g: e.e(x)
    e.e(f's_add_u32 s{P3.WOFF}, s{P3.WOFF}, {128*1152}')
    for t in range(2):
        O = c.OO[t]; l = c.V_T0 + t; x = c.V_T0 + 2 + t
        e.e(f'v_mov_b32 v{l}, v{O+10}')
        e.e(f'v_mov_b32 v{x}, v{O+10}')
        e.e(f'v_permlane32_swap_b32 v{l}, v{x}')
    e.e(f's_branch {NAME}_p2fin')

class P3:
    WD, WO = S_R0, S_R1
    C2, MT, CQ, TT, HB, WOFF, U = 55, 56, 57, 58, 59, 60, 61
    R = [62, 63, 64, 68]
    A, B = 46, 47
    V_DO, V_D2, V_DX = 192, 201, 210
    V_RB, V_RD, V_BO = 219, 220, 222
    AF = 32
    NSLOT, DIST = 6, 4
    BF = [0, 32]
    ACC = 96
    UNIT = 36864
    SLOTS = [0, 73728, 36864, 110592]

def p3_areads(vrd, ks, cb, slot):
    b = P3.AF + 4 * slot
    o = ks * 9216 + cb * 32
    return [f'ds_read_b64_tr_b16 v[{b}:{b+1}], v{vrd} offset:{o}',
            f'ds_read_b64_tr_b16 v[{b+2}:{b+3}], v{vrd} offset:{o + 8*288}']

def poll_ids(e, phase, idexpr, n):
    for x in idexpr: e.e(x)
    poll(e, phase, 3, n)

def p3_ids8(a):
    return ['v_and_b32 v3, 7, v0', 'v_lshlrev_b32 v3, 5, v3', f's_lshr_b32 s{a}, s2, 6', f's_lshl_b32 s{a}, s{a}, 3',
            f'v_add_u32 v3, s{a}, v3', f's_and_b32 s{a}, s2, 7', f'v_add_u32 v3, s{a}, v3']

L_STASH = 157696
P3_STASH = None
def p3_stash_regs():
    c = P3
    return [c.V_DO + j for j in range(9)] + [c.V_D2] + [c.V_DX + j for j in range(9)] + [c.V_RB, c.V_BO]

def p3_lane_setup(e):
    c = P3
    t0, t1, t2, t3 = 8, 9, 10, 11
    R = 16
    e.e('s_bfe_u32 s48, s2, 0x20003')
    e.e('s_mul_i32 s48, s48, 288')
    e.e(f's_mov_b32 s49, {(2**32 + 287) // 288}')
    for j in range(9):
        for x in [f'v_add_u32 v{t0}, {j*1024}, v{V_L16}',
                  f'v_mul_hi_u32 v{t1}, v{t0}, s49',
                  f'v_mul_u32_u24 v{t2}, 288, v{t1}',
                  f'v_sub_u32 v{t0}, v{t0}, v{t2}',
                  f'v_add_u32 v{t0}, s48, v{t0}',
                  f'v_mul_u32_u24 v{t2}, 1152, v{t1}',
                  f'v_add_u32 v{R+j}, v{t0}, v{t2}']: e.e(x)
        if j == 4:
            for x in [f'v_lshrrev_b32 v{t2}, 4, v{t1}', f'v_mul_u32_u24 v{t2}, {2*1152}, v{t2}', f'v_add_u32 v{R+9}, v{R+j}, v{t2}']: e.e(x)
        for x in [f'v_bfe_u32 v{t2}, v{t1}, 2, 1', f'v_lshlrev_b32 v{t2}, 2, v{t2}', f'v_bfe_u32 v{t3}, v{t1}, 1, 1', f'v_add_u32 v{t2}, v{t2}, v{t3}',
                  f'v_bfe_u32 v{t3}, v{t1}, 3, 1', f'v_lshl_add_u32 v{t2}, v{t3}, 1, v{t2}', f'v_mul_u32_u24 v{t2}, 18, v{t2}', f'v_and_b32 v{t3}, 1, v{t1}',
                  f'v_add3_u32 v{t2}, v{t2}, v{t3}, 16', f'v_mul_u32_u24 v{t2}, 1152, v{t2}', f'v_add_u32 v{R+10+j}, v{t0}, v{t2}']: e.e(x)
    for x in [f'v_lshrrev_b32 v{t0}, 5, v0', f'v_lshlrev_b32 v{t0}, 4, v{t0}', f'v_bfe_u32 v{t1}, v0, 4, 1', f'v_lshl_add_u32 v{t0}, v{t1}, 2, v{t0}',
              f'v_bfe_u32 v{t1}, v0, 2, 2', f'v_add_u32 v{t0}, v{t0}, v{t1}', f'v_mul_u32_u24 v{t0}, 288, v{t0}', f'v_and_b32 v{t1}, 3, v0',
              f'v_lshl_add_u32 v{R+19}, v{t1}, 3, v{t0}',
              f'v_lshrrev_b32 v{t0}, 5, v0', f'v_lshlrev_b32 v{t0}, 10, v{t0}', f'v_bfe_u32 v{t1}, v0, 4, 1', f'v_lshl_add_u32 v{t0}, v{t1}, 9, v{t0}',
              f'v_and_b32 v{t1}, 15, v0', f'v_lshl_add_u32 v{R+20}, v{t1}, 4, v{t0}',
              f'v_lshlrev_b32 v{t0}, 2, v0', f'v_add_u32 v{t0}, {L_STASH}, v{t0}']: e.e(x)
    for k in range(21): e.e(f'ds_write_b32 v{t0}, v{R+k} offset:{256*k}')
    e.wait_lgkm0()

def p3_setup():
    c = P3; o = []
    o += [f's_bfe_u32 s{c.C2}, s2, 0x20001', f's_and_b32 s{c.MT}, s2, 1', f's_lshl_b32 s{c.MT}, s{c.MT}, 3', f's_lshr_b32 s{c.A}, s2, 5',
          f's_add_u32 s{c.MT}, s{c.MT}, s{c.A}', f's_bfe_u32 s{c.CQ}, s2, 0x20003', f's_lshl_b32 s{c.TT}, s{c.MT}, 2', f's_add_u32 s{c.TT}, s{c.TT}, s{S_W}']
    o += [f's_mul_i32 s{c.HB}, s{c.TT}, {288*1024}', f's_mul_i32 s{c.A}, s{c.C2}, {72*1024}', f's_add_u32 s{c.HB}, s{c.HB}, s{c.A}', f's_add_u32 s{c.HB}, s{c.HB}, {HF}']
    o += ['v_lshlrev_b32 v12, 2, v0', f'v_add_u32 v12, {L_STASH}, v12']
    regs = p3_stash_regs()
    o += [f'ds_read_b32 v{regs[20]}, v12 offset:{256*20}']
    first = o; o = []
    o += [f'ds_read_b32 v{regs[k]}, v12 offset:{256*k}' for k in range(20)]
    o += [f's_mul_i32 s{c.WOFF}, s{c.C2}, {72*16}', f's_lshl_b32 s{c.A}, s{S_W}, 5', f's_add_u32 s{c.WOFF}, s{c.WOFF}, s{c.A}', f's_mul_i32 s{c.WOFF}, s{c.WOFF}, 1152']
    o += [f's_mov_b32 s{c.R[i]}, {c.SLOTS[i]}' for i in range(4)]
    return first, o

def p3_srds(e):
    make_srd(e, P3.WD, P_WD, 4608 * 1152)
    make_srd(e, P3.WO, P_WO, 576 * 1152)

def p3_dma_unit(srd, vo, rslot):
    c = P3; out = []
    for j in range(9):
        g = []
        if j == 0: g += [f's_mul_i32 s48, s{S_W}, 9216', f's_add_u32 s48, s48, s{rslot}']
        reg, so = vo + j, c.WOFF
        if vo == c.V_D2:
            reg = c.V_D2 if j == 4 else c.V_DO + j
            so = c.U if j > 4 else c.WOFF
            if j == 0: g.append(f's_add_u32 s{c.U}, s{c.WOFF}, {2*1152}')
        g += [f's_add_u32 m0, s48, {j*1024}', f'buffer_load_dwordx4 v{reg}, s[{srd}:{srd+3}], s{so} offen lds']
        out.append(g)
    return out

def p3_bloads(base):
    c = P3
    return [f'buffer_load_dwordx4 a[{base+8*k+4*th}:{base+8*k+4*th+3}], v{c.V_BO}, {WS}, s{c.HB} offen offset:{(k%2)*2048+th*256}{SCL}'
            for k in range(4) for th in range(2)]

def p3_bload_groups(buf, base=None):
    c = P3; L = p3_bloads(base); out = []
    for i, x in enumerate(L):
        g = []
        if i == 4: g.append(f's_add_u32 s{c.HB}, s{c.HB}, 4096')
        g.append(x)
        if i == 7: g.append(f's_add_u32 s{c.HB}, s{c.HB}, 4096')
        out.append(g)
    return out

def emit_p3(e, P, prefetched):
    c = P3
    e.e(f'v_add_u32 v{c.V_RD}, s{c.R[0]}, v{c.V_RB}')
    P.stamp('p3 u0 ready')
    seq = [(ks, cb) for ks in range(4) for cb in range(9)]
    for i in range(c.DIST):
        for x in p3_areads(c.V_RD, seq[i][0], seq[i][1], i % c.NSLOT): e.e(x)
    def unit(bb, first, dma, bl, nks=4, nxt=True, hook=None):
        n = nks * 9
        fl = [list(g) for g in dma]; bl = [list(g) for g in bl]
        e.e(f'v_add_u32 v{c.V_RD+1}, s{c.R[1]}, v{c.V_RB}')
        for i in range(n):
            ks, cb = seq[i]
            if i == n - c.DIST and nxt:
                wait_tags(e, ('dma_prev',))
                e.e('s_barrier')
            if hook and i == hook[0]: hook[1]()
            j = i + c.DIST
            rd = []
            if j < n: rd = p3_areads(c.V_RD, seq[j][0], seq[j][1], j % c.NSLOT)
            elif nxt: rd = p3_areads(c.V_RD + 1, seq[j - n][0], seq[j - n][1], j % c.NSLOT)
            a = c.AF + 4 * (i % c.NSLOT)
            g = None
            for th in range(2):
                d = c.ACC + 4 * (th * 9 + cb); b = bb + 8 * ks + 4 * th
                cc = '0' if (first and ks == 0) else f'v[{d}:{d+3}]'
                e.e(f'v_mfma_f32_16x16x32_bf16 v[{d}:{d+3}], v[{a}:{a+3}], a[{b}:{b+3}], {cc}')
                if th == 0:
                    if fl and i % 3 == 1:
                        g = fl.pop(0)
                        for x in g[:-1]: e.e(x)
                    if rd: e.e(rd[0])
                else:
                    if rd: e.e(rd[1])
                    if g: e.e(g[-1], tag='dma'); g = None
                    if bl and i % 4 == 3:
                        for x in bl.pop(0): e.e(x)
        assert not fl and not bl
        e.e(f'v_mov_b32 v{c.V_RD}, v{c.V_RD+1}')
        e.e(f's_mov_b32 s{c.A}, s{c.R[0]}')
        for i in range(3): e.e(f's_mov_b32 s{c.R[i]}, s{c.R[i+1]}')
        e.e(f's_mov_b32 s{c.R[3]}, s{c.A}')
    def retag():
        e.vm_q = [(d, 'dma_prev' if t == 'dma' else t) for d, t in e.vm_q]
    adv = lambda: e.e(f's_add_u32 s{c.WOFF}, s{c.WOFF}, {128*1152}')
    for u in range(7):
        if u == 6:
            for x in poll_issue(e, F_O, p3_ids8(c.A), 8, 8): emit_item(e, x)
        retag()
        unit(32 * u, u == 0, p3_dma_unit(c.WD, c.V_DO, c.R[2]), p3_bload_groups(0, base=0) if u == 1 else [])
        adv()
    e.e(f's_lshl_b32 s{c.WOFF}, s{c.C2}, 3')
    e.e(f's_lshl_b32 s{c.A}, s{S_W}, 1')
    e.e(f's_add_u32 s{c.WOFF}, s{c.WOFF}, s{c.A}')
    e.e(f's_mul_i32 s{c.WOFF}, s{c.WOFF}, {18*1152}')
    retag()
    unit(32 * 7, False, p3_dma_unit(c.WO, c.V_D2, c.R[2]), [])
    e.e(f's_mul_i32 s{c.WOFF}, s{c.C2}, {144*1152}')
    e.e(f's_mul_i32 s{c.HB}, s{c.TT}, 36864')
    e.e(f's_lshl_b32 s{c.A}, s{c.C2}, 13')
    e.e(f's_add_u32 s{c.HB}, s{c.HB}, s{c.A}')
    e.e(f's_add_u32 s{c.HB}, s{c.HB}, {OF}')
    poll_check(e, 8, 8)
    retag()
    unit(0, False, p3_dma_unit(c.WO, c.V_DX, c.R[2]), p3_bload_groups(0, base=32))
    e.e(f's_mul_i32 s{c.HB}, s{c.TT}, 36864')
    e.e(f's_add_u32 s{c.A}, s{c.C2}, 32')
    e.e(f's_lshl_b32 s{c.A}, s{c.A}, 10')
    e.e(f's_add_u32 s{c.HB}, s{c.HB}, s{c.A}')
    e.e(f's_add_u32 s{c.HB}, s{c.HB}, {OF}')
    e.e('v_mov_b32 v12, 0x7ff00000')
    e.e('v_cmp_gt_u32 vcc, 32, v0')
    e.e(f'v_cndmask_b32 v12, v12, v{c.V_BO}, vcc')
    ext = [[f'buffer_load_dwordx4 a[{64+4*th}:{64+4*th+3}], v12, {WS}, s{c.HB} offen offset:{th*256}{SCL}'] for th in range(2)]
    retag()
    unit(32, False, [], ext)
    unit(64, False, [], [], nks=1, nxt=False)
    P.stamp('p3 k done'); P.stamp('rp3 k done', real=True)
    e.e(f's_mul_i32 s{c.A}, s{c.C2}, {64*36*1024}')
    e.e(f's_mul_i32 s{c.B}, s{c.TT}, {36*1024}')
    e.e(f's_add_u32 s{c.A}, s{c.A}, s{c.B}')
    e.e(f's_mul_i32 s{c.B}, s{c.CQ}, {9*1024}')
    e.e(f's_add_u32 s{c.A}, s{c.A}, s{c.B}')
    e.e(f's_add_u32 s{c.A}, s{c.A}, {PART}')
    for cb in range(9):
        pk = 32 + 4 * (cb % 6)
        for th in range(2):
            d = c.ACC + 4 * (th * 9 + cb)
            for r in range(2): e.e(f'v_cvt_pk_bf16_f32 v{pk+2*th+r}, v{d+2*r}, v{d+2*r+1}')
        if cb and cb % 4 == 0: e.e(f's_add_u32 s{c.A}, s{c.A}, 4096')
        e.e(f'buffer_store_dwordx4 v[{pk}:{pk+3}], v{V_L16}, {WS}, s{c.A} offen offset:{(cb%4)*1024}{SC}')
    e.wait_all()
    e.e('s_barrier')
    publish(e, F_PART)
    P.stamp('p3 done')

def emit_p4_pre(e):
    c = P3
    X, OUT = S_R0, S_R1
    make_srd(e, X, P_X, 2048 * 1152)
    make_srd(e, OUT, P_OUT, 2048 * 1152)
    TF, RO, PB = 50, 51, 52
    e.e(f's_lshl_b32 s{TF}, s{c.MT}, 2')
    e.e(f's_add_u32 s{TF}, s{TF}, s{c.C2}')
    e.e(f's_mul_i32 s{RO}, s{TF}, {32*1152}')
    e.e(f's_mul_i32 s{c.A}, s{c.CQ}, 288')
    e.e(f's_add_u32 s{RO}, s{RO}, s{c.A}')
    e.e(f's_mul_i32 s{PB}, s{TF}, {36*1024}')
    e.e(f's_mul_i32 s{c.A}, s{c.CQ}, {9*1024}')
    e.e(f's_add_u32 s{PB}, s{PB}, s{c.A}')
    e.e(f's_add_u32 s{PB}, s{PB}, {PART}')
    e.e('v_and_b32 v14, 15, v0')
    e.e('v_mul_u32_u24 v14, 1152, v14')
    e.e('v_lshrrev_b32 v15, 4, v0')
    e.e('v_lshl_add_u32 v16, v15, 3, v14')
    e.e('v_and_b32 v17, 1, v15')
    e.e(f'v_mul_u32_u24 v17, {16*1152}, v17')
    e.e('v_add_u32 v17, v17, v14')
    e.e('v_lshrrev_b32 v15, 1, v15')
    e.e('v_lshl_add_u32 v17, v15, 4, v17')
    for k in range(3):
        e.e(f's_add_u32 s{53+k}, s{S_W}, {4*k}')
        e.e(f's_cmp_lt_u32 s{53+k}, 9')
        e.e(f's_cselect_b32 s{56+k+10}, 0, 0x70000000')
        e.e(f's_lshl_b32 s{c.A}, s{53+k}, 5')
        e.e(f's_add_u32 s{c.A}, s{c.A}, s{RO}')
        e.e(f's_add_u32 s{c.A}, s{c.A}, s{66+k}')
        e.e(f'v_add_u32 v{8+k}, s{c.A}, v16')
        e.e(f'v_add_u32 v{11+k}, s{c.A}, v17')
        e.e(f's_lshl_b32 s{53+k}, s{53+k}, 10')
        e.e(f's_add_u32 s{53+k}, s{53+k}, s{PB}')
        e.e(f's_add_u32 s{53+k}, s{53+k}, s{66+k}')
    for k in range(3):
        e.e(f'buffer_load_dwordx2 v[{20+4*k}:{21+4*k}], v{8+k}, s[{X}:{X+3}], 0 offen')
        e.e(f's_mov_b32 s{c.A}, {16*1152}')
        e.e(f'buffer_load_dwordx2 v[{22+4*k}:{23+4*k}], v{8+k}, s[{X}:{X+3}], s{c.A} offen')

def emit_p4(e, P):
    c = P3
    OUT = S_R1
    ids = ['v_and_b32 v3, 3, v0', 'v_lshlrev_b32 v3, 1, v3', f's_and_b32 s{c.A}, s2, 0xf9', f'v_add_u32 v3, s{c.A}, v3']
    poll_ids(e, F_PART, ids, 4)
    P.stamp('p4 polled')
    PR = 64
    for k in range(3):
        for cc in range(4):
            r = PR + (k * 4 + cc) * 4
            e.e(f'buffer_load_dwordx4 v[{r}:{r+3}], v{V_L16}, {WS}, s{53+k} offen{SCL}')
            if cc < 3: e.e(f's_add_u32 s{53+k}, s{53+k}, {64*36*1024}')
    for k in range(3):
        A = 128 + 16 * k; Tm = A + 8
        for i in range(4):
            e.e(f'v_lshlrev_b32 v{A+2*i}, 16, v{20+4*k+i}')
            e.e(f'v_and_b32 v{A+2*i+1}, 0xffff0000, v{20+4*k+i}')
        for cc in range(4):
            r = PR + (k * 4 + cc) * 4
            for i in range(4):
                e.e(f'v_lshlrev_b32 v{Tm+2*i}, 16, v{r+i}')
                e.e(f'v_and_b32 v{Tm+2*i+1}, 0xffff0000, v{r+i}')
            for i in range(8): e.e(f'v_add_f32 v{A+i}, v{A+i}, v{Tm+i}')
        D = 40 + 4 * k
        for i in range(4): e.e(f'v_cvt_pk_bf16_f32 v{D+i}, v{A+2*i}, v{A+2*i+1}')
        e.e(f'v_permlane16_swap_b32 v{D}, v{D+2}')
        e.e(f'v_permlane16_swap_b32 v{D+1}, v{D+3}')
        e.e(f'buffer_store_dwordx4 v[{D}:{D+3}], v{11+k}, s[{OUT}:{OUT+3}], 0 offen')
    P.stamp('p4 stores issued')

def gen_mega(prof=False):
    e = Emitter()
    header(e, NAME)
    P = Prof2(e, prof)
    P.stamp('start', hold=True); P.stamp('rstart', real=True, hold=True)
    emit_start(e, P)
    l1 = e.newlabel('w23'); l2 = e.newlabel('join'); l4 = e.newlabel('w3')
    e.e(f's_cmp_ge_u32 s{S_W}, 2')
    e.e(f's_cbranch_scc1 {l1}')
    emit_ln(e, P)
    p1_setup(e)
    e.e(f's_branch {l2}')
    e.label(l1)
    e.vm_q = []; e.lds_q = []
    e.e(f's_cmp_eq_u32 s{S_W}, 2')
    e.e(f's_cbranch_scc0 {l4}')
    p1_setup(e)
    p1_dma_first(e, 0, 0, 0, 14)
    e.e(f's_branch {l2}')
    e.label(l4)
    e.vm_q = []; e.lds_q = []
    emit_nonce(e)
    p1_setup(e)
    e.label(l2)
    e.vm_q = []; e.lds_q = []
    pass
    e.e('s_barrier')
    pass
    read_nonce(e)
    l3 = e.newlabel('lnp')
    e.e(f's_cmp_lg_u32 s{S_W}, 0')
    e.e(f's_cbranch_scc1 {l3}')
    emit_ln_store(e)
    e.wait_vm0()
    pass
    publish(e, F_LN)
    e.e('v_and_b32 v3, 31, v0')
    e.e(f's_lshl_b32 s{T[0]}, s{S_MI}, 5')
    e.e(f'v_add_u32 v3, s{T[0]}, v3')
    poll(e, F_LN, 3, 32)
    l6 = e.newlabel('lnq'); l7 = e.newlabel('lnw3')
    e.e(f's_branch {l6}')
    e.label(l3)
    e.vm_q = []; e.lds_q = []
    l9 = e.newlabel('lnw1')
    e.e(f's_cmp_eq_u32 s{S_W}, 1')
    e.e(f's_cbranch_scc1 {l9}')
    l8 = e.newlabel('lnw2')
    e.e(f's_cmp_eq_u32 s{S_W}, 2')
    e.e(f's_cbranch_scc1 {l8}')
    p1_dma_first(e, P1.BUF1, 64, 0, 36)
    e.e(f's_branch {l6}')
    e.label(l8)
    p1_dma_first(e, 0, 0, 14, 36)
    e.e(f's_branch {l6}')
    e.label(l9)
    e.vm_q = []; e.lds_q = []
    p3_lane_setup(e)
    e.label(l7)
    e.label(l6)

    pass
    e.raw('    s_waitcnt vmcnt(0)'); e.vm_q = []
    pass
    e.e('s_barrier')
    P.stamp('ln synced'); P.stamp('rln synced', real=True)
    emit_p1(e, P)
    emit_p2(e, P)
    emit_p3(e, P, False)
    emit_p4_pre(e)
    emit_p4(e, P)
    if DIAG:
        e.e('s_waitcnt vmcnt(0)')
        e.e('s_memrealtime s[70:71]')
        e.e('s_waitcnt lgkmcnt(0)'); e.lds_q = []
        make_srd(e, S_R2, P_DBG, 256)
        e.e('v_mov_b32 v4, s70'); e.e('v_mov_b32 v6, 8')
        e.e('s_mov_b64 exec, 1')
        e.e(f'buffer_atomic_umax v4, v6, s[{S_R2}:{S_R2+3}], 0 offen sc1')
        e.e('s_waitcnt vmcnt(0)')
    if prof:
        e.e('s_waitcnt vmcnt(0)')
        P.stamp('done'); P.stamp('rend', real=True)
        P.dump(P_WS, S_W)
    e.e('s_endpgm')
    emit_p2_slow(e)
    emit_slow_polls(e)
    e.label(f'{NAME}_end')
    e.e('s_endpgm')
    print(f'mega: {len(e.out)} lines, nops {e.nops}, waits {e.waits}')
    return e.text(), descriptor(NAME, 256, 256, ns=102), dict(name=NAME, grid=256, block=256, lds=LDS_TOTAL, prof=P.names)

if __name__ == '__main__':
    import sys, json
    from build import HEAD
    from asmlib import build
    prof = 'prof' in sys.argv
    if 'plainld' in sys.argv: SCL = ''
    if 'diag' in sys.argv: DIAG = True
    for a in sys.argv:
        if a.startswith('ao='): ATT_ORDER = int(a[3:])
        if a.startswith('scx='): SCX = ' ' + a[4:].replace('_', ' ')
    t, d, i = gen_mega(prof)
    s = HEAD + f"; @launch grid=({i['grid']},1,1) block=({i['block']},1,1) lds={i['lds']}\n"
    s += '.amdgcn_target "amdgcn-amd-amdhsa--gfx950"\n.text\n' + t + '.section .rodata,"a"\n' + d
    open('mega.s', 'w').write(s)
    build(s, NAME, 'mega.co')
    json.dump({NAME: i['prof']}, open('mega.json', 'w'))
    print('built', len(s))
```

```python
from kcommon import *

NAME = 'parallel_sum__softmax_full_mha__swiglu_ffn__prompt_kernel'
P_X, P_WQKV, P_WO, P_BX, P_WG, P_WU, P_WD, P_OUT, P_DBG, P_WS = 4, 6, 8, 10, 12, 14, 16, 18, 20, 22
S_WS, S_R0, S_R1, S_R2 = 24, 28, 32, 36
S_MI, S_J, S_W, S_C = 40, 41, 42, 43
S_NONCE = 44
T = list(range(46, 70))
WS = f's[{S_WS}:{S_WS+3}]'
F_LN, F_KV, F_H, F_O, F_PART = 0, 1, 2, 3, 4
LDS_TOTAL = 163840
L_MISC = 163840 - 256
V_L16 = 2
S_SPIN = 69
SPIN_MAX = 400000
SCL = ' sc1'
SCX = ' sc1'
SC = ' sc1'

def publish(e, phase):
    lab = e.newlabel('pub')
    e.e(f's_cmp_lg_u32 s{S_W}, 0')
    e.e(f's_cbranch_scc1 {lab}')
    e.e(f's_lshl_b32 s49, s2, 7')
    e.e(f's_add_u32 s49, s49, {FLAGS + 8*phase}')
    e.e(f'v_mov_b32 v4, s{S_NONCE}')
    e.e(f'v_mov_b32 v5, s{S_NONCE+1}')
    e.e('v_mov_b32 v6, 0')
    e.e('s_mov_b64 exec, 1')
    e.e(f'buffer_store_dwordx2 v[4:5], v6, {WS}, s49 offen sc1')
    e.e('s_mov_b64 exec, -1')
    e.label(lab)

def poll(e, phase, vid, nlanes, vt=4):
    lab = e.newlabel('poll'); ok = e.newlabel('pollok')
    e.e(f'v_lshlrev_b32 v{vt+2}, 7, v{vid}')
    e.e(f'v_add_u32 v{vt+2}, {FLAGS + 8*phase}, v{vt+2}')
    e.e(f's_mov_b64 exec, {hex((1 << nlanes) - 1)}' if nlanes > 32 or nlanes == 32 else f's_mov_b64 exec, {(1 << nlanes) - 1}')
    e.e(f's_mov_b32 s{S_SPIN}, {SPIN_MAX}')
    e.label(lab)
    e.raw(f'    s_sub_u32 s{S_SPIN}, s{S_SPIN}, 1')
    e.raw(f'    s_cbranch_scc1 {ok}')
    e.raw(f'    buffer_load_dwordx2 v[{vt}:{vt+1}], v{vt+2}, {WS}, 0 offen sc1')
    e.raw('    s_waitcnt vmcnt(0)')
    e.raw(f'    v_cmp_ne_u32 vcc, s{S_NONCE}, v{vt}')
    e.raw(f'    v_cmp_ne_u32 s[{T[1]+ (T[1] & 1)}:{T[1]+(T[1]&1)+1}], s{S_NONCE+1}, v{vt+1}')
    e.raw('    s_nop 4')
    e.raw(f'    s_or_b64 vcc, vcc, s[{T[1]+(T[1]&1)}:{T[1]+(T[1]&1)+1}]')
    e.raw('    s_nop 4')
    e.raw(f'    s_cbranch_vccz {ok}')
    e.raw('    s_sleep 1')
    e.raw(f'    s_branch {lab}')
    e.label(ok)
    e.e('s_mov_b64 exec, -1')
    e.vm_q = []

SLOW_POLLS = []
def poll_issue(e, phase, idexpr, n, vt):
    out = list(idexpr)
    out += [f'v_lshlrev_b32 v{vt+2}, 7, v3', f'v_add_u32 v{vt+2}, {FLAGS + 8*phase}, v{vt+2}',
            f's_mov_b64 exec, {(1 << n) - 1}', (f'buffer_load_dwordx2 v[{vt}:{vt+1}], v{vt+2}, {WS}, 0 offen sc1', 'poll'), 's_mov_b64 exec, -1']
    return out
def poll_check(e, n, vt):
    slow = e.newlabel('pslow'); back = e.newlabel('pback')
    pr = 48
    wait_tags(e, ('poll',))
    e.e(f's_mov_b64 exec, {(1 << n) - 1}')
    e.e(f'v_cmp_ne_u32 vcc, s{S_NONCE}, v{vt}')
    e.e(f'v_cmp_ne_u32 s[{pr}:{pr+1}], s{S_NONCE+1}, v{vt+1}')
    e.e(f's_or_b64 vcc, vcc, s[{pr}:{pr+1}]')
    e.e(f's_cbranch_vccnz {slow}')
    e.label(back)
    e.e('s_mov_b64 exec, -1')
    SLOW_POLLS.append((slow, back, vt))
def emit_slow_polls(e):
    for slow, back, vt in SLOW_POLLS:
        lp = e.newlabel('psl')
        e.label(slow)
        e.raw(f'    s_mov_b32 s{S_SPIN}, {SPIN_MAX}')
        e.label(lp)
        e.raw(f'    s_sub_u32 s{S_SPIN}, s{S_SPIN}, 1')
        e.raw(f'    s_cbranch_scc1 {back}')
        e.raw('    s_sleep 1')
        e.raw(f'    buffer_load_dwordx2 v[{vt}:{vt+1}], v{vt+2}, {WS}, 0 offen sc1')
        e.raw('    s_waitcnt vmcnt(0)')
        e.raw(f'    v_cmp_ne_u32 vcc, s{S_NONCE}, v{vt}')
        e.raw(f'    v_cmp_ne_u32 s[48:49], s{S_NONCE+1}, v{vt+1}')
        e.raw('    s_nop 4')
        e.raw('    s_or_b64 vcc, vcc, s[48:49]')
        e.raw('    s_nop 4')
        e.raw(f'    s_cbranch_vccnz {lp}')
        e.raw(f'    s_branch {back}')

def emit_start(e, P):
    e.e('s_cmp_ge_u32 s2, 256')
    e.e(f's_cbranch_scc1 {NAME}_end')
    e.e('s_load_dwordx16 s[4:19], s[0:1], 0')
    e.e('s_load_dwordx4 s[20:23], s[0:1], 64')
    e.e('v_lshrrev_b32 v1, 6, v0')
    e.e('v_and_b32 v0, 63, v0')
    e.e(f'v_readfirstlane_b32 s{S_W}, v1')
    e.e(f's_and_b32 s{S_C}, s2, 7')
    e.e(f's_and_b32 s{T[0]}, s2, 1')
    e.e(f's_lshl_b32 s{T[0]}, s{T[0]}, 2')
    e.e(f's_bfe_u32 s{T[1]}, s2, 0x20003')
    e.e(f's_add_u32 s{S_MI}, s{T[0]}, s{T[1]}')
    e.e(f's_bfe_u32 s{T[0]}, s2, 0x20001')
    e.e(f's_lshl_b32 s{T[0]}, s{T[0]}, 3')
    e.e(f's_lshr_b32 s{T[1]}, s2, 5')
    e.e(f's_add_u32 s{S_J}, s{T[0]}, s{T[1]}')
    e.e(f'v_lshlrev_b32 v{V_L16}, 4, v0')
    e.wait_lgkm0()
    make_srd(e, S_WS, P_WS, WS_USED)

L_XN = 73728
def emit_ln(e, P):
    make_srd(e, S_R2, P_X, 2048 * 1152)
    e.e('v_lshrrev_b32 v3, 4, v0')
    e.e('v_and_b32 v6, 15, v0')
    e.e(f's_lshl_b32 s{T[0]}, s2, 3')
    e.e(f's_lshl_b32 s{T[1]}, s{S_W}, 2')
    e.e(f's_add_u32 s{T[0]}, s{T[0]}, s{T[1]}')
    e.e(f'v_add_u32 v4, s{T[0]}, v3')
    e.e('v_mul_u32_u24 v4, 1152, v4')
    e.e('v_lshl_add_u32 v4, v6, 3, v4')
    for i in range(9):
        e.e(f'buffer_load_dwordx2 v[{8+2*i}:{9+2*i}], v4, s[{S_R2}:{S_R2+3}], 0 offen offset:{128*i}')
    e.e(f'v_add_u32 v3, s{T[1]}, v3')
    e.e('v_lshrrev_b32 v5, 1, v6')
    e.e('v_lshl_add_u32 v5, v5, 3, v3')
    e.e('v_lshlrev_b32 v5, 4, v5')
    e.e('v_and_b32 v6, 1, v6')
    e.e('v_lshl_add_u32 v5, v6, 3, v5')
    e.e(f'v_add_u32 v5, {L_XN}, v5')
    e.e(f's_mov_b32 s{T[0]}, 0x3f803f80')
    e.e('v_mov_b32 v30, 0'); e.e('v_mov_b32 v31, 0'); e.e('v_mov_b32 v32, 0'); e.e('v_mov_b32 v33, 0')
    for i in range(18):
        e.e(f'v_dot2_f32_bf16 v{30+(i&1)}, v{8+i}, s{T[0]}, v{30+(i&1)}')
        e.e(f'v_dot2_f32_bf16 v{32+(i&1)}, v{8+i}, v{8+i}, v{32+(i&1)}')
    pass
    e.e('v_add_f32 v30, v30, v31'); e.e('v_add_f32 v32, v32, v33')
    for m in ('quad_perm:[1,0,3,2]', 'quad_perm:[2,3,0,1]', 'row_half_mirror', 'row_mirror'):
        e.e(f'v_add_f32_dpp v30, v30, v30 {m} row_mask:0xf bank_mask:0xf')
        e.e(f'v_add_f32_dpp v32, v32, v32 {m} row_mask:0xf bank_mask:0xf')
    e.e(f'v_mul_f32 v30, {fh(1.0/576)}, v30')
    e.e(f'v_mul_f32 v32, {fh(1.0/576)}, v32')
    e.e('v_fma_f32 v32, -v30, v30, v32')
    e.e('v_max_f32 v32, 0, v32')
    e.e(f'v_add_f32 v32, {fh(1e-5)}, v32')
    e.e('v_rsq_f32 v32, v32')
    e.e('v_mul_f32 v30, v30, v32')
    for i in range(18):
        e.e(f'v_lshlrev_b32 v34, 16, v{8+i}')
        e.e(f'v_and_b32 v35, 0xffff0000, v{8+i}')
        e.e('v_fma_f32 v34, v34, v32, -v30')
        e.e('v_fma_f32 v35, v35, v32, -v30')
        e.e(f'v_cvt_pk_bf16_f32 v{8+i}, v34, v35')
    for i in range(9):
        e.e(f'ds_write_b64 v5, v[{8+2*i}:{9+2*i}] offset:{1024*i}')
    e.wait_lgkm0()

def emit_ln_store(e):
    e.e(f'v_add_u32 v5, {L_XN}, v{V_L16}')
    for i in range(9): e.e(f'ds_read_b128 v[{8+4*i}:{11+4*i}], v5 offset:{1024*i}')
    e.e(f's_lshr_b32 s{T[0]}, s2, 2')
    e.e(f's_mul_i32 s{T[0]}, s{T[0]}, 36864')
    e.e(f's_and_b32 s{T[1]}, s2, 3')
    e.e(f's_lshl_b32 s{T[1]}, s{T[1]}, 7')
    e.e(f's_add_u32 s{T[0]}, s{T[0]}, s{T[1]}')
    e.e('v_lshrrev_b32 v3, 4, v0')
    e.e('v_lshlrev_b32 v3, 10, v3')
    e.e('v_bfe_u32 v4, v0, 3, 1')
    e.e('v_lshl_add_u32 v3, v4, 9, v3')
    e.e('v_and_b32 v4, 7, v0')
    e.e('v_lshl_add_u32 v3, v4, 4, v3')
    e.e(f'v_add_u32 v3, s{T[0]}, v3')
    for i in range(9):
        e.e(f's_mov_b32 s{T[0]}, {XNF + 4096*i}')
        e.e(f'buffer_store_dwordx4 v[{8+4*i}:{11+4*i}], v3, {WS}, s{T[0]} offen{SCX}')

def emit_nonce(e):
    make_srd(e, S_R2, P_DBG, 256)
    DB = f's[{S_R2}:{S_R2+3}]'
    lab = e.newlabel('nn'); pl = e.newlabel('npoll'); ok = e.newlabel('nok')
    e.e('v_mov_b32 v6, 0')
    e.e('s_cmp_lg_u32 s2, 0')
    e.e(f's_cbranch_scc1 {lab}')
    e.e(f's_memrealtime s[{S_NONCE}:{S_NONCE+1}]')
    e.e('s_waitcnt lgkmcnt(0)'); e.lds_q = []
    e.e(f's_or_b32 s{S_NONCE}, s{S_NONCE}, 1')
    e.e(f'v_mov_b32 v4, s{S_NONCE}')
    e.e(f'v_mov_b32 v5, s{S_NONCE+1}')
    e.e('s_mov_b64 exec, 1')
    e.e(f'buffer_store_dwordx2 v[4:5], v6, {DB}, 0 offen sc1')
    e.e('s_mov_b64 exec, -1')
    e.label(lab)
    e.e(f's_mov_b32 s{S_SPIN}, {SPIN_MAX}')
    e.label(pl)
    e.raw(f'    s_sub_u32 s{S_SPIN}, s{S_SPIN}, 1')
    e.raw(f'    s_cbranch_scc1 {ok}')
    e.raw(f'    buffer_load_dwordx2 v[4:5], v6, {DB}, 0 offen sc1')
    e.raw('    s_waitcnt vmcnt(0)')
    e.raw('    v_cmp_eq_u32 vcc, 0, v4')
    e.raw('    s_nop 4')
    e.raw(f'    s_cbranch_vccz {ok}')
    e.raw('    s_sleep 2')
    e.raw(f'    s_branch {pl}')
    e.label(ok)
    e.vm_q = []
    e.e(f'v_mov_b32 v6, {L_MISC}')
    e.e('ds_write_b64 v6, v[4:5]')
    e.wait_lgkm0()

def read_nonce(e):
    e.e(f'v_mov_b32 v6, {L_MISC}')
    e.e('ds_read_b64 v[4:5], v6')
    e.e(f'v_readfirstlane_b32 s{S_NONCE}, v4')
    e.e(f'v_readfirstlane_b32 s{S_NONCE+1}, v5')

class P1:
    TMP, TMP2 = 46, 47
    T0, DM0, DOFF, DML, BUF, U, HST0, HST1, KG, NL2E, QS, COL, COL5, KG5, E = range(50, 65)
    WQ, WG, WU = S_R0, S_R1, S_R2
    V_DG, V_DU, V_DA, V_DB, V_BA, V_BB, V_BG0, V_BG1, V_RD0, V_RD1, V_SC, V_BI, V_VST, V_QXST, V_BAH, V_BBH = range(208, 224)
    V_RD2 = 3
    WF = 40; WFB = 52
    ACC = [64, 96, 176, 8]
    WFC = 8
    VT = 128
    XT1 = 224
    MAT1 = 36864
    BUF1 = 83968
    PQ = 144

def xfrag(t, s):
    if t == 0: return f'a[{4*s}:{4*s+3}]'
    if s < 28: return f'a[{144+4*s}:{144+4*s+3}]'
    return f'v[{P1.XT1+4*(s-28)}:{P1.XT1+4*(s-28)+3}]'

def p1_reads(vrd, s, base=P1.WF, ks=1024, off2=256):
    b = base + 4 * (s % 3)
    if ks != 1024 and s >= 18:
        vrd = P1.V_BAH if vrd == P1.V_RD0 else P1.V_BBH
        return [f'ds_read_b64_tr_b16 v[{b}:{b+1}], v{vrd} offset:{(s-18)*ks}',
                f'ds_read_b64_tr_b16 v[{b+2}:{b+3}], v{vrd} offset:{(s-18)*ks+off2}']
    return [f'ds_read_b64_tr_b16 v[{b}:{b+1}], v{vrd} offset:{s*ks}',
            f'ds_read_b64_tr_b16 v[{b+2}:{b+3}], v{vrd} offset:{s*ks+off2}']

def epi_gu(acc):
    c = P1; out = []
    for t in range(2):
        G = acc + 16 * t; U = G + 8
        Tt = c.VT + 24 * t; Pp = Tt + 8; O = Tt + 16
        for r in range(8): out.append(f'v_mul_f32 v{Tt+r}, s{c.NL2E}, v{G+r}')
        for r in range(8): out.append(f'v_exp_f32 v{Tt+r}, v{Tt+r}')
        for r in range(8): out.append(f'v_mul_f32 v{Pp+r}, v{G+r}, v{U+r}')
        for r in range(8): out.append(f'v_add_f32 v{Tt+r}, 1.0, v{Tt+r}')
        for r in range(8): out.append(f'v_rcp_f32 v{Tt+r}, v{Tt+r}')
        tm = c.TMP if t == 0 else c.TMP2
        out.append(f's_lshl_b32 s{tm}, s{c.KG}, 10')
        out.append(f's_add_u32 s{tm}, s{tm}, s{c.HST0 if t == 0 else c.HST1}')
        for r in range(8): out.append(f'v_mul_f32 v{Pp+r}, v{Pp+r}, v{Tt+r}')
        for r in range(4): out.append(f'v_cvt_pk_bf16_f32 v{O+r}, v{Pp+2*r}, v{Pp+2*r+1}')
        out.append(f'buffer_store_dwordx4 v[{O}:{O+3}], v{V_L16}, {WS}, s{tm} offen{SC}')
    return out

def epi_a(acc):
    c = P1; out = []
    for t in range(2):
        Q = acc + 16 * t; Kk = Q + 8
        Tt = c.VT + 24 * t; O = Tt + 8; O2 = Tt + 12
        for r in range(8): out.append(f'v_mul_f32 v{Tt+r}, s{c.QS}, v{Q+r}')
        for r in range(4): out.append(f'v_cvt_pk_bf16_f32 v{O2+r}, v{Kk+2*r}, v{Kk+2*r+1}')
        for r in range(4): out.append(f'v_cvt_pk_bf16_f32 v{O+r}, v{Tt+2*r}, v{Tt+2*r+1}')
        out.append(f's_lshl_b32 s{c.TMP}, s{S_J}, 6')
        out.append(f's_add_u32 s{c.TMP}, s{c.TMP}, s{c.T0}')
        if t: out.append(f's_add_u32 s{c.TMP}, s{c.TMP}, 1')
        out.append(f's_lshl_b32 s{c.TMP}, s{c.TMP}, 10')
        out.append(f's_add_u32 s{c.TMP2}, s{c.TMP}, {KF}')
        out.append(f's_add_u32 s{c.TMP}, s{c.TMP}, {QF}')
        out.append((f'buffer_store_dwordx4 v[{O2}:{O2+3}], v{V_L16}, {WS}, s{c.TMP2} offen{SC}', 'kv'))
        out.append((f'buffer_store_dwordx4 v[{O}:{O+3}], v{V_L16}, {WS}, s{c.TMP} offen{SC}', 'kv'))
    return out

def epi_b(acc, t):
    c = P1; out = []
    A = acc + 16 * t
    X = c.VT; Y = c.VT + 16; O = c.VT + 32
    for r in range(16): out.append(f'v_fma_f32 v{X+r}, v{A+r}, v{c.V_SC}, v{c.V_BI}')
    for r in range(8): out.append(f'v_cvt_pk_bf16_f32 v{O+r}, v{X+2*r}, v{X+2*r+1}')
    out.append(f's_mul_i32 s{c.TMP}, s{S_J}, {VF_HEAD}')
    out.append(f's_add_u32 s{c.TMP2}, s{c.T0}, {t}')
    out.append(f's_mul_i32 s{c.TMP2}, s{c.TMP2}, {2*VF_G}')
    out.append(f's_add_u32 s{c.TMP}, s{c.TMP}, s{c.TMP2}')
    out.append(f's_add_u32 s{c.TMP}, s{c.TMP}, {VF}')
    out.append((f'buffer_store_dwordx4 v[{O}:{O+3}], v{c.V_VST}, {WS}, s{c.TMP} offen{SC}', 'kv'))
    out.append((f'buffer_store_dwordx4 v[{O+4}:{O+7}], v{c.V_VST}, {WS}, s{c.TMP} offen offset:{VF_G}{SC}', 'kv'))
    for r in range(16): out.append(f'v_mov_b32_dpp v{Y+r}, v{X+r} row_shl:1 row_mask:0xf bank_mask:0xf bound_ctrl:0')
    for r in range(16): out.append(f'v_cvt_pk_bf16_f32 v{Y+r}, v{X+r}, v{Y+r}')
    out.append(f's_lshl_b32 s{c.TMP}, s{S_J}, 13')
    out.append(f's_add_u32 s{c.TMP2}, s{c.T0}, {t}')
    out.append(f's_lshl_b32 s{c.TMP2}, s{c.TMP2}, 7')
    out.append(f's_add_u32 s{c.TMP}, s{c.TMP}, s{c.TMP2}')
    for g in range(4):
        out.append((f'buffer_store_dwordx4 v[{Y+4*g}:{Y+4*g+3}], v{c.V_QXST}, {WS}, s{c.TMP} offen offset:{32*g}{SC}', 'kv'))
    return out

def dma_gu():
    c = P1; out = []
    for i in range(9):
        for m, (srd, vo) in enumerate(((c.WG, c.V_DG), (c.WU, c.V_DU))):
            g = []
            if i == 0 and m == 0:
                g.append(f's_mul_i32 s{c.DOFF}, s{S_W}, {16*9216}')
                g.append(f's_add_u32 s{c.DOFF}, s{c.DOFF}, s{c.COL}')
                g.append(f's_mov_b32 s{c.DML}, s{c.DM0}')
            elif m == 0:
                g.append(f's_add_u32 s{c.DOFF}, s{c.DOFF}, {4*16*9216}')
                g.append(f's_add_u32 s{c.DML}, s{c.DML}, 4096')
            g.append(f's_add_u32 m0, s{c.DML}, {m*c.MAT1}')
            g.append(f'buffer_load_dwordx4 v{vo}, s[{srd}:{srd+3}], s{c.DOFF} offen lds')
            out.append(g)
    return out

def emit_item(e, x):
    if isinstance(x, tuple) and x[0] == 'RAW':
        e.out.append(Ins(x[1])); e.vm_q.append((set(), 'warm'))
    elif isinstance(x, tuple): e.e(x[0], tag=x[1])
    else: e.e(x)

def emit_dma(e, x):
    if isinstance(x, tuple) and x[0] == 'X63':
        e.e('s_mov_b32 exec_hi, 0x7fffffff'); e.e(x[1]); e.e('s_mov_b32 exec_hi, -1')
    else: e.e(x)

class Filler:
    def __init__(self, e, fillers, ngaps, first_gap=3, dma=(), dma_start=0, dma_stride=6):
        self.e = e; self.fl = list(fillers); self.dma = list(dma); self.gap = 0
        self.first = first_gap; self.ds = dma_start; self.st = dma_stride
        self.n0 = len(self.fl)
        self.slots = max(1, ngaps - first_gap - 2 - len(self.dma))
        self.used = 0
        self.pend = []
    def pre(self):
        g = self.gap + 1
        if self.dma and g > self.ds and (g - self.ds - 1) % self.st == 0:
            grp = self.dma.pop(0)
            for x in grp[:-1]: self.e.e(x)
            self.pend.append(grp[-1])
    def post(self):
        self.gap += 1
        if getattr(self, 'hook', None) and self.gap == self.hook[0]: self.hook[1]()
        if self.pend:
            emit_dma(self.e, self.pend.pop(0)); return
        if self.gap > self.first:
            self.used += 1
            target = -(-self.n0 * self.used // self.slots)
            while self.fl and self.n0 - len(self.fl) < target: emit_item(self.e, self.fl.pop(0))
    def flush(self):
        while self.dma:
            grp = self.dma.pop(0)
            for x in grp[:-1]: self.e.e(x)
            emit_dma(self.e, grp[-1])
        while self.fl: emit_item(self.e, self.fl.pop(0))

def wait_tags(e, tags):
    idx = [i for i, (d, t) in enumerate(e.vm_q) if t in tags]
    if idx: e.wait(vm=len(e.vm_q) - 1 - max(idx))

def p1_tile(e, acc, vrd, nxt_vrd, switch, F, wait=('dma',), is_b=False, own_q=False, nxt_q=False):
    QG = (P1.WF, 16 * P1.PQ, 4 * P1.PQ); GG = (P1.WF, 1024, 256)
    own = QG if own_q else GG
    nx = QG if nxt_q else GG
    for s in range(36):
        if s == 35 and switch:
            F.flush()
            e.wait(lg=0)
            wait_tags(e, wait)
            e.e('s_barrier')
            for r in p1_reads(nxt_vrd, 0, *nx) + p1_reads(nxt_vrd, 1, *nx): e.e(r)
        rd = []
        if s + 2 < 36: rd = p1_reads(vrd, s + 2, *own)
        elif not switch and nxt_vrd is not None: rd = p1_reads(nxt_vrd, s + 2 - 36, *nx)
        w = P1.WF + 4 * (s % 3)
        for t in range(2):
            d = acc + 16 * t
            cc = '0' if s == 0 else f'v[{d}:{d+15}]'
            if is_b: e.e(f'v_mfma_f32_32x32x16_bf16 v[{d}:{d+15}], {xfrag(t, s)}, v[{w}:{w+3}], {cc}')
            else: e.e(f'v_mfma_f32_32x32x16_bf16 v[{d}:{d+15}], v[{w}:{w+3}], {xfrag(t, s)}, {cc}')
            F.pre()
            if rd: e.e(rd[t])
            F.post()
    F.flush()

def p1_setup(e, first=False):
    c = P1
    make_srd(e, c.WQ, P_WQKV, 576 * 3456)
    e.e(f's_and_b32 s{c.E}, s{S_J}, 1')
    e.e(f's_lshl_b32 s{c.T0}, s{S_MI}, 3')
    e.e(f's_lshl_b32 s{c.TMP}, s{S_W}, 1')
    e.e(f's_add_u32 s{c.T0}, s{c.T0}, s{c.TMP}')
    e.e(f's_mul_i32 s{c.TMP}, s{S_J}, 36')
    e.e(f's_mov_b32 s{c.TMP2}, {(2**32 + 8) // 9}')
    e.e(f'v_mul_hi_u32 v24, v0, s{c.TMP2}')
    e.e('v_mul_u32_u24 v25, 9, v24')
    e.e('v_sub_u32 v25, v0, v25')
    e.e('v_mul_u32_u24 v26, 86, v25')
    e.e('v_lshrrev_b32 v26, 8, v26')
    e.e('v_mul_u32_u24 v27, 3, v26')
    e.e('v_sub_u32 v27, v25, v27')
    e.e('v_mul_u32_u24 v24, 3456, v24')
    e.e('v_mul_u32_u24 v26, 1152, v26')
    e.e('v_lshl_add_u32 v24, v27, 4, v24')
    e.e(f'v_add3_u32 v{c.V_DA}, v24, v26, s{c.TMP}')
    make_srd(e, c.WG, P_WG, 576 * 9216)
    e.e(f's_mov_b32 s{c.NL2E}, {fh(-LOG2E)}')
    e.e(f's_mov_b32 s{c.QS}, {fh(QSCALE)}')
    e.e('v_lshrrev_b32 v24, 2, v0')
    e.e('v_and_b32 v25, 3, v0')
    e.e('v_mul_u32_u24 v26, 9216, v24')
    e.e(f'v_lshl_add_u32 v{c.V_DG}, v25, 4, v26')
    e.e('v_xor_b32 v27, 2, v25')
    e.e(f'v_lshl_add_u32 v{c.V_DU}, v27, 4, v26')
    e.e('v_lshrrev_b32 v24, 4, v0')
    e.e('v_bfe_u32 v25, v0, 2, 2')
    e.e('v_and_b32 v26, 3, v0')
    e.e('v_lshrrev_b32 v27, 1, v24')
    e.e('v_lshl_add_u32 v27, v27, 3, v25')
    e.e('v_and_b32 v28, 1, v24')
    e.e(f'v_mul_u32_u24 v29, {c.PQ}, v27')
    e.e('v_mul_u32_u24 v30, 48, v28')
    e.e('v_lshl_add_u32 v30, v26, 3, v30')
    e.e(f'v_add_u32 v{c.V_BA}, v29, v30')
    e.e('v_mov_b32 v30, 80')
    e.e('v_mov_b32 v31, 128')
    e.e('v_cmp_eq_u32 vcc, 0, v26')
    e.e('v_cndmask_b32 v30, v30, v31, vcc')
    e.e('v_mov_b32 v31, 32')
    e.e('v_cmp_eq_u32 vcc, 1, v26')
    e.e('v_cndmask_b32 v30, v30, v31, vcc')
    e.e('v_lshlrev_b32 v31, 3, v26')
    e.e('v_add_u32 v31, 96, v31')
    e.e('v_cmp_eq_u32 vcc, 1, v28')
    e.e('v_cndmask_b32 v30, v31, v30, vcc')
    e.e(f'v_add_u32 v{c.V_BB}, v29, v30')
    e.e(f'v_add_u32 v{c.V_BAH}, {18*16*c.PQ}, v{c.V_BA}')
    e.e(f'v_add_u32 v{c.V_BBH}, {18*16*c.PQ}, v{c.V_BB}')
    e.e('v_lshlrev_b32 v27, 6, v27')
    e.e('v_lshl_add_u32 v27, v26, 3, v27')
    e.e(f'v_mul_u32_u24 v29, {c.MAT1}, v28')
    e.e('v_add_u32 v29, v29, v27')
    e.e(f'v_lshl_add_u32 v{c.V_BG0}, v28, 5, v29')
    e.e(f'v_xor_b32 v{c.V_BG1}, 32, v{c.V_BG0}')
    e.e('v_and_b32 v24, 31, v0')
    e.e('v_lshrrev_b32 v25, 5, v0')
    e.e(f'v_mov_b32 v{c.V_SC}, 1.0')
    e.e(f'v_mov_b32 v26, s{c.QS}')
    e.e('v_and_b32 v27, 30, v24')
    e.e('v_cmp_eq_u32 vcc, 20, v27')
    e.e(f'v_cndmask_b32 v{c.V_SC}, v{c.V_SC}, v26, vcc')
    e.e('v_mov_b32 v26, 0')
    e.e('v_cmp_eq_u32 vcc, 18, v27')
    e.e(f'v_cndmask_b32 v{c.V_SC}, v{c.V_SC}, v26, vcc')
    e.e(f'v_mov_b32 v{c.V_BI}, 0')
    e.e('v_mov_b32 v26, 1.0')
    e.e('v_cmp_eq_u32 vcc, 18, v24')
    e.e(f'v_cndmask_b32 v{c.V_BI}, v{c.V_BI}, v26, vcc')
    e.e('v_mul_u32_u24 v26, 320, v25')
    e.e('v_lshl_add_u32 v26, v24, 4, v26')
    e.e(f'v_mov_b32 v{c.V_VST}, 0x7ff00000')
    e.e('v_cmp_ge_u32 vcc, 19, v24')
    e.e(f'v_cndmask_b32 v{c.V_VST}, v{c.V_VST}, v26, vcc')
    e.e('v_lshlrev_b32 v26, 4, v25')
    e.e(f'v_add_u32 v27, {QX}, v26')
    e.e(f'v_add_u32 v26, {KX}, v26')
    e.e(f'v_mov_b32 v{c.V_QXST}, 0x7ff00000')
    e.e('v_cmp_eq_u32 vcc, 20, v24')
    e.e(f'v_cndmask_b32 v{c.V_QXST}, v{c.V_QXST}, v27, vcc')
    e.e('v_cmp_eq_u32 vcc, 24, v24')
    e.e(f'v_cndmask_b32 v{c.V_QXST}, v{c.V_QXST}, v26, vcc')
    e.e(f's_mul_i32 s{c.COL}, s{S_J}, 288')
    e.e(f's_lshl_b32 s{c.TMP}, s{c.E}, 5')
    e.e(f's_add_u32 s{c.COL5}, s{c.COL}, 256')
    e.e(f's_sub_u32 s{c.TMP2}, s{c.COL}, 32')
    e.e(f's_cmp_eq_u32 s{c.E}, 0')
    e.e(f's_cselect_b32 s{c.COL5}, s{c.COL5}, s{c.TMP2}')
    e.e(f's_add_u32 s{c.COL}, s{c.COL}, s{c.TMP}')
    e.e(f's_mul_i32 s{c.KG}, s{S_J}, 9')
    e.e(f's_add_u32 s{c.KG5}, s{c.KG}, 8')
    e.e(f's_cmp_eq_u32 s{c.E}, 0')
    e.e(f's_cselect_b32 s{c.KG5}, s{c.KG5}, s{c.KG}')
    e.e(f's_add_u32 s{c.KG}, s{c.KG}, s{c.E}')
    e.e(f's_mul_i32 s{c.HST0}, s{c.T0}, {288*1024}')
    e.e(f's_add_u32 s{c.HST0}, s{c.HST0}, {HF}')
    e.e(f's_add_u32 s{c.HST1}, s{c.HST0}, {288*1024}')
    make_srd(e, c.WU, P_WU, 576 * 9216)

def p1_dma_first(e, buf, dcol, i0=0, i1=36):
    c = P1
    for i in range(i0, i1):
        for m, (srd, vo) in enumerate(((c.WG, c.V_DG), (c.WU, c.V_DU))):
            e.e(f's_mov_b32 m0, {buf + m*c.MAT1 + i*1024}')
            if m == 0: e.e(f's_add_u32 s{c.DOFF}, s{c.COL}, {i*16*9216 + dcol}')
            else: e.e('s_nop 0')
            e.e(f'buffer_load_dwordx4 v{vo}, s[{srd}:{srd+3}], s{c.DOFF} offen lds')

def dma_qkv_groups(idx):
    c = P1; out = []
    n = -(-len(idx) // 4)
    idx = list(idx) + [idx[-1]] * (4 * n - len(idx))
    for k in range(n):
        i0, i1, i2, i3 = idx[4*k:4*k+4]
        if (i1, i2, i3) == (i0 + 1, i0 + 2, i0 + 3):
            g = [f's_add_u32 s{c.DML}, s{S_W}, {i0}']
        else:
            g = [f's_mov_b32 s{c.DML}, {i0}', f's_cmp_eq_u32 s{S_W}, 1', f's_cselect_b32 s{c.DML}, {i1}, s{c.DML}',
                 f's_cmp_eq_u32 s{S_W}, 2', f's_cselect_b32 s{c.DML}, {i2}, s{c.DML}', f's_cmp_eq_u32 s{S_W}, 3', f's_cselect_b32 s{c.DML}, {i3}, s{c.DML}']
        g += [f's_mul_i32 s{c.DOFF}, s{c.DML}, {7*3456}', f's_mul_i32 s{c.DML}, s{c.DML}, {7*c.PQ}', f's_mov_b32 m0, s{c.DML}',
              ('X63', f'buffer_load_dwordx4 v{c.V_DA}, s[{c.WQ}:{c.WQ+3}], s{c.DOFF} offen lds')]
        out.append(g)
    return out

def dma_gu_half(m):
    c = P1; out = []
    srd, vo = ((c.WG, c.V_DG), (c.WU, c.V_DU))[m]
    for i in range(9):
        g = []
        if i == 0:
            g += [f's_mul_i32 s{c.DOFF}, s{S_W}, {16*9216}', f's_add_u32 s{c.DOFF}, s{c.DOFF}, s{c.COL}', f's_add_u32 s{c.DML}, s{c.DM0}, {m*c.MAT1}']
        else:
            g += [f's_add_u32 s{c.DOFF}, s{c.DOFF}, {4*16*9216}', f's_add_u32 s{c.DML}, s{c.DML}, 4096']
        g += [f's_mov_b32 m0, s{c.DML}', f'buffer_load_dwordx4 v{vo}, s[{srd}:{srd+3}], s{c.DOFF} offen lds']
        out.append(g)
    return out

class EpiQ:
    def __init__(self): self.q = []
    def push(self, acc, instrs): self.q += [(acc, x) for x in instrs]
    def busy(self, acc): return any(a == acc for a, _ in self.q)
    def take(self, n=None, until_free=()):
        out = []
        while self.q and (n is None or len(out) < n or any(self.busy(a) for a in until_free)):
            out.append(self.q.pop(0)[1])
        return out

def emit_p1(e, P):
    c = P1
    make_srd(e, c.WU, P_WU, 576 * 9216)
    e.e(f's_mul_i32 s{c.TMP}, s{c.T0}, 36864')
    if XNF: e.e(f's_add_u32 s{c.TMP}, s{c.TMP}, {XNF}')
    e.e(f's_add_u32 s{c.TMP2}, s{c.TMP}, 36864')
    xl = []
    for s in range(36):
        if s and s % 4 == 0:
            xl.append(f's_add_u32 s{c.TMP}, s{c.TMP}, 4096')
            xl.append(f's_add_u32 s{c.TMP2}, s{c.TMP2}, 4096')
        xl.append(f'buffer_load_dwordx4 {xfrag(0, s)}, v{V_L16}, {WS}, s{c.TMP} offen offset:{(s%4)*1024}{SCL}')
        xl.append(f'buffer_load_dwordx4 {xfrag(1, s)}, v{V_L16}, {WS}, s{c.TMP2} offen offset:{(s%4)*1024}{SCL}')
    nx = 0; i = 0
    while nx < 48:
        e.e(xl[i]); nx += xl[i].startswith('buffer'); i += 1
    xrest = xl[i:]
    A0, A1, A2, A3 = c.ACC
    e.e(f'v_mov_b32 v{c.V_RD0}, v{c.V_BG0}')
    e.e(f'v_mov_b32 v{c.V_RD1}, v{c.V_BG1}')
    e.e(f'v_add_u32 v{c.V_RD2}, {c.BUF1}, v{c.V_BG0}')
    rA = lambda s: p1_reads(c.V_RD0, s, c.WF)
    rB = lambda s: p1_reads(c.V_RD1, s, c.WFB)
    rC = lambda s: p1_reads(c.V_RD2, s, c.WFC)
    for s in range(2):
        for r in rA(s) + rB(s) + rC(s): e.e(r)
    xg = []; cur = []
    for x in xrest:
        cur.append(x)
        if x.startswith('buffer'): xg.append(cur); cur = []
    early = list(range(0, 18)) + list(range(37, 54)) + list(range(74, 83))
    late = [i for i in range(83) if i not in early]
    F = Filler(e, [], 108, dma=xg, dma_start=0, dma_stride=3)
    for s in range(36):
        if s == 20:
            F.flush()
            e.e('s_barrier')
            F = Filler(e, [], 96, dma=dma_qkv_groups(early), dma_start=0, dma_stride=7)
        if s == 35:
            F.flush()
            e.wait(lg=0)
            e.e(f'v_add_u32 v{c.V_RD1}, {c.BUF1}, v{c.V_BG1}')
            e.e('s_barrier')
            for r in p1_reads(c.V_RD1, 0) + p1_reads(c.V_RD1, 1): e.e(r)
        rd = (rA(s + 2) + rB(s + 2) + rC(s + 2)) if s + 2 < 36 else []
        k = 0
        for tl in range(3):
            w = (c.WF, c.WFB, c.WFC)[tl] + 4 * (s % 3)
            for t in range(2):
                dd = c.ACC[tl] + 16 * t
                cc = '0' if s == 0 else f'v[{dd}:{dd+15}]'
                e.e(f'v_mfma_f32_32x32x16_bf16 v[{dd}:{dd+15}], v[{w}:{w+3}], {xfrag(t, s)}, {cc}')
                F.pre()
                if rd: e.e(rd[k])
                k += 1
                F.post()
    P.stamp('trio done'); P.stamp('rtrio', real=True)
    inc = [f's_add_u32 s{c.KG}, s{c.KG}, 1']
    Q = EpiQ()
    Q.push(A0, epi_gu(A0) + inc); Q.push(A1, epi_gu(A1) + inc); Q.push(A2, epi_gu(A2) + inc)
    d = dma_gu()
    BUD = 140
    def tile(acc, vrd, nxt, switch, dma=(), stride=6, start=0, wait=('dma',), pre=(), hook=None, epi=None, tk={}, **kw):
        assert not Q.busy(acc), acc
        for x in pre: e.e(x)
        F = Filler(e, Q.take(BUD, until_free=kw.pop('free', ())), 72, dma=dma, dma_start=start, dma_stride=stride, **kw)
        if hook: F.hook = hook
        p1_tile(e, acc, vrd, nxt, switch, F, wait=wait, **tk)
        Q.push(acc, epi if epi is not None else epi_gu(acc) + inc)
    tile(A3, c.V_RD1, c.V_RD0, True, dma=dma_qkv_groups(late), stride=5, pre=[f'v_mov_b32 v{c.V_RD0}, v{c.V_BA}'], free=(A0,), tk=dict(nxt_q=True))
    u3 = [f'v_mov_b32 v{c.V_RD1}, v{c.V_BB}', f's_lshl_b32 s{c.DM0}, s{S_W}, 10', f's_add_u32 s{c.DM0}, s{c.DM0}, {c.BUF1}', f's_add_u32 s{c.COL}, s{c.COL}, 128']
    tile(A0, c.V_RD0, c.V_RD1, False, dma=d[:12], pre=u3, free=(A1,), epi=epi_a(A0), tk=dict(own_q=True, nxt_q=True))
    tile(A1, c.V_RD1, c.V_RD0, True, dma=d[12:], pre=[f'v_add_u32 v{c.V_RD0}, {c.BUF1}, v{c.V_BG0}'], free=(A2,),
         epi=epi_b(A1, 0) + epi_b(A1, 1), tk=dict(is_b=True, own_q=True))
    P.stamp('AB done'); P.stamp('rAB', real=True)
    u4 = [f'v_add_u32 v{c.V_RD1}, {c.BUF1}, v{c.V_BG1}', f's_lshl_b32 s{c.DM0}, s{S_W}, 10', f's_add_u32 s{c.COL}, s{c.COL}, 64']
    tile(A2, c.V_RD0, c.V_RD1, False, dma=d[:12], pre=u4, free=(A3,))
    tile(A3, c.V_RD1, c.V_RD0, True, dma=d[12:], wait=('dma', 'kv'), pre=[f'v_mov_b32 v{c.V_RD0}, v{c.V_BG0}'], free=(A0, A1))
    publish(e, F_KV)
    u5 = [f'v_mov_b32 v{c.V_RD1}, v{c.V_BG1}', f's_lshl_b32 s{c.DM0}, s{S_W}, 10', f's_add_u32 s{c.DM0}, s{c.DM0}, {c.BUF1}', f's_mov_b32 s{c.COL}, s{c.COL5}']
    tile(A0, c.V_RD0, c.V_RD1, False, dma=d[:12], pre=u5)
    pre = [f's_lshl_b32 s49, s{c.E}, 5', f'v_xor_b32 v{c.V_RD0}, s49, v{c.V_BG0}', f'v_add_u32 v{c.V_RD0}, {c.BUF1}, v{c.V_RD0}']
    ids = ['v_and_b32 v3, 1, v0', 'v_bfe_u32 v6, v0, 1, 2', 'v_lshl_add_u32 v3, v6, 3, v3', 's_and_b32 s48, s2, 0xe6', 'v_add_u32 v3, s48, v3']
    for x in poll_issue(e, F_KV, ids, 8, 4): emit_item(e, x)
    tile(A1, c.V_RD1, c.V_RD0, True, dma=d[12:], pre=pre, hook=(56, lambda: poll_check(e, 8, 4)), free=(A2, A3),
         epi=epi_gu(A1) + [f's_mov_b32 s{c.KG}, s{c.KG5}'])
    P.stamp('p1 loop done'); P.stamp('rU4', real=True)
    for x in p2_bases(): e.e(x)
    assert not Q.busy(A3)
    BUD = 10000
    tile(A2, c.V_RD0, None, False, dma=p2_prefetch_groups(), stride=3, first_gap=1, epi=epi_gu(A2))
    for x in Q.take(): emit_item(e, x)
    e.wait_all()
    e.e('s_barrier')
    publish(e, F_H)
    P.stamp('p1 done'); P.stamp('rp1 done', real=True)

class P2:
    A, B, C = 65, 66, 67
    T0, TRIP = 50, 54
    X0, X1, X2, X3 = 46, 47, 48, 49
    L_KM, L_KX, L_V = 0, 65536, 73728
    MARGIN = 60.0
    V_KA, V_KXA, V_VA = 8, 9, 10
    V_T0 = 12
    QM = [24, 28]; QE = [32, 36]
    KM = [48, 52]; KE = [56, 60]
    VFR = [[64, 68], [72, 76]]
    PP = [80, 88]
    OO = [96, 112]
    SS = [[128, 144], [160, 176]]

def mf(d, a, b, c):
    cs = '0' if c is None else f'v[{c}:{c+15}]'
    return f'v_mfma_f32_32x32x16_bf16 v[{d}:{d+15}], v[{a}:{a+3}], v[{b}:{b+3}], {cs}'
def qk(buf_s, kb, t):
    c = P2; d = c.SS[buf_s][t]
    return [mf(d, c.KM[kb], c.QM[t], None), mf(d, c.KE[kb], c.QE[t], d)]
def kreads(kb, i):
    c = P2
    return [f'ds_read_b128 v[{c.KM[kb]}:{c.KM[kb]+3}], v{c.V_KA} offset:{i*1024}',
            f'ds_read_b32 v{c.KE[kb]}, v{c.V_KXA} offset:{i*128}']
def vreads(vb, i):
    c = P2
    return [f'ds_read_b128 v[{c.VFR[vb][0]}:{c.VFR[vb][0]+3}], v{c.V_VA} offset:{i*1280}',
            f'ds_read_b128 v[{c.VFR[vb][1]}:{c.VFR[vb][1]+3}], v{c.V_VA} offset:{i*1280+640}']

ATT_ORDER = 1
DIAG = False
def attn_iter(e, b, off, first=False, extra=()):
    c = P2
    valu = []
    for t in range(2):
        for g in range(2):
            S = c.SS[b][t] + 8 * g
            valu += [f'v_exp_f32 v{S+r}, v{S+r}' for r in range(8)]
            valu += [f'v_cvt_pk_bf16_f32 v{c.PP[t]+4*g+r}, v{S+2*r}, v{S+2*r+1}' for r in range(4)]
    q0 = qk(b ^ 1, b ^ 1, 0); q1 = qk(b ^ 1, b ^ 1, 1)
    pv = lambda t, g, vb: mf(c.OO[t], c.VFR[vb][g], c.PP[t] + 4 * g, c.OO[t])
    ins = {2: [] if first else [pv(1, 1, b ^ 1)], 8: [q0[0]], 14: [q1[0]], 20: [pv(0, 0, b)], 26: [q0[1]], 32: [pv(0, 1, b)], 38: [pv(1, 0, b)], 44: [q1[1]]}
    if ATT_ORDER == 0: ins = {2: [] if first else [pv(1, 1, b ^ 1)], 8: [q0[0]], 14: [q0[1]], 20: [pv(0, 0, b)], 26: [q1[0]], 32: [pv(0, 1, b)], 38: [q1[1]], 44: [pv(1, 0, b)]}
    kr = kreads(b, off + 2); vr = vreads(b ^ 1, off + 1)
    lds = {2: [vr[0]], 14: [vr[1]], 26: [kr[0]], 32: [kr[1]]}
    extra = list(extra)
    slots = [8, 20, 38, 44] if len(extra) <= 4 else [2, 8, 14, 20, 26, 32, 38, 44]
    xtra = {}
    for k, g in enumerate(extra): xtra.setdefault(slots[k * len(slots) // len(extra)], []).append(g)
    for i, v in enumerate(valu):
        if i == 8: e.wait(lg=1)
        for x in ins.get(i, []): e.e(x)
        for x in lds.get(i, []): e.e(x)
        for g in xtra.get(i, []):
            for x in g:
                if callable(x): x()
                else: emit_item(e, x)
        e.e(v)

def kv_grp(base_s, ldsbase, idx_expr, x0=48, x1=49):
    return idx_expr(x1) + [f's_lshl_b32 s{x0}, s{x1}, 10', f's_add_u32 m0, s{x0}, {ldsbase}', f's_add_u32 s{x0}, s{x0}, s{base_s}',
                           f'buffer_load_dwordx4 v{V_L16}, {WS}, s{x0} offen{SCL} lds']
def p2_bases():
    c = P2
    return [f's_lshl_b32 s{c.A}, s{S_J}, 16', f's_add_u32 s{c.A}, s{c.A}, {KF}',
            f's_lshl_b32 s{c.B}, s{S_J}, 13', f's_add_u32 s{c.B}, s{c.B}, {KX}',
            f's_mul_i32 s{c.C}, s{S_J}, {VF_HEAD}', f's_add_u32 s{c.C}, s{c.C}, {VF}']
def p2_prefetch_groups():
    c = P2; W = S_W; g = []
    g.append(kv_grp(c.A, c.L_KM, lambda x: [f's_mov_b32 s{x}, s{W}']))
    g.append(kv_grp(c.C, c.L_V, lambda x: [f's_mov_b32 s{x}, s{W}']))
    g.append(kv_grp(c.B, c.L_KX, lambda x: [f's_mov_b32 s{x}, s{W}']))
    g.append(kv_grp(c.A, c.L_KM, lambda x: [f's_add_u32 s{x}, s{W}, 4']))
    g.append(kv_grp(c.C, c.L_V, lambda x: [f's_add_u32 s{x}, s{W}, 4']))
    g.append(kv_grp(c.C, c.L_V, lambda x: [f's_add_u32 s{x}, s{W}, 8', f's_min_u32 s{x}, s{x}, 9']))
    g.append([f's_lshl_b32 s49, s{S_J}, 6', f's_add_u32 s49, s49, s{c.T0}', 's_lshl_b32 s49, s49, 10', f's_add_u32 s49, s49, {QF}',
              f'buffer_load_dwordx4 v[{c.QM[0]}:{c.QM[0]+3}], v{V_L16}, {WS}, s49 offen{SCL}'])
    g.append([f'buffer_load_dwordx4 v[{c.QM[1]}:{c.QM[1]+3}], v{V_L16}, {WS}, s49 offen offset:1024{SCL}'])
    g.append(['v_lshlrev_b32 v12, 2, v0', 'v_mov_b32 v13, 0x7ff00000', 'v_cmp_gt_u32 vcc, 32, v0', 's_nop 0', 'v_cndmask_b32 v12, v13, v12, vcc',
              f's_lshl_b32 s49, s{S_J}, 13', f's_lshl_b32 s48, s{c.T0}, 7', 's_add_u32 s49, s49, s48', f's_add_u32 s49, s49, {QX}',
              f'buffer_load_dword v{c.QE[0]}, v12, {WS}, s49 offen{SCL}'])
    g.append([f'buffer_load_dword v{c.QE[1]}, v12, {WS}, s49 offen offset:128{SCL}'])
    for i in range(2, 16): g.append(kv_grp(c.A, c.L_KM, lambda x, i=i: [f's_add_u32 s{x}, s{W}, {4*i}']))
    g.append(kv_grp(c.B, c.L_KX, lambda x: [f's_add_u32 s{x}, s{W}, 4']))
    return g

def emit_p2(e, P):
    c = P2
    W = S_W
    grp = lambda base, lb, f: kv_grp(base, lb, f, 46, 47)
    b1 = [grp(c.C, c.L_V, lambda x, i=i: [f's_add_u32 s{x}, s{W}, {10+4*i}', f's_min_u32 s{x}, s{x}, 39']) for i in range(8)]
    b2 = [grp(c.C, c.L_V, lambda x, i=i: [f's_add_u32 s{x}, s{W}, {40+4*i}']) for i in range(10)]
    for t in range(2):
        for r in (1, 2, 3): e.e(f'v_mov_b32 v{c.QE[t]+r}, 0')
        e.e(f'v_mov_b32 v{c.KE[t]+1}, 0x3f80')
        e.e(f'v_mov_b32 v{c.KE[t]+2}, 0'); e.e(f'v_mov_b32 v{c.KE[t]+3}, 0')
    e.e(f'v_mov_b32 v{c.V_KA}, v{V_L16}')
    e.e('v_and_b32 v12, 31, v0')
    e.e(f'v_lshlrev_b32 v{c.V_KXA}, 2, v12')
    e.e(f'v_add_u32 v{c.V_KXA}, {c.L_KX}, v{c.V_KXA}')
    e.e('v_min_u32 v13, 19, v12')
    e.e('v_lshrrev_b32 v14, 5, v0')
    e.e('v_mul_u32_u24 v14, 320, v14')
    e.e(f'v_lshl_add_u32 v{c.V_VA}, v13, 4, v14')
    e.e(f'v_add_u32 v{c.V_VA}, {c.L_V}, v{c.V_VA}')
    for t in range(2):
        for r in range(16): e.e(f'v_mov_b32 v{c.OO[t]+r}, 0')
    for x in kreads(0, 0) + kreads(1, 1) + vreads(0, 0): e.e(x)
    for kt in range(2):
        for t in range(2):
            for x in qk(kt, kt, t): e.e(x)
    for t in range(2):
        m = c.V_T0 + t
        e.e(f'v_max3_f32 v{m}, v{c.SS[0][t]}, v{c.SS[0][t]+1}, v{c.SS[0][t]+2}')
        regs = [c.SS[0][t] + r for r in range(3, 16)] + [c.SS[1][t] + r for r in range(16)]
        while len(regs) >= 2:
            e.e(f'v_max3_f32 v{m}, v{m}, v{regs[0]}, v{regs[1]}'); regs = regs[2:]
        if regs: e.e(f'v_max_f32 v{m}, v{m}, v{regs[0]}')
    e.e(f's_mov_b32 s{c.X0}, {fh(c.MARGIN)}')
    for t in range(2):
        m = c.V_T0 + t; x = c.V_T0 + 2 + t
        e.e(f'v_mov_b32 v{x}, v{m}')
        e.e(f'v_permlane32_swap_b32 v{m}, v{x}')
        e.e(f'v_max_f32 v{m}, v{m}, v{x}')
        e.e(f'v_add_f32 v{m}, s{c.X0}, v{m}')
        e.e(f'v_cvt_pk_bf16_f32 v{m}, -v{m}, 0')
        e.e('v_cmp_gt_u32 vcc, 32, v0')
        e.e(f'v_cndmask_b32 v{c.QE[t]+1}, 0, v{m}, vcc')
    for t in range(2):
        for x in qk(0, 0, t): e.e(x)
    P.stamp('max done')
    nb = [0]
    def body(first=False, extra=()):
        extra = list(extra); h = (len(extra) + 1) // 2
        o = 2 * (nb[0] % 4)
        attn_iter(e, 0, o, first=first, extra=extra[:h])
        attn_iter(e, 1, o + 1, extra=extra[h:])
        nb[0] += 1
        if nb[0] % 4 == 0:
            e.e(f'v_add_u32 v{c.V_KA}, {8*1024}, v{c.V_KA}')
            e.e(f'v_add_u32 v{c.V_KXA}, {8*128}, v{c.V_KXA}')
            e.e(f'v_add_u32 v{c.V_VA}, {8*1280}, v{c.V_VA}')
    body(True, b1[:4]); body(False, b1[4:]); body()
    e.wait_vm0(); e.e('s_barrier')
    body()
    body(False, b2[:4]); body(False, b2[4:8]); body(False, b2[8:]); body()
    P.stamp('trip1 done')
    make_srd(e, S_R0, P_WD, 4608 * 1152)
    e.e(f's_bfe_u32 s{c.X0}, s2, 0x20001')
    e.e(f's_mul_i32 s55, s{c.X0}, {1152*1152}')
    e.e(f's_lshr_b32 s{c.X0}, s2, 3')
    e.e(f's_lshl_b32 s{c.X0}, s{c.X0}, 2')
    e.e(f's_add_u32 s{c.X0}, s{c.X0}, s{S_W}')
    e.e(f's_mul_i32 s{c.X0}, s{c.X0}, {1152*1152 // 128}')
    e.e(f's_add_u32 s55, s55, s{c.X0}')
    warm = [[f'buffer_load_dwordx4 v[224:227], v{V_L16}, s[{S_R0}:{S_R0+3}], s55 offen', 's_add_u32 s55, s55, 1024'] for _ in range(3)]
    e.wait_vm0()
    e.e('s_barrier')
    e.e(f's_mov_b32 s{c.TRIP}, 2')
    lab = f'{NAME}_p2loop'
    e.label(lab)
    st0 = e.state(); m0 = e.mark()
    body(False, [[('RAW', warm[0][0]), warm[0][1]]]); body(False, [[('RAW', warm[1][0]), warm[1][1]]]); body(False, [[('RAW', warm[2][0]), warm[2][1]]]); body()
    e.e(f's_add_u32 s{c.TRIP}, s{c.TRIP}, 1')
    e.e(f's_cmp_lt_u32 s{c.TRIP}, 6')
    e.e(f's_cbranch_scc1 {lab}')
    bad = e.check_loop(m0); assert not bad, bad
    st1 = e.state(); assert [a for a, b in st0[0]] == [a for a, b in st1[0]], (st0[0], st1[0])
    P.stamp('loop4 done')
    e.raw('    s_waitcnt vmcnt(0)'); e.vm_q = []
    sa, sb = p3_setup()
    ca = [sa[i:i+8] for i in range(0, len(sa), 8)]
    cb_ = [sb[i:i+7] for i in range(0, len(sb), 7)]
    pi = poll_issue(e, F_H, p3_ids8(47), 8, 4)
    bl = []
    for u in range(8): bl += p3_bload_groups(0, base=32 * u)
    t6 = [pi] + ca + cb_ + [[lambda: poll_check(e, 8, 4)]]
    while len(t6) < 40: t6.append(bl.pop(0))
    q4 = -(-len(t6) // 4)
    for i in range(4): body(False, t6[i*q4:(i+1)*q4])
    e.e('s_barrier')
    p3_srds(e)
    w0 = p3_dma_unit(P3.WD, P3.V_DO, P3.R[0])
    w1 = p3_dma_unit(P3.WD, P3.V_DO, P3.R[1])
    w1[0] = [f's_add_u32 s{P3.WOFF}, s{P3.WOFF}, {128*1152}'] + w1[0]
    t7 = []
    ws_ = w0 + w1
    while bl or ws_:
        if ws_: t7.append(ws_.pop(0))
        if bl: t7.append(bl.pop(0))
        if bl: t7.append(bl.pop(0))
    q4 = -(-len(t7) // 4)
    for i in range(4): body(False, t7[i*q4:(i+1)*q4])
    e.e(f's_add_u32 s{P3.WOFF}, s{P3.WOFF}, {128*1152}')
    P.stamp('p2 loop done')
    e.e(mf(c.OO[1], c.VFR[1][1], c.PP[1] + 4, c.OO[1]))
    e.e(f's_mov_b32 s{c.X0}, {fh(2.0**120)}')
    for t in range(2):
        O = c.OO[t]; l = c.V_T0 + t; x = c.V_T0 + 2 + t; mx = c.V_T0 + 4 + t
        e.e(f'v_mov_b32 v{l}, v{O+10}')
        e.e(f'v_mov_b32 v{x}, v{O+10}')
        e.e(f'v_max3_f32 v{mx}, |v{O}|, |v{O+1}|, |v{O+2}|')
        for r in range(3, 9, 2): e.e(f'v_max3_f32 v{mx}, v{mx}, |v{O+r}|, |v{O+r+1}|')
        e.e(f'v_max3_f32 v{mx}, v{mx}, |v{O+9}|, |v{O+10}|')
        e.e(f'v_permlane32_swap_b32 v{l}, v{x}')
    e.e(f'v_cmp_nge_f32 vcc, s{c.X0}, v{c.V_T0+4}')
    e.e(f's_mov_b64 s[{c.X2}:{c.X3}], vcc')
    e.e(f'v_cmp_nge_f32 vcc, s{c.X0}, v{c.V_T0+5}')
    e.e(f's_or_b64 vcc, vcc, s[{c.X2}:{c.X3}]')
    e.e(f's_cmp_lg_u64 vcc, 0')
    e.e(f's_cselect_b32 s{c.X0}, 1, 0')
    e.e(f'v_mov_b32 v{c.V_T0+7}, s{c.X0}')
    e.e(f's_lshl_b32 s{c.X1}, s{S_W}, 2')
    e.e(f's_add_u32 s{c.X1}, s{c.X1}, {L_MISC + 16}')
    e.e(f'v_mov_b32 v{c.V_T0+8}, s{c.X1}')
    e.e(f'ds_write_b32 v{c.V_T0+8}, v{c.V_T0+7}')
    e.label(f'{NAME}_p2fin')
    for t in range(2):
        O = c.OO[t]; l = c.V_T0 + t
        e.e(f'v_rcp_f32 v{l}, v{l}')
        for r in range(10): e.e(f'v_mul_f32 v{O+r}, v{O+r}, v{l}')
        pk = 128 + 8 * t
        for r in range(5): e.e(f'v_cvt_pk_bf16_f32 v{pk+r}, v{O+2*r}, v{O+2*r+1}')
        e.e(f's_add_u32 s{c.X1}, s{c.T0}, {t}')
        e.e(f's_mul_i32 s{c.X1}, s{c.X1}, 36864')
        e.e(f's_add_u32 s{c.X1}, s{c.X1}, {OF}')
        e.e(f's_lshl_b32 s{c.X2}, s{S_J}, 10')
        e.e(f's_add_u32 s{c.X2}, s{c.X2}, s{c.X1}')
        e.e(f'buffer_store_dwordx4 v[{pk}:{pk+3}], v{V_L16}, {WS}, s{c.X2} offen{SC}')
        e.e(f's_lshr_b32 s{c.X2}, s{S_J}, 3')
        e.e(f's_add_u32 s{c.X2}, s{c.X2}, 32')
        e.e(f's_lshl_b32 s{c.X2}, s{c.X2}, 10')
        e.e(f's_add_u32 s{c.X1}, s{c.X1}, s{c.X2}')
        e.e(f's_bfe_u32 s{c.X2}, s{S_J}, 0x10002')
        e.e(f's_lshl_b32 s{c.X2}, s{c.X2}, 9')
        e.e(f's_add_u32 s{c.X1}, s{c.X1}, s{c.X2}')
        e.e(f's_and_b32 s{c.X2}, s{S_J}, 3')
        e.e(f's_lshl_b32 s{c.X2}, s{c.X2}, 2')
        e.e(f's_add_u32 s{c.X1}, s{c.X1}, s{c.X2}')
        if t == 0:
            e.e(f'v_mov_b32 v{c.V_T0+6}, 0x7ff00000')
            e.e('v_cmp_gt_u32 vcc, 32, v0')
            e.e(f'v_cndmask_b32 v{c.V_T0+6}, v{c.V_T0+6}, v{V_L16}, vcc')
        e.e(f'buffer_store_dword v{pk+4}, v{c.V_T0+6}, {WS}, s{c.X1} offen{SC}')
    e.wait_all()
    e.e('s_barrier')
    e.e(f'v_mov_b32 v{c.V_T0+8}, {L_MISC + 16}')
    e.e(f'ds_read_b128 v[{c.V_T0+4}:{c.V_T0+7}], v{c.V_T0+8}')
    e.e(f'v_or3_b32 v{c.V_T0+4}, v{c.V_T0+4}, v{c.V_T0+5}, v{c.V_T0+6}')
    e.e(f'v_or_b32 v{c.V_T0+4}, v{c.V_T0+4}, v{c.V_T0+7}')
    e.e(f'v_readfirstlane_b32 s{c.X0}, v{c.V_T0+4}')
    e.e(f's_cmp_lg_u32 s{c.X0}, 0')
    e.e(f's_cbranch_scc1 {NAME}_p2slow')
    e.label(f'{NAME}_p2ok')
    publish(e, F_O)
    P.stamp('rp2 done', real=True)

def emit_p2_slow(e):
    c = P2
    e.label(f'{NAME}_p2slow')
    e.lds_q = []; e.vm_q = []
    e.e('s_waitcnt vmcnt(0) lgkmcnt(0)')
    e.e('s_barrier')
    e.e(f'v_mov_b32 v{c.V_T0+7}, 0')
    e.e(f's_lshl_b32 s{c.X1}, s{S_W}, 2')
    e.e(f's_add_u32 s{c.X1}, s{c.X1}, {L_MISC + 16}')
    e.e(f'v_mov_b32 v{c.V_T0+8}, s{c.X1}')
    e.e(f'ds_write_b32 v{c.V_T0+8}, v{c.V_T0+7}')
    for i in range(9):
        for x in kv_grp(c.A, c.L_KM, lambda x, i=i: [f's_add_u32 s{x}, s{S_W}, {4*i}'], 46, 47): e.e(x)
        for x in kv_grp(c.C, c.L_V, lambda x, i=i: [f's_add_u32 s{x}, s{S_W}, {4*i}'], 46, 47): e.e(x)
    e.e('s_waitcnt vmcnt(0) lgkmcnt(0)')
    e.e('s_barrier')
    MX = [160, 161]; AL = 162; TM = 163; TX = 164
    for t in range(2):
        e.e(f'v_mov_b32 v{c.QE[t]+1}, 0')
        e.e(f'v_mov_b32 v{MX[t]}, 0xff7fffff')
        for r in range(16): e.e(f'v_mov_b32 v{c.OO[t]+r}, 0')
    e.e(f'v_subrev_u32 v{c.V_KA}, {32*2048}, v{c.V_KA}')
    e.e(f'v_subrev_u32 v{c.V_KXA}, {32*256}, v{c.V_KXA}')
    e.e(f'v_subrev_u32 v{c.V_VA}, {32*2560}, v{c.V_VA}')
    e.e(f's_mov_b32 s{c.TRIP}, 0')
    lab = f'{NAME}_p2slowloop'
    e.label(lab)
    ms = e.mark()
    for x in kreads(0, 0) + vreads(0, 0): e.e(x)
    for t in range(2):
        for x in qk(0, 0, t): e.e(x)
    for t in range(2):
        S = c.SS[0][t]
        e.e(f'v_max3_f32 v{TM}, v{S}, v{S+1}, v{S+2}')
        for r in range(3, 15, 2): e.e(f'v_max3_f32 v{TM}, v{TM}, v{S+r}, v{S+r+1}')
        e.e(f'v_max_f32 v{TM}, v{TM}, v{S+15}')
        e.e(f'v_mov_b32 v{TX}, v{TM}')
        e.e(f'v_permlane32_swap_b32 v{TM}, v{TX}')
        e.e(f'v_max3_f32 v{TM}, v{TM}, v{TX}, v{MX[t]}')
        e.e(f'v_sub_f32 v{AL}, v{MX[t]}, v{TM}')
        e.e(f'v_exp_f32 v{AL}, v{AL}')
        e.e(f'v_mov_b32 v{MX[t]}, v{TM}')
        for r in range(16): e.e(f'v_sub_f32 v{S+r}, v{S+r}, v{TM}')
        for r in range(16): e.e(f'v_exp_f32 v{S+r}, v{S+r}')
        for r in range(16): e.e(f'v_mul_f32 v{c.OO[t]+r}, v{c.OO[t]+r}, v{AL}')
        for r in range(8): e.e(f'v_cvt_pk_bf16_f32 v{c.PP[t]+r}, v{S+2*r}, v{S+2*r+1}')
        for g in range(2): e.e(mf(c.OO[t], c.VFR[0][g], c.PP[t] + 4 * g, c.OO[t]))
    e.e(f'v_add_u32 v{c.V_KA}, 1024, v{c.V_KA}')
    e.e(f'v_add_u32 v{c.V_KXA}, 128, v{c.V_KXA}')
    e.e(f'v_add_u32 v{c.V_VA}, 1280, v{c.V_VA}')
    e.e('s_nop 15')
    e.e(f's_add_u32 s{c.TRIP}, s{c.TRIP}, 1')
    e.e(f's_cmp_lt_u32 s{c.TRIP}, 64')
    e.e(f's_cbranch_scc1 {lab}')
    bad = e.check_loop(ms); assert not bad, bad
    e.e('s_nop 15')
    e.e('s_waitcnt lgkmcnt(0)')
    e.e('s_barrier')
    e.e(f's_sub_u32 s{P3.WOFF}, s{P3.WOFF}, {2*128*1152}')
    for g in p3_dma_unit(P3.WD, P3.V_DO, P3.R[0]):
        for x in g: e.e(x)
    e.e(f's_add_u32 s{P3.WOFF}, s{P3.WOFF}, {128*1152}')
    for g in p3_dma_unit(P3.WD, P3.V_DO, P3.R[1]):
        for x in g: e.e(x)
    e.e(f's_add_u32 s{P3.WOFF}, s{P3.WOFF}, {128*1152}')
    for t in range(2):
        O = c.OO[t]; l = c.V_T0 + t; x = c.V_T0 + 2 + t
        e.e(f'v_mov_b32 v{l}, v{O+10}')
        e.e(f'v_mov_b32 v{x}, v{O+10}')
        e.e(f'v_permlane32_swap_b32 v{l}, v{x}')
    e.e(f's_branch {NAME}_p2fin')

class P3:
    WD, WO = S_R0, S_R1
    C2, MT, CQ, TT, HB, WOFF, U = 55, 56, 57, 58, 59, 60, 61
    R = [62, 63, 64, 68]
    A, B = 46, 47
    V_DO, V_D2, V_DX = 192, 201, 210
    V_RB, V_RD, V_BO = 219, 220, 222
    AF = 32
    NSLOT, DIST = 6, 4
    BF = [0, 32]
    ACC = 96
    UNIT = 36864
    SLOTS = [0, 73728, 36864, 110592]

def p3_areads(vrd, ks, cb, slot):
    b = P3.AF + 4 * slot
    o = ks * 9216 + cb * 32
    return [f'ds_read_b64_tr_b16 v[{b}:{b+1}], v{vrd} offset:{o}',
            f'ds_read_b64_tr_b16 v[{b+2}:{b+3}], v{vrd} offset:{o + 8*288}']

def poll_ids(e, phase, idexpr, n):
    for x in idexpr: e.e(x)
    poll(e, phase, 3, n)

def p3_ids8(a):
    return ['v_and_b32 v3, 7, v0', 'v_lshlrev_b32 v3, 5, v3', f's_lshr_b32 s{a}, s2, 6', f's_lshl_b32 s{a}, s{a}, 3',
            f'v_add_u32 v3, s{a}, v3', f's_and_b32 s{a}, s2, 7', f'v_add_u32 v3, s{a}, v3']

L_STASH = 157696
P3_STASH = None
def p3_stash_regs():
    c = P3
    return [c.V_DO + j for j in range(9)] + [c.V_D2] + [c.V_DX + j for j in range(9)] + [c.V_RB, c.V_BO]

def p3_lane_setup(e):
    c = P3
    t0, t1, t2, t3 = 8, 9, 10, 11
    R = 16
    e.e('s_bfe_u32 s48, s2, 0x20003')
    e.e('s_mul_i32 s48, s48, 288')
    e.e(f's_mov_b32 s49, {(2**32 + 287) // 288}')
    for j in range(9):
        for x in [f'v_add_u32 v{t0}, {j*1024}, v{V_L16}',
                  f'v_mul_hi_u32 v{t1}, v{t0}, s49',
                  f'v_mul_u32_u24 v{t2}, 288, v{t1}',
                  f'v_sub_u32 v{t0}, v{t0}, v{t2}',
                  f'v_add_u32 v{t0}, s48, v{t0}',
                  f'v_mul_u32_u24 v{t2}, 1152, v{t1}',
                  f'v_add_u32 v{R+j}, v{t0}, v{t2}']: e.e(x)
        if j == 4:
            for x in [f'v_lshrrev_b32 v{t2}, 4, v{t1}', f'v_mul_u32_u24 v{t2}, {2*1152}, v{t2}', f'v_add_u32 v{R+9}, v{R+j}, v{t2}']: e.e(x)
        for x in [f'v_bfe_u32 v{t2}, v{t1}, 2, 1', f'v_lshlrev_b32 v{t2}, 2, v{t2}', f'v_bfe_u32 v{t3}, v{t1}, 1, 1', f'v_add_u32 v{t2}, v{t2}, v{t3}',
                  f'v_bfe_u32 v{t3}, v{t1}, 3, 1', f'v_lshl_add_u32 v{t2}, v{t3}, 1, v{t2}', f'v_mul_u32_u24 v{t2}, 18, v{t2}', f'v_and_b32 v{t3}, 1, v{t1}',
                  f'v_add3_u32 v{t2}, v{t2}, v{t3}, 16', f'v_mul_u32_u24 v{t2}, 1152, v{t2}', f'v_add_u32 v{R+10+j}, v{t0}, v{t2}']: e.e(x)
    for x in [f'v_lshrrev_b32 v{t0}, 5, v0', f'v_lshlrev_b32 v{t0}, 4, v{t0}', f'v_bfe_u32 v{t1}, v0, 4, 1', f'v_lshl_add_u32 v{t0}, v{t1}, 2, v{t0}',
              f'v_bfe_u32 v{t1}, v0, 2, 2', f'v_add_u32 v{t0}, v{t0}, v{t1}', f'v_mul_u32_u24 v{t0}, 288, v{t0}', f'v_and_b32 v{t1}, 3, v0',
              f'v_lshl_add_u32 v{R+19}, v{t1}, 3, v{t0}',
              f'v_lshrrev_b32 v{t0}, 5, v0', f'v_lshlrev_b32 v{t0}, 10, v{t0}', f'v_bfe_u32 v{t1}, v0, 4, 1', f'v_lshl_add_u32 v{t0}, v{t1}, 9, v{t0}',
              f'v_and_b32 v{t1}, 15, v0', f'v_lshl_add_u32 v{R+20}, v{t1}, 4, v{t0}',
              f'v_lshlrev_b32 v{t0}, 2, v0', f'v_add_u32 v{t0}, {L_STASH}, v{t0}']: e.e(x)
    for k in range(21): e.e(f'ds_write_b32 v{t0}, v{R+k} offset:{256*k}')
    e.wait_lgkm0()

def p3_setup():
    c = P3; o = []
    o += [f's_bfe_u32 s{c.C2}, s2, 0x20001', f's_and_b32 s{c.MT}, s2, 1', f's_lshl_b32 s{c.MT}, s{c.MT}, 3', f's_lshr_b32 s{c.A}, s2, 5',
          f's_add_u32 s{c.MT}, s{c.MT}, s{c.A}', f's_bfe_u32 s{c.CQ}, s2, 0x20003', f's_lshl_b32 s{c.TT}, s{c.MT}, 2', f's_add_u32 s{c.TT}, s{c.TT}, s{S_W}']
    o += [f's_mul_i32 s{c.HB}, s{c.TT}, {288*1024}', f's_mul_i32 s{c.A}, s{c.C2}, {72*1024}', f's_add_u32 s{c.HB}, s{c.HB}, s{c.A}', f's_add_u32 s{c.HB}, s{c.HB}, {HF}']
    o += ['v_lshlrev_b32 v12, 2, v0', f'v_add_u32 v12, {L_STASH}, v12']
    regs = p3_stash_regs()
    o += [f'ds_read_b32 v{regs[20]}, v12 offset:{256*20}']
    first = o; o = []
    o += [f'ds_read_b32 v{regs[k]}, v12 offset:{256*k}' for k in range(20)]
    o += [f's_mul_i32 s{c.WOFF}, s{c.C2}, {72*16}', f's_lshl_b32 s{c.A}, s{S_W}, 5', f's_add_u32 s{c.WOFF}, s{c.WOFF}, s{c.A}', f's_mul_i32 s{c.WOFF}, s{c.WOFF}, 1152']
    o += [f's_mov_b32 s{c.R[i]}, {c.SLOTS[i]}' for i in range(4)]
    return first, o

def p3_srds(e):
    make_srd(e, P3.WD, P_WD, 4608 * 1152)
    make_srd(e, P3.WO, P_WO, 576 * 1152)

def p3_dma_unit(srd, vo, rslot):
    c = P3; out = []
    for j in range(9):
        g = []
        if j == 0: g += [f's_mul_i32 s48, s{S_W}, 9216', f's_add_u32 s48, s48, s{rslot}']
        reg, so = vo + j, c.WOFF
        if vo == c.V_D2:
            reg = c.V_D2 if j == 4 else c.V_DO + j
            so = c.U if j > 4 else c.WOFF
            if j == 0: g.append(f's_add_u32 s{c.U}, s{c.WOFF}, {2*1152}')
        g += [f's_add_u32 m0, s48, {j*1024}', f'buffer_load_dwordx4 v{reg}, s[{srd}:{srd+3}], s{so} offen lds']
        out.append(g)
    return out

def p3_bloads(base):
    c = P3
    return [f'buffer_load_dwordx4 a[{base+8*k+4*th}:{base+8*k+4*th+3}], v{c.V_BO}, {WS}, s{c.HB} offen offset:{(k%2)*2048+th*256}{SCL}'
            for k in range(4) for th in range(2)]

def p3_bload_groups(buf, base=None):
    c = P3; L = p3_bloads(base); out = []
    for i, x in enumerate(L):
        g = []
        if i == 4: g.append(f's_add_u32 s{c.HB}, s{c.HB}, 4096')
        g.append(x)
        if i == 7: g.append(f's_add_u32 s{c.HB}, s{c.HB}, 4096')
        out.append(g)
    return out

def emit_p3(e, P, prefetched):
    c = P3
    e.e(f'v_add_u32 v{c.V_RD}, s{c.R[0]}, v{c.V_RB}')
    P.stamp('p3 u0 ready')
    seq = [(ks, cb) for ks in range(4) for cb in range(9)]
    for i in range(c.DIST):
        for x in p3_areads(c.V_RD, seq[i][0], seq[i][1], i % c.NSLOT): e.e(x)
    def unit(bb, first, dma, bl, nks=4, nxt=True, hook=None):
        n = nks * 9
        fl = [list(g) for g in dma]; bl = [list(g) for g in bl]
        e.e(f'v_add_u32 v{c.V_RD+1}, s{c.R[1]}, v{c.V_RB}')
        for i in range(n):
            ks, cb = seq[i]
            if i == n - c.DIST and nxt:
                wait_tags(e, ('dma_prev',))
                e.e('s_barrier')
            if hook and i == hook[0]: hook[1]()
            j = i + c.DIST
            rd = []
            if j < n: rd = p3_areads(c.V_RD, seq[j][0], seq[j][1], j % c.NSLOT)
            elif nxt: rd = p3_areads(c.V_RD + 1, seq[j - n][0], seq[j - n][1], j % c.NSLOT)
            a = c.AF + 4 * (i % c.NSLOT)
            g = None
            for th in range(2):
                d = c.ACC + 4 * (th * 9 + cb); b = bb + 8 * ks + 4 * th
                cc = '0' if (first and ks == 0) else f'v[{d}:{d+3}]'
                e.e(f'v_mfma_f32_16x16x32_bf16 v[{d}:{d+3}], v[{a}:{a+3}], a[{b}:{b+3}], {cc}')
                if th == 0:
                    if fl and i % 3 == 1:
                        g = fl.pop(0)
                        for x in g[:-1]: e.e(x)
                    if rd: e.e(rd[0])
                else:
                    if rd: e.e(rd[1])
                    if g: e.e(g[-1], tag='dma'); g = None
                    if bl and i % 4 == 3:
                        for x in bl.pop(0): e.e(x)
        assert not fl and not bl
        e.e(f'v_mov_b32 v{c.V_RD}, v{c.V_RD+1}')
        e.e(f's_mov_b32 s{c.A}, s{c.R[0]}')
        for i in range(3): e.e(f's_mov_b32 s{c.R[i]}, s{c.R[i+1]}')
        e.e(f's_mov_b32 s{c.R[3]}, s{c.A}')
    def retag():
        e.vm_q = [(d, 'dma_prev' if t == 'dma' else t) for d, t in e.vm_q]
    adv = lambda: e.e(f's_add_u32 s{c.WOFF}, s{c.WOFF}, {128*1152}')
    for u in range(7):
        if u == 6:
            for x in poll_issue(e, F_O, p3_ids8(c.A), 8, 8): emit_item(e, x)
        retag()
        unit(32 * u, u == 0, p3_dma_unit(c.WD, c.V_DO, c.R[2]), p3_bload_groups(0, base=0) if u == 1 else [])
        adv()
    e.e(f's_lshl_b32 s{c.WOFF}, s{c.C2}, 3')
    e.e(f's_lshl_b32 s{c.A}, s{S_W}, 1')
    e.e(f's_add_u32 s{c.WOFF}, s{c.WOFF}, s{c.A}')
    e.e(f's_mul_i32 s{c.WOFF}, s{c.WOFF}, {18*1152}')
    retag()
    unit(32 * 7, False, p3_dma_unit(c.WO, c.V_D2, c.R[2]), [])
    e.e(f's_mul_i32 s{c.WOFF}, s{c.C2}, {144*1152}')
    e.e(f's_mul_i32 s{c.HB}, s{c.TT}, 36864')
    e.e(f's_lshl_b32 s{c.A}, s{c.C2}, 13')
    e.e(f's_add_u32 s{c.HB}, s{c.HB}, s{c.A}')
    e.e(f's_add_u32 s{c.HB}, s{c.HB}, {OF}')
    poll_check(e, 8, 8)
    retag()
    unit(0, False, p3_dma_unit(c.WO, c.V_DX, c.R[2]), p3_bload_groups(0, base=32))
    e.e(f's_mul_i32 s{c.HB}, s{c.TT}, 36864')
    e.e(f's_add_u32 s{c.A}, s{c.C2}, 32')
    e.e(f's_lshl_b32 s{c.A}, s{c.A}, 10')
    e.e(f's_add_u32 s{c.HB}, s{c.HB}, s{c.A}')
    e.e(f's_add_u32 s{c.HB}, s{c.HB}, {OF}')
    e.e('v_mov_b32 v12, 0x7ff00000')
    e.e('v_cmp_gt_u32 vcc, 32, v0')
    e.e(f'v_cndmask_b32 v12, v12, v{c.V_BO}, vcc')
    ext = [[f'buffer_load_dwordx4 a[{64+4*th}:{64+4*th+3}], v12, {WS}, s{c.HB} offen offset:{th*256}{SCL}'] for th in range(2)]
    retag()
    unit(32, False, [], ext)
    unit(64, False, [], [], nks=1, nxt=False)
    P.stamp('p3 k done'); P.stamp('rp3 k done', real=True)
    e.e(f's_mul_i32 s{c.A}, s{c.C2}, {64*36*1024}')
    e.e(f's_mul_i32 s{c.B}, s{c.TT}, {36*1024}')
    e.e(f's_add_u32 s{c.A}, s{c.A}, s{c.B}')
    e.e(f's_mul_i32 s{c.B}, s{c.CQ}, {9*1024}')
    e.e(f's_add_u32 s{c.A}, s{c.A}, s{c.B}')
    e.e(f's_add_u32 s{c.A}, s{c.A}, {PART}')
    for cb in range(9):
        pk = 32 + 4 * (cb % 6)
        for th in range(2):
            d = c.ACC + 4 * (th * 9 + cb)
            for r in range(2): e.e(f'v_cvt_pk_bf16_f32 v{pk+2*th+r}, v{d+2*r}, v{d+2*r+1}')
        if cb and cb % 4 == 0: e.e(f's_add_u32 s{c.A}, s{c.A}, 4096')
        e.e(f'buffer_store_dwordx4 v[{pk}:{pk+3}], v{V_L16}, {WS}, s{c.A} offen offset:{(cb%4)*1024}{SC}')
    e.wait_all()
    e.e('s_barrier')
    publish(e, F_PART)
    P.stamp('p3 done')

def emit_p4_pre(e):
    c = P3
    X, OUT = S_R0, S_R1
    make_srd(e, X, P_X, 2048 * 1152)
    make_srd(e, OUT, P_OUT, 2048 * 1152)
    TF, RO, PB = 50, 51, 52
    e.e(f's_lshl_b32 s{TF}, s{c.MT}, 2')
    e.e(f's_add_u32 s{TF}, s{TF}, s{c.C2}')
    e.e(f's_mul_i32 s{RO}, s{TF}, {32*1152}')
    e.e(f's_mul_i32 s{c.A}, s{c.CQ}, 288')
    e.e(f's_add_u32 s{RO}, s{RO}, s{c.A}')
    e.e(f's_mul_i32 s{PB}, s{TF}, {36*1024}')
    e.e(f's_mul_i32 s{c.A}, s{c.CQ}, {9*1024}')
    e.e(f's_add_u32 s{PB}, s{PB}, s{c.A}')
    e.e(f's_add_u32 s{PB}, s{PB}, {PART}')
    e.e('v_and_b32 v14, 15, v0')
    e.e('v_mul_u32_u24 v14, 1152, v14')
    e.e('v_lshrrev_b32 v15, 4, v0')
    e.e('v_lshl_add_u32 v16, v15, 3, v14')
    e.e('v_and_b32 v17, 1, v15')
    e.e(f'v_mul_u32_u24 v17, {16*1152}, v17')
    e.e('v_add_u32 v17, v17, v14')
    e.e('v_lshrrev_b32 v15, 1, v15')
    e.e('v_lshl_add_u32 v17, v15, 4, v17')
    for k in range(3):
        e.e(f's_add_u32 s{53+k}, s{S_W}, {4*k}')
        e.e(f's_cmp_lt_u32 s{53+k}, 9')
        e.e(f's_cselect_b32 s{56+k+10}, 0, 0x70000000')
        e.e(f's_lshl_b32 s{c.A}, s{53+k}, 5')
        e.e(f's_add_u32 s{c.A}, s{c.A}, s{RO}')
        e.e(f's_add_u32 s{c.A}, s{c.A}, s{66+k}')
        e.e(f'v_add_u32 v{8+k}, s{c.A}, v16')
        e.e(f'v_add_u32 v{11+k}, s{c.A}, v17')
        e.e(f's_lshl_b32 s{53+k}, s{53+k}, 10')
        e.e(f's_add_u32 s{53+k}, s{53+k}, s{PB}')
        e.e(f's_add_u32 s{53+k}, s{53+k}, s{66+k}')
    for k in range(3):
        e.e(f'buffer_load_dwordx2 v[{20+4*k}:{21+4*k}], v{8+k}, s[{X}:{X+3}], 0 offen')
        e.e(f's_mov_b32 s{c.A}, {16*1152}')
        e.e(f'buffer_load_dwordx2 v[{22+4*k}:{23+4*k}], v{8+k}, s[{X}:{X+3}], s{c.A} offen')

def emit_p4(e, P):
    c = P3
    OUT = S_R1
    ids = ['v_and_b32 v3, 3, v0', 'v_lshlrev_b32 v3, 1, v3', f's_and_b32 s{c.A}, s2, 0xf9', f'v_add_u32 v3, s{c.A}, v3']
    poll_ids(e, F_PART, ids, 4)
    P.stamp('p4 polled')
    PR = 64
    for k in range(3):
        for cc in range(4):
            r = PR + (k * 4 + cc) * 4
            e.e(f'buffer_load_dwordx4 v[{r}:{r+3}], v{V_L16}, {WS}, s{53+k} offen{SCL}')
            if cc < 3: e.e(f's_add_u32 s{53+k}, s{53+k}, {64*36*1024}')
    for k in range(3):
        A = 128 + 16 * k; Tm = A + 8
        for i in range(4):
            e.e(f'v_lshlrev_b32 v{A+2*i}, 16, v{20+4*k+i}')
            e.e(f'v_and_b32 v{A+2*i+1}, 0xffff0000, v{20+4*k+i}')
        for cc in range(4):
            r = PR + (k * 4 + cc) * 4
            for i in range(4):
                e.e(f'v_lshlrev_b32 v{Tm+2*i}, 16, v{r+i}')
                e.e(f'v_and_b32 v{Tm+2*i+1}, 0xffff0000, v{r+i}')
            for i in range(8): e.e(f'v_add_f32 v{A+i}, v{A+i}, v{Tm+i}')
        D = 40 + 4 * k
        for i in range(4): e.e(f'v_cvt_pk_bf16_f32 v{D+i}, v{A+2*i}, v{A+2*i+1}')
        e.e(f'v_permlane16_swap_b32 v{D}, v{D+2}')
        e.e(f'v_permlane16_swap_b32 v{D+1}, v{D+3}')
        e.e(f'buffer_store_dwordx4 v[{D}:{D+3}], v{11+k}, s[{OUT}:{OUT+3}], 0 offen')
    P.stamp('p4 stores issued')

class Diag:
    n = 0
    @staticmethod
    def stamp(e):
        if DIAG:
            e.out.append(Ins(f's_memrealtime s[{70+2*Diag.n}:{71+2*Diag.n}]')); Diag.n += 1

def gen_mega(prof=False):
    e = Emitter()
    header(e, NAME)
    P = Prof2(e, prof)
    if DIAG:
        class PD:
            names = []
            def stamp(self, name, real=False, hold=False):
                if real: Diag.stamp(e)
            def dump(self, *a, **k): pass
        P = PD()
    P.stamp('start', hold=True); P.stamp('rstart', real=True, hold=True)
    emit_start(e, P)
    l1 = e.newlabel('w23'); l2 = e.newlabel('join'); l4 = e.newlabel('w3')
    e.e(f's_cmp_ge_u32 s{S_W}, 2')
    e.e(f's_cbranch_scc1 {l1}')
    emit_ln(e, P)
    p1_setup(e)
    e.e(f's_branch {l2}')
    e.label(l1)
    e.vm_q = []; e.lds_q = []
    e.e(f's_cmp_eq_u32 s{S_W}, 2')
    e.e(f's_cbranch_scc0 {l4}')
    p1_setup(e)
    p1_dma_first(e, 0, 0, 0, 14)
    e.e(f's_branch {l2}')
    e.label(l4)
    e.vm_q = []; e.lds_q = []
    emit_nonce(e)
    p1_setup(e)
    e.label(l2)
    e.vm_q = []; e.lds_q = []
    pass
    e.e('s_barrier')
    pass
    read_nonce(e)
    l3 = e.newlabel('lnp')
    e.e(f's_cmp_lg_u32 s{S_W}, 0')
    e.e(f's_cbranch_scc1 {l3}')
    emit_ln_store(e)
    e.wait_vm0()
    pass
    publish(e, F_LN)
    e.e('v_and_b32 v3, 31, v0')
    e.e(f's_lshl_b32 s{T[0]}, s{S_MI}, 5')
    e.e(f'v_add_u32 v3, s{T[0]}, v3')
    poll(e, F_LN, 3, 32)
    l6 = e.newlabel('lnq'); l7 = e.newlabel('lnw3')
    e.e(f's_branch {l6}')
    e.label(l3)
    e.vm_q = []; e.lds_q = []
    l9 = e.newlabel('lnw1')
    e.e(f's_cmp_eq_u32 s{S_W}, 1')
    e.e(f's_cbranch_scc1 {l9}')
    l8 = e.newlabel('lnw2')
    e.e(f's_cmp_eq_u32 s{S_W}, 2')
    e.e(f's_cbranch_scc1 {l8}')
    p1_dma_first(e, P1.BUF1, 64, 0, 36)
    e.e(f's_branch {l6}')
    e.label(l8)
    p1_dma_first(e, 0, 0, 14, 36)
    e.e(f's_branch {l6}')
    e.label(l9)
    e.vm_q = []; e.lds_q = []
    p3_lane_setup(e)
    e.label(l7)
    e.label(l6)

    pass
    e.raw('    s_waitcnt vmcnt(0)'); e.vm_q = []
    pass
    e.e('s_barrier')
    P.stamp('ln synced'); P.stamp('rln synced', real=True)
    emit_p1(e, P)
    emit_p2(e, P)
    emit_p3(e, P, False)
    emit_p4_pre(e)
    emit_p4(e, P)
    if DIAG:
        e.e('s_waitcnt vmcnt(0)')
        Diag.stamp(e)
        e.e('s_waitcnt lgkmcnt(0)'); e.lds_q = []
        lab = e.newlabel('diag')
        e.e('s_cmp_lg_u32 s2, 37'); e.e(f's_cbranch_scc1 {lab}')
        e.e(f's_cmp_lg_u32 s{S_W}, 0'); e.e(f's_cbranch_scc1 {lab}')
        make_srd(e, S_R2, P_DBG, 256)
        e.e('v_mov_b32 v6, 0'); e.e('s_mov_b64 exec, 1')
        for k in range(1, Diag.n):
            e.e(f's_sub_u32 s69, s{70+2*k}, s70'); e.e('v_mov_b32 v4, s69')
            e.e(f'buffer_store_dword v4, v6, s[{S_R2}:{S_R2+3}], 0 offen offset:{8+4*(k-1)}')
        e.e(f's_sub_u32 s69, s70, s{S_NONCE}'); e.e('v_mov_b32 v4, s69')
        e.e(f'buffer_store_dword v4, v6, s[{S_R2}:{S_R2+3}], 0 offen offset:{8+4*(Diag.n-1)}')
        e.e('s_waitcnt vmcnt(0)')
        e.label(lab)
    if prof:
        e.e('s_waitcnt vmcnt(0)')
        P.stamp('done'); P.stamp('rend', real=True)
        P.dump(P_WS, S_W)
    e.e('s_endpgm')
    emit_p2_slow(e)
    emit_slow_polls(e)
    e.label(f'{NAME}_end')
    e.e('s_endpgm')
    print(f'mega: {len(e.out)} lines, nops {e.nops}, waits {e.waits}')
    return e.text(), descriptor(NAME, 256, 256, ns=102), dict(name=NAME, grid=256, block=256, lds=LDS_TOTAL, prof=P.names)

if __name__ == '__main__':
    import sys, json
    from build import HEAD
    from asmlib import build
    prof = 'prof' in sys.argv
    if 'plainld' in sys.argv: SCL = ''
    if 'diag' in sys.argv: DIAG = True
    for a in sys.argv:
        if a.startswith('ao='): ATT_ORDER = int(a[3:])
        if a.startswith('scx='): SCX = ' ' + a[4:].replace('_', ' ')
    t, d, i = gen_mega(prof)
    s = HEAD + f"; @launch grid=({i['grid']},1,1) block=({i['block']},1,1) lds={i['lds']}\n"
    s += '.amdgcn_target "amdgcn-amd-amdhsa--gfx950"\n.text\n' + t + '.section .rodata,"a"\n' + d
    open('mega.s', 'w').write(s)
    build(s, NAME, 'mega.co')
    json.dump({NAME: i['prof']}, open('mega.json', 'w'))
    print('built', len(s))
```

```python
from kcommon import *

NAME = 'parallel_sum__softmax_full_mha__swiglu_ffn__prompt_kernel'
P_X, P_WQKV, P_WO, P_BX, P_WG, P_WU, P_WD, P_OUT, P_DBG, P_WS = 4, 6, 8, 10, 12, 14, 16, 18, 20, 22
S_WS, S_R0, S_R1, S_R2 = 24, 28, 32, 36
S_MI, S_J, S_W, S_C = 40, 41, 42, 43
S_NONCE = 44
T = list(range(46, 70))
WS = f's[{S_WS}:{S_WS+3}]'
F_LN, F_KV, F_H, F_O, F_PART = 0, 1, 2, 3, 4
LDS_TOTAL = 163840
L_MISC = 163840 - 256
V_L16 = 2
S_SPIN = 69
S_LM = 76
SPIN_MAX = 400000
SCL = ' sc1'
SCX = ' sc1'
SCO = ''
SC = ' sc1'

def publish(e, phase):
    lab = e.newlabel('pub')
    e.e(f's_cmp_lg_u32 s{S_W}, 0')
    e.e(f's_cbranch_scc1 {lab}')
    e.e(f's_lshl_b32 s49, s2, 7')
    e.e(f's_add_u32 s49, s49, {FLAGS + 8*phase}')
    e.e(f'v_mov_b32 v4, s{S_NONCE}')
    e.e(f'v_mov_b32 v5, s{S_NONCE+1}')
    e.e('v_mov_b32 v6, 0')
    e.e('s_mov_b64 exec, 1')
    e.e(f'buffer_store_dwordx2 v[4:5], v6, {WS}, s49 offen sc1')
    e.e('s_mov_b64 exec, -1')
    e.label(lab)

def poll(e, phase, vid, nlanes, vt=4):
    lab = e.newlabel('poll'); ok = e.newlabel('pollok')
    e.e(f'v_lshlrev_b32 v{vt+2}, 7, v{vid}')
    e.e(f'v_add_u32 v{vt+2}, {FLAGS + 8*phase}, v{vt+2}')
    e.e(f's_mov_b64 exec, {hex((1 << nlanes) - 1)}' if nlanes > 32 or nlanes == 32 else f's_mov_b64 exec, {(1 << nlanes) - 1}')
    e.e(f's_mov_b32 s{S_SPIN}, {SPIN_MAX}')
    e.label(lab)
    e.raw(f'    s_sub_u32 s{S_SPIN}, s{S_SPIN}, 1')
    e.raw(f'    s_cbranch_scc1 {ok}')
    e.raw(f'    buffer_load_dwordx2 v[{vt}:{vt+1}], v{vt+2}, {WS}, 0 offen sc1')
    e.raw('    s_waitcnt vmcnt(0)')
    e.raw(f'    v_cmp_ne_u32 vcc, s{S_NONCE}, v{vt}')
    e.raw(f'    v_cmp_ne_u32 s[{T[1]+ (T[1] & 1)}:{T[1]+(T[1]&1)+1}], s{S_NONCE+1}, v{vt+1}')
    e.raw('    s_nop 4')
    e.raw(f'    s_or_b64 vcc, vcc, s[{T[1]+(T[1]&1)}:{T[1]+(T[1]&1)+1}]')
    e.raw('    s_nop 4')
    e.raw(f'    s_cbranch_vccz {ok}')
    e.raw('    s_sleep 1')
    e.raw(f'    s_branch {lab}')
    e.label(ok)
    e.e('s_mov_b64 exec, -1')
    e.vm_q = []

SLOW_POLLS = []
def poll_issue(e, phase, idexpr, n, vt):
    out = list(idexpr)
    out += [f'v_lshlrev_b32 v{vt+2}, 7, v3', f'v_add_u32 v{vt+2}, {FLAGS + 8*phase}, v{vt+2}',
            f's_mov_b64 exec, {(1 << n) - 1}', (f'buffer_load_dwordx2 v[{vt}:{vt+1}], v{vt+2}, {WS}, 0 offen sc1', 'poll'), 's_mov_b64 exec, -1']
    return out
def poll_check(e, n, vt):
    slow = e.newlabel('pslow'); back = e.newlabel('pback')
    pr = 48
    wait_tags(e, ('poll',))
    e.e(f's_mov_b64 exec, {(1 << n) - 1}')
    e.e(f'v_cmp_ne_u32 vcc, s{S_NONCE}, v{vt}')
    e.e(f'v_cmp_ne_u32 s[{pr}:{pr+1}], s{S_NONCE+1}, v{vt+1}')
    e.e(f's_or_b64 vcc, vcc, s[{pr}:{pr+1}]')
    e.e(f's_cbranch_vccnz {slow}')
    e.label(back)
    e.e('s_mov_b64 exec, -1')
    SLOW_POLLS.append((slow, back, vt))
def emit_slow_polls(e):
    for slow, back, vt in SLOW_POLLS:
        lp = e.newlabel('psl')
        e.label(slow)
        e.raw(f'    s_mov_b32 s{S_SPIN}, {SPIN_MAX}')
        e.label(lp)
        e.raw(f'    s_sub_u32 s{S_SPIN}, s{S_SPIN}, 1')
        e.raw(f'    s_cbranch_scc1 {back}')
        e.raw('    s_sleep 1')
        e.raw(f'    buffer_load_dwordx2 v[{vt}:{vt+1}], v{vt+2}, {WS}, 0 offen sc1')
        e.raw('    s_waitcnt vmcnt(0)')
        e.raw(f'    v_cmp_ne_u32 vcc, s{S_NONCE}, v{vt}')
        e.raw(f'    v_cmp_ne_u32 s[48:49], s{S_NONCE+1}, v{vt+1}')
        e.raw('    s_nop 4')
        e.raw('    s_or_b64 vcc, vcc, s[48:49]')
        e.raw('    s_nop 4')
        e.raw(f'    s_cbranch_vccnz {lp}')
        e.raw(f'    s_branch {back}')

def emit_start(e, P):
    e.e('s_cmp_ge_u32 s2, 256')
    e.e(f's_cbranch_scc1 {NAME}_end')
    e.e('s_load_dwordx16 s[4:19], s[0:1], 0')
    e.e('s_load_dwordx4 s[20:23], s[0:1], 64')
    e.e('v_lshrrev_b32 v1, 6, v0')
    e.e('v_and_b32 v0, 63, v0')
    e.e(f'v_readfirstlane_b32 s{S_W}, v1')
    e.e(f's_and_b32 s{S_C}, s2, 7')
    e.e(f's_and_b32 s{T[0]}, s2, 1')
    e.e(f's_lshl_b32 s{T[0]}, s{T[0]}, 2')
    e.e(f's_bfe_u32 s{T[1]}, s2, 0x20003')
    e.e(f's_add_u32 s{S_MI}, s{T[0]}, s{T[1]}')
    e.e(f's_bfe_u32 s{T[0]}, s2, 0x20001')
    e.e(f's_lshl_b32 s{T[0]}, s{T[0]}, 3')
    e.e(f's_lshr_b32 s{T[1]}, s2, 5')
    e.e(f's_add_u32 s{S_J}, s{T[0]}, s{T[1]}')
    e.e(f'v_lshlrev_b32 v{V_L16}, 4, v0')
    e.wait_lgkm0()
    make_srd(e, S_WS, P_WS, WS_USED)

L_XN = 73728
def emit_ln(e, P):
    make_srd(e, S_R2, P_X, 2048 * 1152)
    e.e('v_lshrrev_b32 v3, 4, v0')
    e.e('v_and_b32 v6, 15, v0')
    e.e(f's_lshl_b32 s{T[0]}, s2, 3')
    e.e(f's_lshl_b32 s{T[1]}, s{S_W}, 2')
    e.e(f's_add_u32 s{T[0]}, s{T[0]}, s{T[1]}')
    e.e(f'v_add_u32 v4, s{T[0]}, v3')
    e.e('v_mul_u32_u24 v4, 1152, v4')
    e.e('v_lshl_add_u32 v4, v6, 3, v4')
    for i in range(9):
        e.e(f'buffer_load_dwordx2 v[{8+2*i}:{9+2*i}], v4, s[{S_R2}:{S_R2+3}], 0 offen offset:{128*i}')
    e.e(f'v_add_u32 v3, s{T[1]}, v3')
    e.e('v_lshrrev_b32 v5, 1, v6')
    e.e('v_lshl_add_u32 v5, v5, 3, v3')
    e.e('v_lshlrev_b32 v5, 4, v5')
    e.e('v_and_b32 v6, 1, v6')
    e.e('v_lshl_add_u32 v5, v6, 3, v5')
    e.e(f'v_add_u32 v5, {L_XN}, v5')
    e.e(f's_mov_b32 s{T[0]}, 0x3f803f80')
    e.e('v_mov_b32 v30, 0'); e.e('v_mov_b32 v31, 0'); e.e('v_mov_b32 v32, 0'); e.e('v_mov_b32 v33, 0')
    for i in range(18):
        e.e(f'v_dot2_f32_bf16 v{30+(i&1)}, v{8+i}, s{T[0]}, v{30+(i&1)}')
        e.e(f'v_dot2_f32_bf16 v{32+(i&1)}, v{8+i}, v{8+i}, v{32+(i&1)}')
    pass
    e.e('v_add_f32 v30, v30, v31'); e.e('v_add_f32 v32, v32, v33')
    for m in ('quad_perm:[1,0,3,2]', 'quad_perm:[2,3,0,1]', 'row_half_mirror', 'row_mirror'):
        e.e(f'v_add_f32_dpp v30, v30, v30 {m} row_mask:0xf bank_mask:0xf')
        e.e(f'v_add_f32_dpp v32, v32, v32 {m} row_mask:0xf bank_mask:0xf')
    e.e(f'v_mul_f32 v30, {fh(1.0/576)}, v30')
    e.e(f'v_mul_f32 v32, {fh(1.0/576)}, v32')
    e.e('v_fma_f32 v32, -v30, v30, v32')
    e.e('v_max_f32 v32, 0, v32')
    e.e(f'v_add_f32 v32, {fh(1e-5)}, v32')
    e.e('v_rsq_f32 v32, v32')
    e.e('v_mul_f32 v30, v30, v32')
    for i in range(18):
        e.e(f'v_lshlrev_b32 v34, 16, v{8+i}')
        e.e(f'v_and_b32 v35, 0xffff0000, v{8+i}')
        e.e('v_fma_f32 v34, v34, v32, -v30')
        e.e('v_fma_f32 v35, v35, v32, -v30')
        e.e(f'v_cvt_pk_bf16_f32 v{8+i}, v34, v35')
    for i in range(9):
        e.e(f'ds_write_b64 v5, v[{8+2*i}:{9+2*i}] offset:{1024*i}')
    e.e(f'v_mov_b32 v6, {L_MISC}'); e.e('v_mov_b32 v8, 0'); e.e('v_mov_b32 v9, 0')
    e.e('ds_write_b64 v6, v[8:9]')
    e.wait_lgkm0()

def emit_ln_store(e):
    e.e(f'v_add_u32 v5, {L_XN}, v{V_L16}')
    for i in range(9): e.e(f'ds_read_b128 v[{8+4*i}:{11+4*i}], v5 offset:{1024*i}')
    e.e(f's_lshr_b32 s{T[0]}, s2, 2')
    e.e(f's_mul_i32 s{T[0]}, s{T[0]}, 36864')
    e.e(f's_and_b32 s{T[1]}, s2, 3')
    e.e(f's_lshl_b32 s{T[1]}, s{T[1]}, 7')
    e.e(f's_add_u32 s{T[0]}, s{T[0]}, s{T[1]}')
    e.e('v_lshrrev_b32 v3, 4, v0')
    e.e('v_lshlrev_b32 v3, 10, v3')
    e.e('v_bfe_u32 v4, v0, 3, 1')
    e.e('v_lshl_add_u32 v3, v4, 9, v3')
    e.e('v_and_b32 v4, 7, v0')
    e.e('v_lshl_add_u32 v3, v4, 4, v3')
    e.e(f'v_add_u32 v3, s{T[0]}, v3')
    for i in range(9):
        e.e(f's_mov_b32 s{T[0]}, {XNF + 4096*i}')
        e.e(f'buffer_store_dwordx4 v[{8+4*i}:{11+4*i}], v3, {WS}, s{T[0]} offen{SCX}')

def emit_nonce_write(e):
    make_srd(e, S_R2, P_DBG, 256)
    DB = f's[{S_R2}:{S_R2+3}]'
    lab = e.newlabel('nn')
    e.e('s_cmp_lg_u32 s2, 0')
    e.e(f's_cbranch_scc1 {lab}')
    e.e('v_mov_b32 v6, 0')
    e.e(f's_memrealtime s[{S_NONCE}:{S_NONCE+1}]')
    e.e('s_waitcnt lgkmcnt(0)'); e.lds_q = []
    e.e(f's_or_b32 s{S_NONCE}, s{S_NONCE}, 1')
    e.e(f'v_mov_b32 v4, s{S_NONCE}')
    e.e(f'v_mov_b32 v5, s{S_NONCE+1}')
    e.e('s_mov_b64 exec, 1')
    e.e(f'buffer_store_dwordx2 v[4:5], v6, {DB}, 0 offen sc1')
    e.e('s_mov_b64 exec, -1')
    e.label(lab)

def emit_nonce_poll(e):
    make_srd(e, S_R2, P_DBG, 256)
    DB = f's[{S_R2}:{S_R2+3}]'
    pl = e.newlabel('npoll'); ok = e.newlabel('nok')
    e.e('v_mov_b32 v6, 0')
    e.e(f's_mov_b32 s{S_SPIN}, {SPIN_MAX}')
    e.label(pl)
    e.raw('    s_waitcnt vmcnt(0)')
    e.raw('    v_cmp_eq_u32 vcc, 0, v4')
    e.raw('    s_nop 4')
    e.raw(f'    s_cbranch_vccz {ok}')
    e.raw(f'    s_sub_u32 s{S_SPIN}, s{S_SPIN}, 1')
    e.raw(f'    s_cbranch_scc1 {ok}')
    e.raw(f'    buffer_load_dwordx2 v[4:5], v6, {DB}, 0 offen sc1')
    e.raw(f'    s_branch {pl}')
    e.label(ok)
    e.vm_q = []
    e.e(f'v_mov_b32 v6, {L_MISC}')
    e.e('ds_write_b64 v6, v[4:5]')
    e.wait_lgkm0()

def p1_setup_wu(e):
    make_srd(e, P1.WU, P_WU, 576 * 9216)

def read_nonce(e):
    e.e(f'v_mov_b32 v6, {L_MISC}')
    e.e('ds_read_b64 v[4:5], v6')
    e.e(f'v_readfirstlane_b32 s{S_NONCE}, v4')
    e.e(f'v_readfirstlane_b32 s{S_NONCE+1}, v5')

class P1:
    TMP, TMP2 = 46, 47
    T0, DM0, DOFF, DML, BUF, U, HST0, HST1, KG, NL2E, QS, COL, COL5, KG5, E = range(50, 65)
    WQ, WG, WU = S_R0, S_R1, S_R2
    V_DG, V_DU, V_DA, V_DB, V_BA, V_BB, V_BG0, V_BG1, V_RD0, V_RD1, V_SC, V_BI, V_VST, V_QXST, V_BAH, V_BBH = range(208, 224)
    V_RD2 = 3
    WF = 40; WFB = 52
    ACC = [64, 96, 176, 8]
    WFC = 8
    VT = 128
    XT1 = 224
    MAT1 = 36864
    BUF1 = 83968
    PQ = 144

def xfrag(t, s):
    if t == 0: return f'a[{4*s}:{4*s+3}]'
    if s < 28: return f'a[{144+4*s}:{144+4*s+3}]'
    return f'v[{P1.XT1+4*(s-28)}:{P1.XT1+4*(s-28)+3}]'

def p1_reads(vrd, s, base=P1.WF, ks=1024, off2=256):
    b = base + 4 * (s % 3)
    if ks != 1024 and s >= 18:
        vrd = P1.V_BAH if vrd == P1.V_RD0 else P1.V_BBH
        return [f'ds_read_b64_tr_b16 v[{b}:{b+1}], v{vrd} offset:{(s-18)*ks}',
                f'ds_read_b64_tr_b16 v[{b+2}:{b+3}], v{vrd} offset:{(s-18)*ks+off2}']
    return [f'ds_read_b64_tr_b16 v[{b}:{b+1}], v{vrd} offset:{s*ks}',
            f'ds_read_b64_tr_b16 v[{b+2}:{b+3}], v{vrd} offset:{s*ks+off2}']

def epi_gu(acc):
    c = P1; out = []
    for t in range(2):
        G = acc + 16 * t; U = G + 8
        Tt = c.VT + 24 * t; Pp = Tt + 8; O = Tt + 16
        for r in range(8): out.append(f'v_mul_f32 v{Tt+r}, s{c.NL2E}, v{G+r}')
        for r in range(8): out.append(f'v_exp_f32 v{Tt+r}, v{Tt+r}')
        for r in range(8): out.append(f'v_mul_f32 v{Pp+r}, v{G+r}, v{U+r}')
        for r in range(8): out.append(f'v_add_f32 v{Tt+r}, 1.0, v{Tt+r}')
        for r in range(8): out.append(f'v_rcp_f32 v{Tt+r}, v{Tt+r}')
        tm = c.TMP if t == 0 else c.TMP2
        out.append(f's_lshl_b32 s{tm}, s{c.KG}, 10')
        out.append(f's_add_u32 s{tm}, s{tm}, s{c.HST0 if t == 0 else c.HST1}')
        for r in range(8): out.append(f'v_mul_f32 v{Pp+r}, v{Pp+r}, v{Tt+r}')
        for r in range(4): out.append(f'v_cvt_pk_bf16_f32 v{O+r}, v{Pp+2*r}, v{Pp+2*r+1}')
        out.append(f'buffer_store_dwordx4 v[{O}:{O+3}], v{V_L16}, {WS}, s{tm} offen{SC}')
    return out

def epi_a(acc):
    c = P1; out = []
    for t in range(2):
        Q = acc + 16 * t; Kk = Q + 8
        Tt = c.VT + 24 * t; O = Tt + 8; O2 = Tt + 12
        for r in range(8): out.append(f'v_mul_f32 v{Tt+r}, s{c.QS}, v{Q+r}')
        for r in range(4): out.append(f'v_cvt_pk_bf16_f32 v{O2+r}, v{Kk+2*r}, v{Kk+2*r+1}')
        for r in range(4): out.append(f'v_cvt_pk_bf16_f32 v{O+r}, v{Tt+2*r}, v{Tt+2*r+1}')
        out.append(f's_lshl_b32 s{c.TMP}, s{S_J}, 6')
        out.append(f's_add_u32 s{c.TMP}, s{c.TMP}, s{c.T0}')
        if t: out.append(f's_add_u32 s{c.TMP}, s{c.TMP}, 1')
        out.append(f's_lshl_b32 s{c.TMP}, s{c.TMP}, 10')
        out.append(f's_add_u32 s{c.TMP2}, s{c.TMP}, {KF}')
        out.append(f's_add_u32 s{c.TMP}, s{c.TMP}, {QF}')
        out.append((f'buffer_store_dwordx4 v[{O2}:{O2+3}], v{V_L16}, {WS}, s{c.TMP2} offen{SC}', 'kv'))
        out.append((f'buffer_store_dwordx4 v[{O}:{O+3}], v{V_L16}, {WS}, s{c.TMP} offen{SC}', 'kv'))
    return out

def epi_b(acc, t):
    c = P1; out = []
    A = acc + 16 * t
    X = c.VT; Y = c.VT + 16; O = c.VT + 32
    for r in range(16): out.append(f'v_fma_f32 v{X+r}, v{A+r}, v{c.V_SC}, v{c.V_BI}')
    for r in range(8): out.append(f'v_cvt_pk_bf16_f32 v{O+r}, v{X+2*r}, v{X+2*r+1}')
    out.append(f's_mul_i32 s{c.TMP}, s{S_J}, {VF_HEAD}')
    out.append(f's_add_u32 s{c.TMP2}, s{c.T0}, {t}')
    out.append(f's_mul_i32 s{c.TMP2}, s{c.TMP2}, {2*VF_G}')
    out.append(f's_add_u32 s{c.TMP}, s{c.TMP}, s{c.TMP2}')
    out.append(f's_add_u32 s{c.TMP}, s{c.TMP}, {VF}')
    out.append((f'buffer_store_dwordx4 v[{O}:{O+3}], v{c.V_VST}, {WS}, s{c.TMP} offen{SC}', 'kv'))
    out.append((f'buffer_store_dwordx4 v[{O+4}:{O+7}], v{c.V_VST}, {WS}, s{c.TMP} offen offset:{VF_G}{SC}', 'kv'))
    for r in range(16): out.append(f'v_mov_b32_dpp v{Y+r}, v{X+r} row_shl:1 row_mask:0xf bank_mask:0xf bound_ctrl:0')
    for r in range(16): out.append(f'v_cvt_pk_bf16_f32 v{Y+r}, v{X+r}, v{Y+r}')
    out.append(f's_lshl_b32 s{c.TMP}, s{S_J}, 13')
    out.append(f's_add_u32 s{c.TMP2}, s{c.T0}, {t}')
    out.append(f's_lshl_b32 s{c.TMP2}, s{c.TMP2}, 7')
    out.append(f's_add_u32 s{c.TMP}, s{c.TMP}, s{c.TMP2}')
    for g in range(4):
        out.append((f'buffer_store_dwordx4 v[{Y+4*g}:{Y+4*g+3}], v{c.V_QXST}, {WS}, s{c.TMP} offen offset:{32*g}{SC}', 'kv'))
    return out

def dma_gu():
    c = P1; out = []
    for i in range(9):
        for m, (srd, vo) in enumerate(((c.WG, c.V_DG), (c.WU, c.V_DU))):
            g = []
            if i == 0 and m == 0:
                g.append(f's_mul_i32 s{c.DOFF}, s{S_W}, {16*9216}')
                g.append(f's_add_u32 s{c.DOFF}, s{c.DOFF}, s{c.COL}')
                g.append(f's_mov_b32 s{c.DML}, s{c.DM0}')
            elif m == 0:
                g.append(f's_add_u32 s{c.DOFF}, s{c.DOFF}, {4*16*9216}')
                g.append(f's_add_u32 s{c.DML}, s{c.DML}, 4096')
            g.append(f's_add_u32 m0, s{c.DML}, {m*c.MAT1}')
            g.append(f'buffer_load_dwordx4 v{vo}, s[{srd}:{srd+3}], s{c.DOFF} offen lds')
            out.append(g)
    return out

def emit_item(e, x):
    if isinstance(x, tuple) and x[0] == 'RAW':
        e.out.append(Ins(x[1])); e.vm_q.append((set(), 'warm'))
    elif isinstance(x, tuple): e.e(x[0], tag=x[1])
    else: e.e(x)

def emit_dma(e, x):
    if isinstance(x, tuple) and x[0] == 'X63':
        e.e('s_mov_b32 exec_hi, 0x7fffffff'); e.e(x[1]); e.e('s_mov_b32 exec_hi, -1')
    else: e.e(x)

class Filler:
    def __init__(self, e, fillers, ngaps, first_gap=3, dma=(), dma_start=0, dma_stride=6):
        self.e = e; self.fl = list(fillers); self.dma = list(dma); self.gap = 0
        self.first = first_gap; self.ds = dma_start; self.st = dma_stride
        self.n0 = len(self.fl)
        self.slots = max(1, ngaps - first_gap - 2 - len(self.dma))
        self.used = 0
        self.pend = []
    def pre(self):
        g = self.gap + 1
        if self.dma and g > self.ds and (g - self.ds - 1) % self.st == 0:
            grp = self.dma.pop(0)
            for x in grp[:-1]: self.e.e(x)
            self.pend.append(grp[-1])
    def post(self):
        self.gap += 1
        if getattr(self, 'hook', None) and self.gap == self.hook[0]: self.hook[1]()
        if self.pend:
            emit_dma(self.e, self.pend.pop(0)); return
        if self.gap > self.first:
            self.used += 1
            target = -(-self.n0 * self.used // self.slots)
            while self.fl and self.n0 - len(self.fl) < target: emit_item(self.e, self.fl.pop(0))
    def flush(self):
        while self.dma:
            grp = self.dma.pop(0)
            for x in grp[:-1]: self.e.e(x)
            emit_dma(self.e, grp[-1])
        while self.fl: emit_item(self.e, self.fl.pop(0))

def wait_tags(e, tags):
    idx = [i for i, (d, t) in enumerate(e.vm_q) if t in tags]
    if idx: e.wait(vm=len(e.vm_q) - 1 - max(idx))

def p1_tile(e, acc, vrd, nxt_vrd, switch, F, wait=('dma',), is_b=False, own_q=False, nxt_q=False):
    QG = (P1.WF, 16 * P1.PQ, 4 * P1.PQ); GG = (P1.WF, 1024, 256)
    own = QG if own_q else GG
    nx = QG if nxt_q else GG
    for s in range(36):
        if s == 35 and switch:
            F.flush()
            e.wait(lg=0)
            wait_tags(e, wait)
            e.e('s_barrier')
            for r in p1_reads(nxt_vrd, 0, *nx) + p1_reads(nxt_vrd, 1, *nx): e.e(r)
        rd = []
        if s + 2 < 36: rd = p1_reads(vrd, s + 2, *own)
        elif not switch and nxt_vrd is not None: rd = p1_reads(nxt_vrd, s + 2 - 36, *nx)
        w = P1.WF + 4 * (s % 3)
        for t in range(2):
            d = acc + 16 * t
            cc = '0' if s == 0 else f'v[{d}:{d+15}]'
            if is_b: e.e(f'v_mfma_f32_32x32x16_bf16 v[{d}:{d+15}], {xfrag(t, s)}, v[{w}:{w+3}], {cc}')
            else: e.e(f'v_mfma_f32_32x32x16_bf16 v[{d}:{d+15}], v[{w}:{w+3}], {xfrag(t, s)}, {cc}')
            F.pre()
            if rd: e.e(rd[t])
            F.post()
    F.flush()

def p1_setup(e, first=False):
    c = P1
    make_srd(e, c.WQ, P_WQKV, 576 * 3456)
    e.e(f's_and_b32 s{c.E}, s{S_J}, 1')
    e.e(f's_lshl_b32 s{c.T0}, s{S_MI}, 3')
    e.e(f's_lshl_b32 s{c.TMP}, s{S_W}, 1')
    e.e(f's_add_u32 s{c.T0}, s{c.T0}, s{c.TMP}')
    e.e(f's_mul_i32 s{c.TMP}, s{S_J}, 36')
    e.e(f's_mov_b32 s{c.TMP2}, {(2**32 + 8) // 9}')
    e.e(f'v_mul_hi_u32 v24, v0, s{c.TMP2}')
    e.e('v_mul_u32_u24 v25, 9, v24')
    e.e('v_sub_u32 v25, v0, v25')
    e.e('v_mul_u32_u24 v26, 86, v25')
    e.e('v_lshrrev_b32 v26, 8, v26')
    e.e('v_mul_u32_u24 v27, 3, v26')
    e.e('v_sub_u32 v27, v25, v27')
    e.e('v_mul_u32_u24 v24, 3456, v24')
    e.e('v_mul_u32_u24 v26, 1152, v26')
    e.e('v_lshl_add_u32 v24, v27, 4, v24')
    e.e(f'v_add3_u32 v{c.V_DA}, v24, v26, s{c.TMP}')
    make_srd(e, c.WG, P_WG, 576 * 9216)
    e.e(f's_mov_b32 s{c.NL2E}, {fh(-LOG2E)}')
    e.e(f's_mov_b32 s{c.QS}, {fh(QSCALE)}')
    e.e('v_lshrrev_b32 v24, 2, v0')
    e.e('v_and_b32 v25, 3, v0')
    e.e('v_mul_u32_u24 v26, 9216, v24')
    e.e(f'v_lshl_add_u32 v{c.V_DG}, v25, 4, v26')
    e.e('v_xor_b32 v27, 2, v25')
    e.e(f'v_lshl_add_u32 v{c.V_DU}, v27, 4, v26')
    e.e('v_lshrrev_b32 v24, 4, v0')
    e.e('v_bfe_u32 v25, v0, 2, 2')
    e.e('v_and_b32 v26, 3, v0')
    e.e('v_lshrrev_b32 v27, 1, v24')
    e.e('v_lshl_add_u32 v27, v27, 3, v25')
    e.e('v_and_b32 v28, 1, v24')
    e.e(f'v_mul_u32_u24 v29, {c.PQ}, v27')
    e.e('v_mul_u32_u24 v30, 48, v28')
    e.e('v_lshl_add_u32 v30, v26, 3, v30')
    e.e(f'v_add_u32 v{c.V_BA}, v29, v30')
    e.e('v_mov_b32 v30, 80')
    e.e('v_mov_b32 v31, 128')
    e.e('v_cmp_eq_u32 vcc, 0, v26')
    e.e('v_cndmask_b32 v30, v30, v31, vcc')
    e.e('v_mov_b32 v31, 32')
    e.e('v_cmp_eq_u32 vcc, 1, v26')
    e.e('v_cndmask_b32 v30, v30, v31, vcc')
    e.e('v_lshlrev_b32 v31, 3, v26')
    e.e('v_add_u32 v31, 96, v31')
    e.e('v_cmp_eq_u32 vcc, 1, v28')
    e.e('v_cndmask_b32 v30, v31, v30, vcc')
    e.e(f'v_add_u32 v{c.V_BB}, v29, v30')
    e.e(f'v_add_u32 v{c.V_BAH}, {18*16*c.PQ}, v{c.V_BA}')
    e.e(f'v_add_u32 v{c.V_BBH}, {18*16*c.PQ}, v{c.V_BB}')
    e.e('v_lshlrev_b32 v27, 6, v27')
    e.e('v_lshl_add_u32 v27, v26, 3, v27')
    e.e(f'v_mul_u32_u24 v29, {c.MAT1}, v28')
    e.e('v_add_u32 v29, v29, v27')
    e.e(f'v_lshl_add_u32 v{c.V_BG0}, v28, 5, v29')
    e.e(f'v_xor_b32 v{c.V_BG1}, 32, v{c.V_BG0}')
    e.e('v_and_b32 v24, 31, v0')
    e.e('v_lshrrev_b32 v25, 5, v0')
    e.e(f'v_mov_b32 v{c.V_SC}, 1.0')
    e.e(f'v_mov_b32 v26, s{c.QS}')
    e.e('v_and_b32 v27, 30, v24')
    e.e('v_cmp_eq_u32 vcc, 20, v27')
    e.e(f'v_cndmask_b32 v{c.V_SC}, v{c.V_SC}, v26, vcc')
    e.e('v_mov_b32 v26, 0')
    e.e('v_cmp_eq_u32 vcc, 18, v27')
    e.e(f'v_cndmask_b32 v{c.V_SC}, v{c.V_SC}, v26, vcc')
    e.e(f'v_mov_b32 v{c.V_BI}, 0')
    e.e('v_mov_b32 v26, 1.0')
    e.e('v_cmp_eq_u32 vcc, 18, v24')
    e.e(f'v_cndmask_b32 v{c.V_BI}, v{c.V_BI}, v26, vcc')
    e.e('v_mul_u32_u24 v26, 320, v25')
    e.e('v_lshl_add_u32 v26, v24, 4, v26')
    e.e(f'v_mov_b32 v{c.V_VST}, 0x7ff00000')
    e.e('v_cmp_ge_u32 vcc, 19, v24')
    e.e(f'v_cndmask_b32 v{c.V_VST}, v{c.V_VST}, v26, vcc')
    e.e('v_lshlrev_b32 v26, 4, v25')
    e.e(f'v_add_u32 v27, {QX}, v26')
    e.e(f'v_add_u32 v26, {KX}, v26')
    e.e(f'v_mov_b32 v{c.V_QXST}, 0x7ff00000')
    e.e('v_cmp_eq_u32 vcc, 20, v24')
    e.e(f'v_cndmask_b32 v{c.V_QXST}, v{c.V_QXST}, v27, vcc')
    e.e('v_cmp_eq_u32 vcc, 24, v24')
    e.e(f'v_cndmask_b32 v{c.V_QXST}, v{c.V_QXST}, v26, vcc')
    e.e(f's_mul_i32 s{c.COL}, s{S_J}, 288')
    e.e(f's_lshl_b32 s{c.TMP}, s{c.E}, 5')
    e.e(f's_add_u32 s{c.COL5}, s{c.COL}, 256')
    e.e(f's_sub_u32 s{c.TMP2}, s{c.COL}, 32')
    e.e(f's_cmp_eq_u32 s{c.E}, 0')
    e.e(f's_cselect_b32 s{c.COL5}, s{c.COL5}, s{c.TMP2}')
    e.e(f's_add_u32 s{c.COL}, s{c.COL}, s{c.TMP}')
    e.e(f's_mul_i32 s{c.KG}, s{S_J}, 9')
    e.e(f's_add_u32 s{c.KG5}, s{c.KG}, 8')
    e.e(f's_cmp_eq_u32 s{c.E}, 0')
    e.e(f's_cselect_b32 s{c.KG5}, s{c.KG5}, s{c.KG}')
    e.e(f's_add_u32 s{c.KG}, s{c.KG}, s{c.E}')
    e.e(f's_mul_i32 s{c.HST0}, s{c.T0}, {288*1024}')
    e.e(f's_add_u32 s{c.HST0}, s{c.HST0}, {HF}')
    e.e(f's_add_u32 s{c.HST1}, s{c.HST0}, {288*1024}')
    make_srd(e, c.WU, P_WU, 576 * 9216)

def p1_early(e, buf, dcol):
    c = P1
    make_srd(e, c.WG, P_WG, 576 * 9216)
    make_srd(e, c.WU, P_WU, 576 * 9216)
    e.e('v_lshrrev_b32 v24, 2, v0')
    e.e('v_and_b32 v25, 3, v0')
    e.e('v_mul_u32_u24 v26, 9216, v24')
    e.e(f'v_lshl_add_u32 v{c.V_DG}, v25, 4, v26')
    e.e('v_xor_b32 v27, 2, v25')
    e.e(f'v_lshl_add_u32 v{c.V_DU}, v27, 4, v26')
    e.e(f's_and_b32 s{c.E}, s{S_J}, 1')
    e.e(f's_mul_i32 s{c.COL}, s{S_J}, 288')
    e.e(f's_lshl_b32 s{c.TMP}, s{c.E}, 5')
    e.e(f's_add_u32 s{c.COL}, s{c.COL}, s{c.TMP}')
    p1_dma_first(e, buf, dcol, 0, 18)

def p1_dma_first(e, buf, dcol, i0=0, i1=36):
    c = P1
    for i in range(i0, i1):
        for m, (srd, vo) in enumerate(((c.WG, c.V_DG), (c.WU, c.V_DU))):
            e.e(f's_mov_b32 m0, {buf + m*c.MAT1 + i*1024}')
            if m == 0: e.e(f's_add_u32 s{c.DOFF}, s{c.COL}, {i*16*9216 + dcol}')
            else: e.e('s_nop 0')
            e.e(f'buffer_load_dwordx4 v{vo}, s[{srd}:{srd+3}], s{c.DOFF} offen lds')

def dma_late_groups():
    c = P1; out = []
    combos = [(u, m) for u in range(2) for m in range(2)]
    for q in range(18):
        g = []
        if q == 0:
            g += [f's_lshr_b32 s48, s{S_W}, 1', f's_mul_i32 s{c.DML}, s48, {c.BUF1}', f's_lshl_b32 s48, s48, 6',
                  f's_add_u32 s{c.DOFF}, s{c.COL}, s48', f's_add_u32 s{c.DOFF}, s{c.DOFF}, {18*16*9216}',
                  f's_and_b32 s48, s{S_W}, 1', f's_mul_i32 s48, s48, {c.MAT1}', f's_add_u32 s{c.DML}, s{c.DML}, s48', f's_add_u32 s{c.DML}, s{c.DML}, {18*1024}',
                  f's_bitcmp1_b32 s{S_W}, 0',
                  f's_cselect_b32 s{S_LM}, s{c.WU}, s{c.WG}', f's_cselect_b32 s{S_LM+1}, s{c.WU+1}, s{c.WG+1}',
                  f's_mov_b32 s{S_LM+2}, {576*9216}', f's_mov_b32 s{S_LM+3}, 0x00020000',
                  f's_cselect_b32 s48, 2, 0', f'v_and_b32 v4, 3, v0', 'v_xor_b32 v4, s48, v4', 'v_lshrrev_b32 v5, 2, v0', 'v_mul_u32_u24 v5, 9216, v5', 'v_lshl_add_u32 v4, v4, 4, v5']
        else:
            g += [f's_add_u32 s{c.DOFF}, s{c.DOFF}, {16*9216}', f's_add_u32 s{c.DML}, s{c.DML}, 1024']
        g += [f's_mov_b32 m0, s{c.DML}', f'buffer_load_dwordx4 v4, s[{S_LM}:{S_LM+3}], s{c.DOFF} offen lds']
        out.append(g)
    return out

def dma_qkv_groups(idx):
    c = P1; out = []
    n = -(-len(idx) // 4)
    idx = list(idx) + [idx[-1]] * (4 * n - len(idx))
    for k in range(n):
        i0, i1, i2, i3 = idx[4*k:4*k+4]
        if (i1, i2, i3) == (i0 + 1, i0 + 2, i0 + 3):
            g = [f's_add_u32 s{c.DML}, s{S_W}, {i0}']
        else:
            g = [f's_mov_b32 s{c.DML}, {i0}', f's_cmp_eq_u32 s{S_W}, 1', f's_cselect_b32 s{c.DML}, {i1}, s{c.DML}',
                 f's_cmp_eq_u32 s{S_W}, 2', f's_cselect_b32 s{c.DML}, {i2}, s{c.DML}', f's_cmp_eq_u32 s{S_W}, 3', f's_cselect_b32 s{c.DML}, {i3}, s{c.DML}']
        g += [f's_mul_i32 s{c.DOFF}, s{c.DML}, {7*3456}', f's_mul_i32 s{c.DML}, s{c.DML}, {7*c.PQ}', f's_mov_b32 m0, s{c.DML}',
              ('X63', f'buffer_load_dwordx4 v{c.V_DA}, s[{c.WQ}:{c.WQ+3}], s{c.DOFF} offen lds')]
        out.append(g)
    return out

def dma_gu_half(m):
    c = P1; out = []
    srd, vo = ((c.WG, c.V_DG), (c.WU, c.V_DU))[m]
    for i in range(9):
        g = []
        if i == 0:
            g += [f's_mul_i32 s{c.DOFF}, s{S_W}, {16*9216}', f's_add_u32 s{c.DOFF}, s{c.DOFF}, s{c.COL}', f's_add_u32 s{c.DML}, s{c.DM0}, {m*c.MAT1}']
        else:
            g += [f's_add_u32 s{c.DOFF}, s{c.DOFF}, {4*16*9216}', f's_add_u32 s{c.DML}, s{c.DML}, 4096']
        g += [f's_mov_b32 m0, s{c.DML}', f'buffer_load_dwordx4 v{vo}, s[{srd}:{srd+3}], s{c.DOFF} offen lds']
        out.append(g)
    return out

class EpiQ:
    def __init__(self): self.q = []
    def push(self, acc, instrs): self.q += [(acc, x) for x in instrs]
    def busy(self, acc): return any(a == acc for a, _ in self.q)
    def take(self, n=None, until_free=()):
        out = []
        while self.q and (n is None or len(out) < n or any(self.busy(a) for a in until_free)):
            out.append(self.q.pop(0)[1])
        return out

def emit_p1(e, P):
    c = P1
    make_srd(e, c.WU, P_WU, 576 * 9216)
    e.e(f's_mul_i32 s{c.TMP}, s{c.T0}, 36864')
    if XNF: e.e(f's_add_u32 s{c.TMP}, s{c.TMP}, {XNF}')
    e.e(f's_add_u32 s{c.TMP2}, s{c.TMP}, 36864')
    xl = []
    for s in range(36):
        if s and s % 4 == 0:
            xl.append(f's_add_u32 s{c.TMP}, s{c.TMP}, 4096')
            xl.append(f's_add_u32 s{c.TMP2}, s{c.TMP2}, 4096')
        xl.append(f'buffer_load_dwordx4 {xfrag(0, s)}, v{V_L16}, {WS}, s{c.TMP} offen offset:{(s%4)*1024}{SCL}')
        xl.append(f'buffer_load_dwordx4 {xfrag(1, s)}, v{V_L16}, {WS}, s{c.TMP2} offen offset:{(s%4)*1024}{SCL}')
    nx = 0; i = 0
    while nx < XUP:
        e.e(xl[i]); nx += xl[i].startswith('buffer'); i += 1
    xrest = xl[i:]
    A0, A1, A2, A3 = c.ACC
    e.e(f'v_mov_b32 v{c.V_RD0}, v{c.V_BG0}')
    e.e(f'v_mov_b32 v{c.V_RD1}, v{c.V_BG1}')
    e.e(f'v_add_u32 v{c.V_RD2}, {c.BUF1}, v{c.V_BG0}')
    rA = lambda s: p1_reads(c.V_RD0, s, c.WF)
    rB = lambda s: p1_reads(c.V_RD1, s, c.WFB)
    rC = lambda s: p1_reads(c.V_RD2, s, c.WFC)
    for s in range(2):
        for r in rA(s) + rB(s) + rC(s): e.e(r)
    xg = []; cur = []
    for x in xrest:
        cur.append(x)
        if x.startswith('buffer'): xg.append(cur); cur = []
    early = list(range(0, 18)) + list(range(37, 54)) + list(range(74, 83))
    late = [i for i in range(83) if i not in early]
    lg = dma_late_groups()
    mix0 = []
    xq = list(xg)
    while lg:
        mix0.append(lg.pop(0)); mix0.append(xq.pop(0)); mix0.append(xq.pop(0))
    mix0 += xq
    F = Filler(e, [], 108, dma=mix0, dma_start=0, dma_stride=2)
    for s in range(36):
        if s == 15:
            wait_tags(e, ('dma',))
            e.e('s_barrier')
        if s == 20:
            rest = F.dma
            e.e('s_barrier')
            qg = dma_qkv_groups(early)
            mix = rest + qg
            F = Filler(e, [], 96, dma=mix, dma_start=0, dma_stride=3)
        if s == 35:
            F.flush()
            e.wait(lg=0)
            e.e(f'v_add_u32 v{c.V_RD1}, {c.BUF1}, v{c.V_BG1}')
            e.e('s_barrier')
            for r in p1_reads(c.V_RD1, 0) + p1_reads(c.V_RD1, 1): e.e(r)
        rd = (rA(s + 2) + rB(s + 2) + rC(s + 2)) if s + 2 < 36 else []
        k = 0
        for tl in range(3):
            w = (c.WF, c.WFB, c.WFC)[tl] + 4 * (s % 3)
            for t in range(2):
                dd = c.ACC[tl] + 16 * t
                cc = '0' if s == 0 else f'v[{dd}:{dd+15}]'
                e.e(f'v_mfma_f32_32x32x16_bf16 v[{dd}:{dd+15}], v[{w}:{w+3}], {xfrag(t, s)}, {cc}')
                F.pre()
                if rd: e.e(rd[k])
                k += 1
                F.post()
    P.stamp('trio done'); P.stamp('rtrio', real=True)
    inc = [f's_add_u32 s{c.KG}, s{c.KG}, 1']
    Q = EpiQ()
    Q.push(A0, epi_gu(A0) + inc); Q.push(A1, epi_gu(A1) + inc); Q.push(A2, epi_gu(A2) + inc)
    d = dma_gu()
    BUD = 140
    def tile(acc, vrd, nxt, switch, dma=(), stride=6, start=0, wait=('dma',), pre=(), hook=None, epi=None, tk={}, **kw):
        assert not Q.busy(acc), acc
        for x in pre: e.e(x)
        F = Filler(e, Q.take(BUD, until_free=kw.pop('free', ())), 72, dma=dma, dma_start=start, dma_stride=stride, **kw)
        if hook: F.hook = hook
        p1_tile(e, acc, vrd, nxt, switch, F, wait=wait, **tk)
        Q.push(acc, epi if epi is not None else epi_gu(acc) + inc)
    tile(A3, c.V_RD1, c.V_RD0, True, dma=dma_qkv_groups(late), stride=5, pre=[f'v_mov_b32 v{c.V_RD0}, v{c.V_BA}'], free=(A0,), tk=dict(nxt_q=True))
    u3 = [f'v_mov_b32 v{c.V_RD1}, v{c.V_BB}', f's_lshl_b32 s{c.DM0}, s{S_W}, 10', f's_add_u32 s{c.DM0}, s{c.DM0}, {c.BUF1}', f's_add_u32 s{c.COL}, s{c.COL}, 128']
    tile(A0, c.V_RD0, c.V_RD1, False, dma=d[:12], pre=u3, free=(A1,), epi=epi_a(A0), tk=dict(own_q=True, nxt_q=True))
    tile(A1, c.V_RD1, c.V_RD0, True, dma=d[12:], pre=[f'v_add_u32 v{c.V_RD0}, {c.BUF1}, v{c.V_BG0}'], free=(A2,),
         epi=epi_b(A1, 0) + epi_b(A1, 1), tk=dict(is_b=True, own_q=True))
    P.stamp('AB done'); P.stamp('rAB', real=True)
    u4 = [f'v_add_u32 v{c.V_RD1}, {c.BUF1}, v{c.V_BG1}', f's_lshl_b32 s{c.DM0}, s{S_W}, 10', f's_add_u32 s{c.COL}, s{c.COL}, 64']
    tile(A2, c.V_RD0, c.V_RD1, False, dma=d[:12], pre=u4, free=(A3,))
    tile(A3, c.V_RD1, c.V_RD0, True, dma=d[12:], wait=('dma', 'kv'), pre=[f'v_mov_b32 v{c.V_RD0}, v{c.V_BG0}'], free=(A0, A1))
    publish(e, F_KV)
    u5 = [f'v_mov_b32 v{c.V_RD1}, v{c.V_BG1}', f's_lshl_b32 s{c.DM0}, s{S_W}, 10', f's_add_u32 s{c.DM0}, s{c.DM0}, {c.BUF1}', f's_mov_b32 s{c.COL}, s{c.COL5}']
    tile(A0, c.V_RD0, c.V_RD1, False, dma=d[:12], pre=u5)
    pre = [f's_lshl_b32 s49, s{c.E}, 5', f'v_xor_b32 v{c.V_RD0}, s49, v{c.V_BG0}', f'v_add_u32 v{c.V_RD0}, {c.BUF1}, v{c.V_RD0}']
    ids = ['v_and_b32 v3, 1, v0', 'v_bfe_u32 v6, v0, 1, 2', 'v_lshl_add_u32 v3, v6, 3, v3', 's_and_b32 s48, s2, 0xe6', 'v_add_u32 v3, s48, v3']
    for x in poll_issue(e, F_KV, ids, 8, 4): emit_item(e, x)
    tile(A1, c.V_RD1, c.V_RD0, True, dma=d[12:], pre=pre, hook=(56, lambda: poll_check(e, 8, 4)), free=(A2, A3),
         epi=epi_gu(A1) + [f's_mov_b32 s{c.KG}, s{c.KG5}'])
    P.stamp('p1 loop done'); P.stamp('rU4', real=True)
    for x in p2_bases(): e.e(x)
    assert not Q.busy(A3)
    BUD = 10000
    tile(A2, c.V_RD0, None, False, dma=p2_prefetch_groups(), stride=3, first_gap=1, epi=epi_gu(A2))
    for x in Q.take(): emit_item(e, x)
    e.wait_all()
    e.e('s_barrier')
    publish(e, F_H)
    P.stamp('p1 done'); P.stamp('rp1 done', real=True)

class P2:
    A, B, C = 65, 66, 67
    T0, TRIP = 50, 54
    X0, X1, X2, X3 = 46, 47, 48, 49
    L_KM, L_KX, L_V = 0, 65536, 73728
    MARGIN = 60.0
    V_KA, V_KXA, V_VA = 8, 9, 10
    V_T0 = 12
    QM = [24, 28]; QE = [32, 36]
    KM = [48, 52]; KE = [56, 60]
    VFR = [[64, 68], [72, 76]]
    PP = [80, 88]
    OO = [96, 112]
    SS = [[128, 144], [160, 176]]

def mf(d, a, b, c):
    cs = '0' if c is None else f'v[{c}:{c+15}]'
    return f'v_mfma_f32_32x32x16_bf16 v[{d}:{d+15}], v[{a}:{a+3}], v[{b}:{b+3}], {cs}'
def qk(buf_s, kb, t):
    c = P2; d = c.SS[buf_s][t]
    return [mf(d, c.KM[kb], c.QM[t], None), mf(d, c.KE[kb], c.QE[t], d)]
def kreads(kb, i):
    c = P2
    return [f'ds_read_b128 v[{c.KM[kb]}:{c.KM[kb]+3}], v{c.V_KA} offset:{i*1024}',
            f'ds_read_b32 v{c.KE[kb]}, v{c.V_KXA} offset:{i*128}']
def vreads(vb, i):
    c = P2
    return [f'ds_read_b128 v[{c.VFR[vb][0]}:{c.VFR[vb][0]+3}], v{c.V_VA} offset:{i*1280}',
            f'ds_read_b128 v[{c.VFR[vb][1]}:{c.VFR[vb][1]+3}], v{c.V_VA} offset:{i*1280+640}']

ATT_ORDER = 1
XUP = 14
DIAG = False
def attn_iter(e, b, off, first=False, extra=()):
    c = P2
    valu = []
    for t in range(2):
        for g in range(2):
            S = c.SS[b][t] + 8 * g
            valu += [f'v_exp_f32 v{S+r}, v{S+r}' for r in range(8)]
            valu += [f'v_cvt_pk_bf16_f32 v{c.PP[t]+4*g+r}, v{S+2*r}, v{S+2*r+1}' for r in range(4)]
    q0 = qk(b ^ 1, b ^ 1, 0); q1 = qk(b ^ 1, b ^ 1, 1)
    pv = lambda t, g, vb: mf(c.OO[t], c.VFR[vb][g], c.PP[t] + 4 * g, c.OO[t])
    ins = {2: [] if first else [pv(1, 1, b ^ 1)], 8: [q0[0]], 14: [q1[0]], 20: [pv(0, 0, b)], 26: [q0[1]], 32: [pv(0, 1, b)], 38: [pv(1, 0, b)], 44: [q1[1]]}
    if ATT_ORDER == 0: ins = {2: [] if first else [pv(1, 1, b ^ 1)], 8: [q0[0]], 14: [q0[1]], 20: [pv(0, 0, b)], 26: [q1[0]], 32: [pv(0, 1, b)], 38: [q1[1]], 44: [pv(1, 0, b)]}
    kr = kreads(b, off + 2); vr = vreads(b ^ 1, off + 1)
    lds = {2: [vr[0]], 14: [vr[1]], 26: [kr[0]], 32: [kr[1]]}
    extra = list(extra)
    slots = [8, 20, 38, 44] if len(extra) <= 4 else [2, 8, 14, 20, 26, 32, 38, 44]
    xtra = {}
    for k, g in enumerate(extra): xtra.setdefault(slots[k * len(slots) // len(extra)], []).append(g)
    for i, v in enumerate(valu):
        if i == 8: e.wait(lg=1)
        for x in ins.get(i, []): e.e(x)
        for x in lds.get(i, []): e.e(x)
        for g in xtra.get(i, []):
            for x in g:
                if callable(x): x()
                else: emit_item(e, x)
        e.e(v)

def kv_grp(base_s, ldsbase, idx_expr, x0=48, x1=49):
    return idx_expr(x1) + [f's_lshl_b32 s{x0}, s{x1}, 10', f's_add_u32 m0, s{x0}, {ldsbase}', f's_add_u32 s{x0}, s{x0}, s{base_s}',
                           f'buffer_load_dwordx4 v{V_L16}, {WS}, s{x0} offen{SCL} lds']
def p2_bases():
    c = P2
    return [f's_lshl_b32 s{c.A}, s{S_J}, 16', f's_add_u32 s{c.A}, s{c.A}, {KF}',
            f's_lshl_b32 s{c.B}, s{S_J}, 13', f's_add_u32 s{c.B}, s{c.B}, {KX}',
            f's_mul_i32 s{c.C}, s{S_J}, {VF_HEAD}', f's_add_u32 s{c.C}, s{c.C}, {VF}']
def p2_prefetch_groups():
    c = P2; W = S_W; g = []
    g.append(kv_grp(c.A, c.L_KM, lambda x: [f's_mov_b32 s{x}, s{W}']))
    g.append(kv_grp(c.C, c.L_V, lambda x: [f's_mov_b32 s{x}, s{W}']))
    g.append(kv_grp(c.B, c.L_KX, lambda x: [f's_mov_b32 s{x}, s{W}']))
    g.append(kv_grp(c.A, c.L_KM, lambda x: [f's_add_u32 s{x}, s{W}, 4']))
    g.append(kv_grp(c.C, c.L_V, lambda x: [f's_add_u32 s{x}, s{W}, 4']))
    g.append(kv_grp(c.C, c.L_V, lambda x: [f's_add_u32 s{x}, s{W}, 8', f's_min_u32 s{x}, s{x}, 9']))
    g.append([f's_lshl_b32 s49, s{S_J}, 6', f's_add_u32 s49, s49, s{c.T0}', 's_lshl_b32 s49, s49, 10', f's_add_u32 s49, s49, {QF}',
              f'buffer_load_dwordx4 v[{c.QM[0]}:{c.QM[0]+3}], v{V_L16}, {WS}, s49 offen{SCL}'])
    g.append([f'buffer_load_dwordx4 v[{c.QM[1]}:{c.QM[1]+3}], v{V_L16}, {WS}, s49 offen offset:1024{SCL}'])
    g.append(['v_lshlrev_b32 v12, 2, v0', 'v_mov_b32 v13, 0x7ff00000', 'v_cmp_gt_u32 vcc, 32, v0', 's_nop 0', 'v_cndmask_b32 v12, v13, v12, vcc',
              f's_lshl_b32 s49, s{S_J}, 13', f's_lshl_b32 s48, s{c.T0}, 7', 's_add_u32 s49, s49, s48', f's_add_u32 s49, s49, {QX}',
              f'buffer_load_dword v{c.QE[0]}, v12, {WS}, s49 offen{SCL}'])
    g.append([f'buffer_load_dword v{c.QE[1]}, v12, {WS}, s49 offen offset:128{SCL}'])
    for i in range(2, 16): g.append(kv_grp(c.A, c.L_KM, lambda x, i=i: [f's_add_u32 s{x}, s{W}, {4*i}']))
    g.append(kv_grp(c.B, c.L_KX, lambda x: [f's_add_u32 s{x}, s{W}, 4']))
    return g

def emit_p2(e, P):
    c = P2
    W = S_W
    grp = lambda base, lb, f: kv_grp(base, lb, f, 46, 47)
    b1 = [grp(c.C, c.L_V, lambda x, i=i: [f's_add_u32 s{x}, s{W}, {10+4*i}', f's_min_u32 s{x}, s{x}, 39']) for i in range(8)]
    b2 = [grp(c.C, c.L_V, lambda x, i=i: [f's_add_u32 s{x}, s{W}, {40+4*i}']) for i in range(10)]
    for t in range(2):
        for r in (1, 2, 3): e.e(f'v_mov_b32 v{c.QE[t]+r}, 0')
        e.e(f'v_mov_b32 v{c.KE[t]+1}, 0x3f80')
        e.e(f'v_mov_b32 v{c.KE[t]+2}, 0'); e.e(f'v_mov_b32 v{c.KE[t]+3}, 0')
    e.e(f'v_mov_b32 v{c.V_KA}, v{V_L16}')
    e.e('v_and_b32 v12, 31, v0')
    e.e(f'v_lshlrev_b32 v{c.V_KXA}, 2, v12')
    e.e(f'v_add_u32 v{c.V_KXA}, {c.L_KX}, v{c.V_KXA}')
    e.e('v_min_u32 v13, 19, v12')
    e.e('v_lshrrev_b32 v14, 5, v0')
    e.e('v_mul_u32_u24 v14, 320, v14')
    e.e(f'v_lshl_add_u32 v{c.V_VA}, v13, 4, v14')
    e.e(f'v_add_u32 v{c.V_VA}, {c.L_V}, v{c.V_VA}')
    for t in range(2):
        for r in range(16): e.e(f'v_mov_b32 v{c.OO[t]+r}, 0')
    for x in kreads(0, 0) + kreads(1, 1) + vreads(0, 0): e.e(x)
    for kt in range(2):
        for t in range(2):
            for x in qk(kt, kt, t): e.e(x)
    for t in range(2):
        m = c.V_T0 + t
        e.e(f'v_max3_f32 v{m}, v{c.SS[0][t]}, v{c.SS[0][t]+1}, v{c.SS[0][t]+2}')
        regs = [c.SS[0][t] + r for r in range(3, 16)] + [c.SS[1][t] + r for r in range(16)]
        while len(regs) >= 2:
            e.e(f'v_max3_f32 v{m}, v{m}, v{regs[0]}, v{regs[1]}'); regs = regs[2:]
        if regs: e.e(f'v_max_f32 v{m}, v{m}, v{regs[0]}')
    e.e(f's_mov_b32 s{c.X0}, {fh(c.MARGIN)}')
    for t in range(2):
        m = c.V_T0 + t; x = c.V_T0 + 2 + t
        e.e(f'v_mov_b32 v{x}, v{m}')
        e.e(f'v_permlane32_swap_b32 v{m}, v{x}')
        e.e(f'v_max_f32 v{m}, v{m}, v{x}')
        e.e(f'v_add_f32 v{m}, s{c.X0}, v{m}')
        e.e(f'v_cvt_pk_bf16_f32 v{m}, -v{m}, 0')
        e.e('v_cmp_gt_u32 vcc, 32, v0')
        e.e(f'v_cndmask_b32 v{c.QE[t]+1}, 0, v{m}, vcc')
    for t in range(2):
        for x in qk(0, 0, t): e.e(x)
    P.stamp('max done')
    nb = [0]
    def body(first=False, extra=()):
        extra = list(extra); h = (len(extra) + 1) // 2
        o = 2 * (nb[0] % 4)
        attn_iter(e, 0, o, first=first, extra=extra[:h])
        attn_iter(e, 1, o + 1, extra=extra[h:])
        nb[0] += 1
        if nb[0] % 4 == 0:
            e.e(f'v_add_u32 v{c.V_KA}, {8*1024}, v{c.V_KA}')
            e.e(f'v_add_u32 v{c.V_KXA}, {8*128}, v{c.V_KXA}')
            e.e(f'v_add_u32 v{c.V_VA}, {8*1280}, v{c.V_VA}')
    body(True, b1[:4]); body(False, b1[4:]); body()
    e.wait_vm0(); e.e('s_barrier')
    body()
    body(False, b2[:4]); body(False, b2[4:8]); body(False, b2[8:]); body()
    P.stamp('trip1 done')
    make_srd(e, S_R0, P_WD, 4608 * 1152)
    e.e(f's_bfe_u32 s{c.X0}, s2, 0x20001')
    e.e(f's_mul_i32 s55, s{c.X0}, {1152*1152}')
    e.e(f's_lshr_b32 s{c.X0}, s2, 3')
    e.e(f's_lshl_b32 s{c.X0}, s{c.X0}, 2')
    e.e(f's_add_u32 s{c.X0}, s{c.X0}, s{S_W}')
    e.e(f's_mul_i32 s{c.X0}, s{c.X0}, {1152*1152 // 128}')
    e.e(f's_add_u32 s55, s55, s{c.X0}')
    warm = [[f'buffer_load_dwordx4 v[224:227], v{V_L16}, s[{S_R0}:{S_R0+3}], s55 offen', 's_add_u32 s55, s55, 1024'] for _ in range(3)]
    e.wait_vm0()
    e.e('s_barrier')
    e.e(f's_mov_b32 s{c.TRIP}, 2')
    lab = f'{NAME}_p2loop'
    e.label(lab)
    st0 = e.state(); m0 = e.mark()
    body(False, [[('RAW', warm[0][0]), warm[0][1]]]); body(False, [[('RAW', warm[1][0]), warm[1][1]]]); body(False, [[('RAW', warm[2][0]), warm[2][1]]]); body()
    e.e(f's_add_u32 s{c.TRIP}, s{c.TRIP}, 1')
    e.e(f's_cmp_lt_u32 s{c.TRIP}, 6')
    e.e(f's_cbranch_scc1 {lab}')
    bad = e.check_loop(m0); assert not bad, bad
    st1 = e.state(); assert [a for a, b in st0[0]] == [a for a, b in st1[0]], (st0[0], st1[0])
    P.stamp('loop4 done')
    e.raw('    s_waitcnt vmcnt(0)'); e.vm_q = []
    sa, sb = p3_setup()
    ca = [sa[i:i+8] for i in range(0, len(sa), 8)]
    cb_ = [sb[i:i+7] for i in range(0, len(sb), 7)]
    pi = poll_issue(e, F_H, p3_ids8(47), 8, 4)
    bl = []
    for u in range(8): bl += p3_bload_groups(0, base=32 * u)
    t6 = [pi] + ca + cb_ + [[lambda: poll_check(e, 8, 4)]]
    while len(t6) < 40: t6.append(bl.pop(0))
    q4 = -(-len(t6) // 4)
    for i in range(4): body(False, t6[i*q4:(i+1)*q4])
    e.e('s_barrier')
    p3_srds(e)
    w0 = p3_dma_unit(P3.WD, P3.V_DO, P3.R[0])
    w1 = p3_dma_unit(P3.WD, P3.V_DO, P3.R[1])
    w1[0] = [f's_add_u32 s{P3.WOFF}, s{P3.WOFF}, {128*1152}'] + w1[0]
    t7 = []
    ws_ = w0 + w1
    while bl or ws_:
        if ws_: t7.append(ws_.pop(0))
        if bl: t7.append(bl.pop(0))
        if bl: t7.append(bl.pop(0))
    q4 = -(-len(t7) // 4)
    for i in range(4): body(False, t7[i*q4:(i+1)*q4])
    e.e(f's_add_u32 s{P3.WOFF}, s{P3.WOFF}, {128*1152}')
    P.stamp('p2 loop done')
    e.e(mf(c.OO[1], c.VFR[1][1], c.PP[1] + 4, c.OO[1]))
    e.e(f's_mov_b32 s{c.X0}, {fh(2.0**120)}')
    for t in range(2):
        O = c.OO[t]; l = c.V_T0 + t; x = c.V_T0 + 2 + t; mx = c.V_T0 + 4 + t
        e.e(f'v_mov_b32 v{l}, v{O+10}')
        e.e(f'v_mov_b32 v{x}, v{O+10}')
        e.e(f'v_max3_f32 v{mx}, |v{O}|, |v{O+1}|, |v{O+2}|')
        for r in range(3, 9, 2): e.e(f'v_max3_f32 v{mx}, v{mx}, |v{O+r}|, |v{O+r+1}|')
        e.e(f'v_max3_f32 v{mx}, v{mx}, |v{O+9}|, |v{O+10}|')
        e.e(f'v_permlane32_swap_b32 v{l}, v{x}')
    e.e(f'v_cmp_nge_f32 vcc, s{c.X0}, v{c.V_T0+4}')
    e.e(f's_mov_b64 s[{c.X2}:{c.X3}], vcc')
    e.e(f'v_cmp_nge_f32 vcc, s{c.X0}, v{c.V_T0+5}')
    e.e(f's_or_b64 vcc, vcc, s[{c.X2}:{c.X3}]')
    e.e(f's_cmp_lg_u64 vcc, 0')
    e.e(f's_cselect_b32 s{c.X0}, 1, 0')
    e.e(f'v_mov_b32 v{c.V_T0+7}, s{c.X0}')
    e.e(f's_lshl_b32 s{c.X1}, s{S_W}, 2')
    e.e(f's_add_u32 s{c.X1}, s{c.X1}, {L_MISC + 16}')
    e.e(f'v_mov_b32 v{c.V_T0+8}, s{c.X1}')
    e.e(f'ds_write_b32 v{c.V_T0+8}, v{c.V_T0+7}')
    e.label(f'{NAME}_p2fin')
    for t in range(2):
        O = c.OO[t]; l = c.V_T0 + t
        e.e(f'v_rcp_f32 v{l}, v{l}')
        for r in range(10): e.e(f'v_mul_f32 v{O+r}, v{O+r}, v{l}')
        pk = 128 + 8 * t
        for r in range(5): e.e(f'v_cvt_pk_bf16_f32 v{pk+r}, v{O+2*r}, v{O+2*r+1}')
        e.e(f's_add_u32 s{c.X1}, s{c.T0}, {t}')
        e.e(f's_mul_i32 s{c.X1}, s{c.X1}, 36864')
        e.e(f's_add_u32 s{c.X1}, s{c.X1}, {OF}')
        e.e(f's_lshl_b32 s{c.X2}, s{S_J}, 10')
        e.e(f's_add_u32 s{c.X2}, s{c.X2}, s{c.X1}')
        e.e(f'buffer_store_dwordx4 v[{pk}:{pk+3}], v{V_L16}, {WS}, s{c.X2} offen{SC}')
        e.e(f's_lshr_b32 s{c.X2}, s{S_J}, 3')
        e.e(f's_add_u32 s{c.X2}, s{c.X2}, 32')
        e.e(f's_lshl_b32 s{c.X2}, s{c.X2}, 10')
        e.e(f's_add_u32 s{c.X1}, s{c.X1}, s{c.X2}')
        e.e(f's_bfe_u32 s{c.X2}, s{S_J}, 0x10002')
        e.e(f's_lshl_b32 s{c.X2}, s{c.X2}, 9')
        e.e(f's_add_u32 s{c.X1}, s{c.X1}, s{c.X2}')
        e.e(f's_and_b32 s{c.X2}, s{S_J}, 3')
        e.e(f's_lshl_b32 s{c.X2}, s{c.X2}, 2')
        e.e(f's_add_u32 s{c.X1}, s{c.X1}, s{c.X2}')
        if t == 0:
            e.e(f'v_mov_b32 v{c.V_T0+6}, 0x7ff00000')
            e.e('v_cmp_gt_u32 vcc, 32, v0')
            e.e(f'v_cndmask_b32 v{c.V_T0+6}, v{c.V_T0+6}, v{V_L16}, vcc')
        e.e(f'buffer_store_dword v{pk+4}, v{c.V_T0+6}, {WS}, s{c.X1} offen{SC}')
    e.wait_all()
    e.e('s_barrier')
    e.e(f'v_mov_b32 v{c.V_T0+8}, {L_MISC + 16}')
    e.e(f'ds_read_b128 v[{c.V_T0+4}:{c.V_T0+7}], v{c.V_T0+8}')
    e.e(f'v_or3_b32 v{c.V_T0+4}, v{c.V_T0+4}, v{c.V_T0+5}, v{c.V_T0+6}')
    e.e(f'v_or_b32 v{c.V_T0+4}, v{c.V_T0+4}, v{c.V_T0+7}')
    e.e(f'v_readfirstlane_b32 s{c.X0}, v{c.V_T0+4}')
    e.e(f's_cmp_lg_u32 s{c.X0}, 0')
    e.e(f's_cbranch_scc1 {NAME}_p2slow')
    e.label(f'{NAME}_p2ok')
    publish(e, F_O)
    P.stamp('rp2 done', real=True)

def emit_p2_slow(e):
    c = P2
    e.label(f'{NAME}_p2slow')
    e.lds_q = []; e.vm_q = []
    e.e('s_waitcnt vmcnt(0) lgkmcnt(0)')
    e.e('s_barrier')
    e.e(f'v_mov_b32 v{c.V_T0+7}, 0')
    e.e(f's_lshl_b32 s{c.X1}, s{S_W}, 2')
    e.e(f's_add_u32 s{c.X1}, s{c.X1}, {L_MISC + 16}')
    e.e(f'v_mov_b32 v{c.V_T0+8}, s{c.X1}')
    e.e(f'ds_write_b32 v{c.V_T0+8}, v{c.V_T0+7}')
    for i in range(9):
        for x in kv_grp(c.A, c.L_KM, lambda x, i=i: [f's_add_u32 s{x}, s{S_W}, {4*i}'], 46, 47): e.e(x)
        for x in kv_grp(c.C, c.L_V, lambda x, i=i: [f's_add_u32 s{x}, s{S_W}, {4*i}'], 46, 47): e.e(x)
    e.e('s_waitcnt vmcnt(0) lgkmcnt(0)')
    e.e('s_barrier')
    MX = [160, 161]; AL = 162; TM = 163; TX = 164
    for t in range(2):
        e.e(f'v_mov_b32 v{c.QE[t]+1}, 0')
        e.e(f'v_mov_b32 v{MX[t]}, 0xff7fffff')
        for r in range(16): e.e(f'v_mov_b32 v{c.OO[t]+r}, 0')
    e.e(f'v_subrev_u32 v{c.V_KA}, {32*2048}, v{c.V_KA}')
    e.e(f'v_subrev_u32 v{c.V_KXA}, {32*256}, v{c.V_KXA}')
    e.e(f'v_subrev_u32 v{c.V_VA}, {32*2560}, v{c.V_VA}')
    e.e(f's_mov_b32 s{c.TRIP}, 0')
    lab = f'{NAME}_p2slowloop'
    e.label(lab)
    ms = e.mark()
    for x in kreads(0, 0) + vreads(0, 0): e.e(x)
    for t in range(2):
        for x in qk(0, 0, t): e.e(x)
    for t in range(2):
        S = c.SS[0][t]
        e.e(f'v_max3_f32 v{TM}, v{S}, v{S+1}, v{S+2}')
        for r in range(3, 15, 2): e.e(f'v_max3_f32 v{TM}, v{TM}, v{S+r}, v{S+r+1}')
        e.e(f'v_max_f32 v{TM}, v{TM}, v{S+15}')
        e.e(f'v_mov_b32 v{TX}, v{TM}')
        e.e(f'v_permlane32_swap_b32 v{TM}, v{TX}')
        e.e(f'v_max3_f32 v{TM}, v{TM}, v{TX}, v{MX[t]}')
        e.e(f'v_sub_f32 v{AL}, v{MX[t]}, v{TM}')
        e.e(f'v_exp_f32 v{AL}, v{AL}')
        e.e(f'v_mov_b32 v{MX[t]}, v{TM}')
        for r in range(16): e.e(f'v_sub_f32 v{S+r}, v{S+r}, v{TM}')
        for r in range(16): e.e(f'v_exp_f32 v{S+r}, v{S+r}')
        for r in range(16): e.e(f'v_mul_f32 v{c.OO[t]+r}, v{c.OO[t]+r}, v{AL}')
        for r in range(8): e.e(f'v_cvt_pk_bf16_f32 v{c.PP[t]+r}, v{S+2*r}, v{S+2*r+1}')
        for g in range(2): e.e(mf(c.OO[t], c.VFR[0][g], c.PP[t] + 4 * g, c.OO[t]))
    e.e(f'v_add_u32 v{c.V_KA}, 1024, v{c.V_KA}')
    e.e(f'v_add_u32 v{c.V_KXA}, 128, v{c.V_KXA}')
    e.e(f'v_add_u32 v{c.V_VA}, 1280, v{c.V_VA}')
    e.e('s_nop 15')
    e.e(f's_add_u32 s{c.TRIP}, s{c.TRIP}, 1')
    e.e(f's_cmp_lt_u32 s{c.TRIP}, 64')
    e.e(f's_cbranch_scc1 {lab}')
    bad = e.check_loop(ms); assert not bad, bad
    e.e('s_nop 15')
    e.e('s_waitcnt lgkmcnt(0)')
    e.e('s_barrier')
    e.e(f's_sub_u32 s{P3.WOFF}, s{P3.WOFF}, {2*128*1152}')
    for g in p3_dma_unit(P3.WD, P3.V_DO, P3.R[0]):
        for x in g: e.e(x)
    e.e(f's_add_u32 s{P3.WOFF}, s{P3.WOFF}, {128*1152}')
    for g in p3_dma_unit(P3.WD, P3.V_DO, P3.R[1]):
        for x in g: e.e(x)
    e.e(f's_add_u32 s{P3.WOFF}, s{P3.WOFF}, {128*1152}')
    for t in range(2):
        O = c.OO[t]; l = c.V_T0 + t; x = c.V_T0 + 2 + t
        e.e(f'v_mov_b32 v{l}, v{O+10}')
        e.e(f'v_mov_b32 v{x}, v{O+10}')
        e.e(f'v_permlane32_swap_b32 v{l}, v{x}')
    e.e(f's_branch {NAME}_p2fin')

class P3:
    WD, WO = S_R0, S_R1
    C2, MT, CQ, TT, HB, WOFF, U = 55, 56, 57, 58, 59, 60, 61
    R = [62, 63, 64, 68]
    A, B = 46, 47
    V_DO, V_D2, V_DX = 192, 201, 210
    V_RB, V_RD, V_BO = 219, 220, 222
    AF = 32
    NSLOT, DIST = 9, 6
    BF = [0, 32]
    ACC = 96
    UNIT = 36864
    SLOTS = [0, 73728, 36864, 110592]

def p3_areads(vrd, ks, cb, slot):
    b = P3.AF + 4 * slot
    o = ks * 9216 + cb * 32
    return [f'ds_read_b64_tr_b16 v[{b}:{b+1}], v{vrd} offset:{o}',
            f'ds_read_b64_tr_b16 v[{b+2}:{b+3}], v{vrd} offset:{o + 8*288}']

def poll_ids(e, phase, idexpr, n):
    for x in idexpr: e.e(x)
    poll(e, phase, 3, n)

def p3_ids8(a):
    return ['v_and_b32 v3, 7, v0', 'v_lshlrev_b32 v3, 5, v3', f's_lshr_b32 s{a}, s2, 6', f's_lshl_b32 s{a}, s{a}, 3',
            f'v_add_u32 v3, s{a}, v3', f's_and_b32 s{a}, s2, 7', f'v_add_u32 v3, s{a}, v3']

L_STASH = 157696
P3_STASH = None
def p3_stash_regs():
    c = P3
    return [c.V_DO + j for j in range(9)] + [c.V_D2] + [c.V_DX + j for j in range(9)] + [c.V_RB, c.V_BO]

def p3_lane_setup(e):
    c = P3
    t0, t1, t2, t3 = 8, 9, 10, 11
    R = 16
    e.e('s_bfe_u32 s48, s2, 0x20003')
    e.e('s_mul_i32 s48, s48, 288')
    e.e(f's_mov_b32 s49, {(2**32 + 287) // 288}')
    for j in range(9):
        for x in [f'v_add_u32 v{t0}, {j*1024}, v{V_L16}',
                  f'v_mul_hi_u32 v{t1}, v{t0}, s49',
                  f'v_mul_u32_u24 v{t2}, 288, v{t1}',
                  f'v_sub_u32 v{t0}, v{t0}, v{t2}',
                  f'v_add_u32 v{t0}, s48, v{t0}',
                  f'v_mul_u32_u24 v{t2}, 1152, v{t1}',
                  f'v_add_u32 v{R+j}, v{t0}, v{t2}']: e.e(x)
        if j == 4:
            for x in [f'v_lshrrev_b32 v{t2}, 4, v{t1}', f'v_mul_u32_u24 v{t2}, {2*1152}, v{t2}', f'v_add_u32 v{R+9}, v{R+j}, v{t2}']: e.e(x)
        for x in [f'v_bfe_u32 v{t2}, v{t1}, 2, 1', f'v_lshlrev_b32 v{t2}, 2, v{t2}', f'v_bfe_u32 v{t3}, v{t1}, 1, 1', f'v_add_u32 v{t2}, v{t2}, v{t3}',
                  f'v_bfe_u32 v{t3}, v{t1}, 3, 1', f'v_lshl_add_u32 v{t2}, v{t3}, 1, v{t2}', f'v_mul_u32_u24 v{t2}, 18, v{t2}', f'v_and_b32 v{t3}, 1, v{t1}',
                  f'v_add3_u32 v{t2}, v{t2}, v{t3}, 16', f'v_mul_u32_u24 v{t2}, 1152, v{t2}', f'v_add_u32 v{R+10+j}, v{t0}, v{t2}']: e.e(x)
    for x in [f'v_lshrrev_b32 v{t0}, 5, v0', f'v_lshlrev_b32 v{t0}, 4, v{t0}', f'v_bfe_u32 v{t1}, v0, 4, 1', f'v_lshl_add_u32 v{t0}, v{t1}, 2, v{t0}',
              f'v_bfe_u32 v{t1}, v0, 2, 2', f'v_add_u32 v{t0}, v{t0}, v{t1}', f'v_mul_u32_u24 v{t0}, 288, v{t0}', f'v_and_b32 v{t1}, 3, v0',
              f'v_lshl_add_u32 v{R+19}, v{t1}, 3, v{t0}',
              f'v_lshrrev_b32 v{t0}, 5, v0', f'v_lshlrev_b32 v{t0}, 10, v{t0}', f'v_bfe_u32 v{t1}, v0, 4, 1', f'v_lshl_add_u32 v{t0}, v{t1}, 9, v{t0}',
              f'v_and_b32 v{t1}, 15, v0', f'v_lshl_add_u32 v{R+20}, v{t1}, 4, v{t0}',
              f'v_lshlrev_b32 v{t0}, 2, v0', f'v_add_u32 v{t0}, {L_STASH}, v{t0}']: e.e(x)
    for k in range(21): e.e(f'ds_write_b32 v{t0}, v{R+k} offset:{256*k}')
    e.wait_lgkm0()

def p3_setup():
    c = P3; o = []
    o += [f's_bfe_u32 s{c.C2}, s2, 0x20001', f's_and_b32 s{c.MT}, s2, 1', f's_lshl_b32 s{c.MT}, s{c.MT}, 3', f's_lshr_b32 s{c.A}, s2, 5',
          f's_add_u32 s{c.MT}, s{c.MT}, s{c.A}', f's_bfe_u32 s{c.CQ}, s2, 0x20003', f's_lshl_b32 s{c.TT}, s{c.MT}, 2', f's_add_u32 s{c.TT}, s{c.TT}, s{S_W}']
    o += [f's_mul_i32 s{c.HB}, s{c.TT}, {288*1024}', f's_mul_i32 s{c.A}, s{c.C2}, {72*1024}', f's_add_u32 s{c.HB}, s{c.HB}, s{c.A}', f's_add_u32 s{c.HB}, s{c.HB}, {HF}']
    o += ['v_lshlrev_b32 v12, 2, v0', f'v_add_u32 v12, {L_STASH}, v12']
    regs = p3_stash_regs()
    o += [f'ds_read_b32 v{regs[20]}, v12 offset:{256*20}']
    first = o; o = []
    o += [f'ds_read_b32 v{regs[k]}, v12 offset:{256*k}' for k in range(20)]
    o += [f's_mul_i32 s{c.WOFF}, s{c.C2}, {72*16}', f's_lshl_b32 s{c.A}, s{S_W}, 5', f's_add_u32 s{c.WOFF}, s{c.WOFF}, s{c.A}', f's_mul_i32 s{c.WOFF}, s{c.WOFF}, 1152']
    o += [f's_mov_b32 s{c.R[i]}, {c.SLOTS[i]}' for i in range(4)]
    return first, o

def p3_srds(e):
    make_srd(e, P3.WD, P_WD, 4608 * 1152)
    make_srd(e, P3.WO, P_WO, 576 * 1152)

def p3_dma_unit(srd, vo, rslot):
    c = P3; out = []
    for j in range(9):
        g = []
        if j == 0: g += [f's_mul_i32 s48, s{S_W}, 9216', f's_add_u32 s48, s48, s{rslot}']
        reg, so = vo + j, c.WOFF
        if vo == c.V_D2:
            reg = c.V_D2 if j == 4 else c.V_DO + j
            so = c.U if j > 4 else c.WOFF
            if j == 0: g.append(f's_add_u32 s{c.U}, s{c.WOFF}, {2*1152}')
        g += [f's_add_u32 m0, s48, {j*1024}', f'buffer_load_dwordx4 v{reg}, s[{srd}:{srd+3}], s{so} offen lds']
        out.append(g)
    return out

def p3_bloads(base):
    c = P3
    return [f'buffer_load_dwordx4 a[{base+8*k+4*th}:{base+8*k+4*th+3}], v{c.V_BO}, {WS}, s{c.HB} offen offset:{(k%2)*2048+th*256}{SCL}'
            for k in range(4) for th in range(2)]

def p3_bload_groups(buf, base=None):
    c = P3; L = p3_bloads(base); out = []
    for i, x in enumerate(L):
        g = []
        if i == 4: g.append(f's_add_u32 s{c.HB}, s{c.HB}, 4096')
        g.append(x)
        if i == 7: g.append(f's_add_u32 s{c.HB}, s{c.HB}, 4096')
        out.append(g)
    return out

def emit_p3(e, P, prefetched):
    c = P3
    e.e(f'v_add_u32 v{c.V_RD}, s{c.R[0]}, v{c.V_RB}')
    P.stamp('p3 u0 ready')
    seq = [(ks, cb) for ks in range(4) for cb in range(9)]
    for i in range(c.DIST):
        for x in p3_areads(c.V_RD, seq[i][0], seq[i][1], i % c.NSLOT): e.e(x)
    def unit(bb, first, dma, bl, nks=4, nxt=True, hook=None):
        n = nks * 9
        fl = [list(g) for g in dma]; bl = [list(g) for g in bl]
        e.e(f'v_add_u32 v{c.V_RD+1}, s{c.R[1]}, v{c.V_RB}')
        for i in range(n):
            ks, cb = seq[i]
            if i == n - c.DIST and nxt:
                wait_tags(e, ('dma_prev',))
                e.e('s_barrier')
            if hook and i == hook[0]: hook[1]()
            if i % 3 == 0:
                need = {('v', c.AF + 4 * ((i + k) % c.NSLOT) + r) for k in range(min(3, n - i)) for r in range(4)}
                idx = [q for q, (dst, _) in enumerate(e.lds_q) if dst & need]
                if idx: e.wait(lg=len(e.lds_q) - 1 - max(idx))
            j = i + c.DIST
            rd = []
            if j < n: rd = p3_areads(c.V_RD, seq[j][0], seq[j][1], j % c.NSLOT)
            elif nxt: rd = p3_areads(c.V_RD + 1, seq[j - n][0], seq[j - n][1], j % c.NSLOT)
            a = c.AF + 4 * (i % c.NSLOT)
            g = None
            for th in range(2):
                d = c.ACC + 4 * (th * 9 + cb); b = bb + 8 * ks + 4 * th
                cc = '0' if (first and ks == 0) else f'v[{d}:{d+3}]'
                e.e(f'v_mfma_f32_16x16x32_bf16 v[{d}:{d+3}], v[{a}:{a+3}], a[{b}:{b+3}], {cc}')
                if th == 0:
                    if fl and i % 3 == 1:
                        g = fl.pop(0)
                        for x in g[:-1]: e.e(x)
                    if rd: e.e(rd[0])
                else:
                    if rd: e.e(rd[1])
                    if g: e.e(g[-1], tag='dma'); g = None
                    if bl and i % 4 == 3:
                        for x in bl.pop(0): e.e(x)
        assert not fl and not bl
        e.e(f'v_mov_b32 v{c.V_RD}, v{c.V_RD+1}')
        e.e(f's_mov_b32 s{c.A}, s{c.R[0]}')
        for i in range(3): e.e(f's_mov_b32 s{c.R[i]}, s{c.R[i+1]}')
        e.e(f's_mov_b32 s{c.R[3]}, s{c.A}')
    def retag():
        e.vm_q = [(d, 'dma_prev' if t == 'dma' else t) for d, t in e.vm_q]
    adv = lambda: e.e(f's_add_u32 s{c.WOFF}, s{c.WOFF}, {128*1152}')
    for u in range(7):
        if u == 6:
            for x in poll_issue(e, F_O, p3_ids8(c.A), 8, 8): emit_item(e, x)
        retag()
        unit(32 * u, u == 0, p3_dma_unit(c.WD, c.V_DO, c.R[2]), p3_bload_groups(0, base=0) if u == 1 else [])
        adv()
    e.e(f's_lshl_b32 s{c.WOFF}, s{c.C2}, 3')
    e.e(f's_lshl_b32 s{c.A}, s{S_W}, 1')
    e.e(f's_add_u32 s{c.WOFF}, s{c.WOFF}, s{c.A}')
    e.e(f's_mul_i32 s{c.WOFF}, s{c.WOFF}, {18*1152}')
    retag()
    unit(32 * 7, False, p3_dma_unit(c.WO, c.V_D2, c.R[2]), [])
    e.e(f's_mul_i32 s{c.WOFF}, s{c.C2}, {144*1152}')
    e.e(f's_mul_i32 s{c.HB}, s{c.TT}, 36864')
    e.e(f's_lshl_b32 s{c.A}, s{c.C2}, 13')
    e.e(f's_add_u32 s{c.HB}, s{c.HB}, s{c.A}')
    e.e(f's_add_u32 s{c.HB}, s{c.HB}, {OF}')
    poll_check(e, 8, 8)
    retag()
    unit(0, False, p3_dma_unit(c.WO, c.V_DX, c.R[2]), p3_bload_groups(0, base=32))
    e.e(f's_mul_i32 s{c.HB}, s{c.TT}, 36864')
    e.e(f's_add_u32 s{c.A}, s{c.C2}, 32')
    e.e(f's_lshl_b32 s{c.A}, s{c.A}, 10')
    e.e(f's_add_u32 s{c.HB}, s{c.HB}, s{c.A}')
    e.e(f's_add_u32 s{c.HB}, s{c.HB}, {OF}')
    e.e('v_mov_b32 v12, 0x7ff00000')
    e.e('v_cmp_gt_u32 vcc, 32, v0')
    e.e(f'v_cndmask_b32 v12, v12, v{c.V_BO}, vcc')
    ext = [[f'buffer_load_dwordx4 a[{64+4*th}:{64+4*th+3}], v12, {WS}, s{c.HB} offen offset:{th*256}{SCL}'] for th in range(2)]
    retag()
    unit(32, False, [], ext)
    unit(64, False, [], [], nks=1, nxt=False)
    P.stamp('p3 k done'); P.stamp('rp3 k done', real=True)
    e.e(f's_mul_i32 s{c.A}, s{c.C2}, {64*36*1024}')
    e.e(f's_mul_i32 s{c.B}, s{c.TT}, {36*1024}')
    e.e(f's_add_u32 s{c.A}, s{c.A}, s{c.B}')
    e.e(f's_mul_i32 s{c.B}, s{c.CQ}, {9*1024}')
    e.e(f's_add_u32 s{c.A}, s{c.A}, s{c.B}')
    e.e(f's_add_u32 s{c.A}, s{c.A}, {PART}')
    for cb in range(9):
        pk = 168 + 4 * (cb % 6)
        for th in range(2):
            d = c.ACC + 4 * (th * 9 + cb)
            for r in range(2): e.e(f'v_cvt_pk_bf16_f32 v{pk+2*th+r}, v{d+2*r}, v{d+2*r+1}')
        if cb and cb % 4 == 0: e.e(f's_add_u32 s{c.A}, s{c.A}, 4096')
        e.e(f'buffer_store_dwordx4 v[{pk}:{pk+3}], v{V_L16}, {WS}, s{c.A} offen offset:{(cb%4)*1024}{SC}', tag='part')
    emit_p4_pre(e)
    wait_tags(e, ('part',))
    e.e('s_barrier')
    publish(e, F_PART)
    P.stamp('p3 done')

def emit_p4_pre(e):
    c = P3
    X, OUT = S_R0, S_R1
    make_srd(e, X, P_X, 2048 * 1152)
    make_srd(e, OUT, P_OUT, 2048 * 1152)
    TF, RO, PB = 50, 51, 52
    e.e(f's_lshl_b32 s{TF}, s{c.MT}, 2')
    e.e(f's_add_u32 s{TF}, s{TF}, s{c.C2}')
    e.e(f's_mul_i32 s{RO}, s{TF}, {32*1152}')
    e.e(f's_mul_i32 s{c.A}, s{c.CQ}, 288')
    e.e(f's_add_u32 s{RO}, s{RO}, s{c.A}')
    e.e(f's_mul_i32 s{PB}, s{TF}, {36*1024}')
    e.e(f's_mul_i32 s{c.A}, s{c.CQ}, {9*1024}')
    e.e(f's_add_u32 s{PB}, s{PB}, s{c.A}')
    e.e(f's_add_u32 s{PB}, s{PB}, {PART}')
    e.e('v_and_b32 v14, 15, v0')
    e.e('v_mul_u32_u24 v14, 1152, v14')
    e.e('v_lshrrev_b32 v15, 4, v0')
    e.e('v_lshl_add_u32 v16, v15, 3, v14')
    e.e('v_and_b32 v17, 1, v15')
    e.e(f'v_mul_u32_u24 v17, {16*1152}, v17')
    e.e('v_add_u32 v17, v17, v14')
    e.e('v_lshrrev_b32 v15, 1, v15')
    e.e('v_lshl_add_u32 v17, v15, 4, v17')
    for k in range(3):
        e.e(f's_add_u32 s{53+k}, s{S_W}, {4*k}')
        e.e(f's_cmp_lt_u32 s{53+k}, 9')
        e.e(f's_cselect_b32 s{56+k+10}, 0, 0x70000000')
        e.e(f's_lshl_b32 s{c.A}, s{53+k}, 5')
        e.e(f's_add_u32 s{c.A}, s{c.A}, s{RO}')
        e.e(f's_add_u32 s{c.A}, s{c.A}, s{66+k}')
        e.e(f'v_add_u32 v{8+k}, s{c.A}, v16')
        e.e(f'v_add_u32 v{11+k}, s{c.A}, v17')
        e.e(f's_lshl_b32 s{53+k}, s{53+k}, 10')
        e.e(f's_add_u32 s{53+k}, s{53+k}, s{PB}')
        e.e(f's_add_u32 s{53+k}, s{53+k}, s{66+k}')
    for k in range(3):
        e.e(f'buffer_load_dwordx2 v[{20+4*k}:{21+4*k}], v{8+k}, s[{X}:{X+3}], 0 offen')
        e.e(f's_mov_b32 s{c.A}, {16*1152}')
        e.e(f'buffer_load_dwordx2 v[{22+4*k}:{23+4*k}], v{8+k}, s[{X}:{X+3}], s{c.A} offen')

def emit_p4(e, P):
    c = P3
    OUT = S_R1
    ids = ['v_and_b32 v3, 3, v0', 'v_lshlrev_b32 v3, 1, v3', f's_and_b32 s{c.A}, s2, 0xf9', f'v_add_u32 v3, s{c.A}, v3']
    poll_ids(e, F_PART, ids, 4)
    P.stamp('p4 polled')
    PR = 64
    for k in range(3):
        for cc in range(4):
            r = PR + (k * 4 + cc) * 4
            e.e(f'buffer_load_dwordx4 v[{r}:{r+3}], v{V_L16}, {WS}, s{53+k} offen{SCL}')
            if cc < 3: e.e(f's_add_u32 s{53+k}, s{53+k}, {64*36*1024}')
    for k in range(3):
        A = 128 + 16 * k; Tm = A + 8
        for i in range(4):
            e.e(f'v_lshlrev_b32 v{A+2*i}, 16, v{20+4*k+i}')
            e.e(f'v_and_b32 v{A+2*i+1}, 0xffff0000, v{20+4*k+i}')
        for cc in range(4):
            r = PR + (k * 4 + cc) * 4
            for i in range(4):
                e.e(f'v_lshlrev_b32 v{Tm+2*i}, 16, v{r+i}')
                e.e(f'v_and_b32 v{Tm+2*i+1}, 0xffff0000, v{r+i}')
            for i in range(8): e.e(f'v_add_f32 v{A+i}, v{A+i}, v{Tm+i}')
        D = 40 + 4 * k
        for i in range(4): e.e(f'v_cvt_pk_bf16_f32 v{D+i}, v{A+2*i}, v{A+2*i+1}')
        e.e(f'v_permlane16_swap_b32 v{D}, v{D+2}')
        e.e(f'v_permlane16_swap_b32 v{D+1}, v{D+3}')
        e.e(f'buffer_store_dwordx4 v[{D}:{D+3}], v{11+k}, s[{OUT}:{OUT+3}], 0 offen{SCO}')
    P.stamp('p4 stores issued')

class Diag:
    n = 0
    @staticmethod
    def stamp(e):
        if DIAG:
            e.out.append(Ins(f's_memrealtime s[{70+2*Diag.n}:{71+2*Diag.n}]')); Diag.n += 1

def gen_mega(prof=False):
    e = Emitter()
    header(e, NAME)
    P = Prof2(e, prof)
    if DIAG:
        class PD:
            names = []
            def stamp(self, name, real=False, hold=False):
                if real: Diag.stamp(e)
            def dump(self, *a, **k): pass
        P = PD()
    P.stamp('start', hold=True); P.stamp('rstart', real=True, hold=True)
    emit_start(e, P)
    l1 = e.newlabel('w23'); l2 = e.newlabel('join'); l4 = e.newlabel('w3'); l0 = e.newlabel('w0')
    e.e(f's_cmp_ge_u32 s{S_W}, 2')
    e.e(f's_cbranch_scc1 {l1}')
    e.e(f's_cmp_eq_u32 s{S_W}, 0')
    e.e(f's_cbranch_scc1 {l0}')
    emit_nonce_write(e)
    e.label(l0)
    emit_ln(e, P)
    p1_setup(e)
    e.e(f's_branch {l2}')
    e.label(l1)
    e.vm_q = []; e.lds_q = []
    e.e(f's_cmp_eq_u32 s{S_W}, 2')
    e.e(f's_cbranch_scc0 {l4}')
    p1_early(e, 0, 0)
    p1_setup(e)
    e.e(f's_branch {l2}')
    e.label(l4)
    e.vm_q = []; e.lds_q = []
    p1_early(e, P1.BUF1, 64)
    p1_setup(e)
    e.label(l2)
    e.vm_q = []; e.lds_q = []
    e.e('s_barrier')
    l3 = e.newlabel('lnp'); l6 = e.newlabel('lnq')
    e.e(f's_cmp_lg_u32 s{S_W}, 0')
    e.e(f's_cbranch_scc1 {l3}')
    emit_ln_store(e)
    e.wait_vm0()
    sp = e.newlabel('nspin'); so = e.newlabel('nspinok')
    e.e(f'v_mov_b32 v6, {L_MISC}')
    e.e(f's_mov_b32 s{S_SPIN}, {SPIN_MAX}')
    e.label(sp)
    e.raw(f'    s_sub_u32 s{S_SPIN}, s{S_SPIN}, 1')
    e.raw(f'    s_cbranch_scc1 {so}')
    e.raw('    ds_read_b64 v[4:5], v6')
    e.raw('    s_waitcnt lgkmcnt(0)')
    e.raw(f'    v_readfirstlane_b32 s{S_NONCE}, v4')
    e.raw(f'    v_readfirstlane_b32 s{S_NONCE+1}, v5')
    e.raw('    s_nop 3')
    e.raw(f'    s_cmp_eq_u32 s{S_NONCE}, 0')
    e.raw(f'    s_cbranch_scc1 {sp}')
    e.label(so)
    publish(e, F_LN)
    e.e('v_and_b32 v3, 31, v0')
    e.e(f's_lshl_b32 s{T[0]}, s{S_MI}, 5')
    e.e(f'v_add_u32 v3, s{T[0]}, v3')
    poll(e, F_LN, 3, 32)
    e.e(f's_branch {l6}')
    e.label(l3)
    e.vm_q = []; e.lds_q = []
    e.e(f's_cmp_eq_u32 s{S_W}, 1')
    e.e(f's_cbranch_scc0 {l6}')
    make_srd(e, S_R2, P_DBG, 256)
    e.e('v_mov_b32 v6, 0')
    e.e(f'buffer_load_dwordx2 v[4:5], v6, s[{S_R2}:{S_R2+3}], 0 offen sc1')
    emit_nonce_poll(e)
    p1_setup_wu(e)
    p3_lane_setup(e)
    e.label(l6)
    e.raw('    s_waitcnt vmcnt(0)'); e.vm_q = []
    e.e('s_barrier')
    read_nonce(e)
    P.stamp('ln synced'); P.stamp('rln synced', real=True)
    emit_p1(e, P)
    emit_p2(e, P)
    emit_p3(e, P, False)
    emit_p4(e, P)
    if DIAG:
        e.e('s_waitcnt vmcnt(0)')
        Diag.stamp(e)
        e.e('s_waitcnt lgkmcnt(0)'); e.lds_q = []
        lab = e.newlabel('diag')
        e.e('s_cmp_lg_u32 s2, 37'); e.e(f's_cbranch_scc1 {lab}')
        e.e(f's_cmp_lg_u32 s{S_W}, 0'); e.e(f's_cbranch_scc1 {lab}')
        make_srd(e, S_R2, P_DBG, 256)
        e.e('v_mov_b32 v6, 0'); e.e('s_mov_b64 exec, 1')
        for k in range(1, Diag.n):
            e.e(f's_sub_u32 s69, s{70+2*k}, s70'); e.e('v_mov_b32 v4, s69')
            e.e(f'buffer_store_dword v4, v6, s[{S_R2}:{S_R2+3}], 0 offen offset:{8+4*(k-1)}')
        e.e(f's_sub_u32 s69, s70, s{S_NONCE}'); e.e('v_mov_b32 v4, s69')
        e.e(f'buffer_store_dword v4, v6, s[{S_R2}:{S_R2+3}], 0 offen offset:{8+4*(Diag.n-1)}')
        e.e('s_waitcnt vmcnt(0)')
        e.label(lab)
    if prof:
        e.e('s_waitcnt vmcnt(0)')
        P.stamp('done'); P.stamp('rend', real=True)
        P.dump(P_WS, S_W)
    e.e('s_endpgm')
    emit_p2_slow(e)
    emit_slow_polls(e)
    e.label(f'{NAME}_end')
    e.e('s_endpgm')
    print(f'mega: {len(e.out)} lines, nops {e.nops}, waits {e.waits}')
    return e.text(), descriptor(NAME, 256, 256, ns=102), dict(name=NAME, grid=256, block=256, lds=LDS_TOTAL, prof=P.names)

if __name__ == '__main__':
    import sys, json
    from build import HEAD
    from asmlib import build
    prof = 'prof' in sys.argv
    if 'plainld' in sys.argv: SCL = ''
    if 'diag' in sys.argv: DIAG = True
    for a in sys.argv:
        if a.startswith('ao='): ATT_ORDER = int(a[3:])
        if a.startswith('xup='): XUP = int(a[4:])
        if a.startswith('sco='): SCO = ' ' + a[4:].replace('_', ' ')
        if a.startswith('scx='): SCX = ' ' + a[4:].replace('_', ' ')
    t, d, i = gen_mega(prof)
    s = HEAD + f"; @launch grid=({i['grid']},1,1) block=({i['block']},1,1) lds={i['lds']}\n"
    s += '.amdgcn_target "amdgcn-amd-amdhsa--gfx950"\n.text\n' + t + '.section .rodata,"a"\n' + d
    open('mega.s', 'w').write(s)
    build(s, NAME, 'mega.co')
    json.dump({NAME: i['prof']}, open('mega.json', 'w'))
    print('built', len(s))
```
